```python
import torch

def _softmax(x, axis=-1):
    return torch.softmax(x, dim=axis)
def _gelu(x):
    return torch.nn.functional.gelu(x, approximate="tanh")
def _silu(x):
    return torch.nn.functional.silu(x)
def _sigmoid(x):
    return torch.sigmoid(x)
def _layernorm(x, axis=-1, eps=1e-5):
    m = x.mean(dim=axis, keepdim=True)
    v = x.var(dim=axis, keepdim=True, unbiased=False)
    return (x - m) / torch.sqrt(v + eps)
def _scatter_add(tgt, idx, src, axis=0):
    return tgt.clone().index_add_(axis, idx, src)
def _segment_sum(src, seg, n):
    out = torch.zeros((n,) + src.shape[1:], dtype=src.dtype)
    return out.index_add_(0, seg, src)
def _pad(x, pw):
    flat = tuple(v for pair in reversed(pw) for v in pair)
    return torch.nn.functional.pad(x, flat)

kernel_name = 'concat_heads__gqa_block_cached__mha_block_cached__near_ridge'

def setup_inputs():

    _w = (lambda a: (lambda t: t.to(torch.bfloat16) if t.is_floating_point() else t)(torch.as_tensor(a)))
    def _A_setup():
        B, Sq, D = 16, 80, 576
        Hq, Hkv, Sk, Dh = 32, 16, 512, 128
        assert Hq % Hkv == 0, (Hq, Hkv)
        return {
            "x": _w((lambda *s: torch.randn(*s, dtype=torch.bfloat16) * 0.8)(B, Sq, D)),
            "k_cache": _w((lambda *s: torch.randn(*s, dtype=torch.bfloat16) * 0.8)(B, Hkv, Sk, Dh)),
            "v_cache": _w((lambda *s: torch.randn(*s, dtype=torch.bfloat16) * 0.05)(B, Hkv, Sk, Dh)),
            "wq": _w((lambda *s: torch.randn(*s, dtype=torch.bfloat16) * 0.8)(D, Hq * Dh) * (D ** -0.5)),
            "wo": _w((lambda *s: torch.randn(*s, dtype=torch.bfloat16) * 0.05)(Hq * Dh, D) * ((Hq * Dh) ** -0.5)),
        }
    _A_in = _A_setup()

    def _B_setup():
        B, Sq, D = 16, 80, 576
        H, Sk, Dh = 32, 512, 128
        return {
            "x": _w((lambda *s: torch.randn(*s, dtype=torch.bfloat16) * 0.8)(B, Sq, D)),
            "k_cache": _w((lambda *s: torch.randn(*s, dtype=torch.bfloat16) * 0.8)(B, H, Sk, Dh)),
            "v_cache": _w((lambda *s: torch.randn(*s, dtype=torch.bfloat16) * 0.05)(B, H, Sk, Dh)),
            "wq": _w((lambda *s: torch.randn(*s, dtype=torch.bfloat16) * 0.8)(D, H * Dh) * (D ** -0.5)),
            "wo": _w((lambda *s: torch.randn(*s, dtype=torch.bfloat16) * 0.05)(H * Dh, D) * ((H * Dh) ** -0.5)),
        }
    _B_in = _B_setup()

    return {
        "A_x": _A_in["x"],
        "A_k_cache": _A_in["k_cache"],
        "A_v_cache": _A_in["v_cache"],
        "A_wq": _A_in["wq"],
        "A_wo": _A_in["wo"],
        "B_x": _B_in["x"],
        "B_k_cache": _B_in["k_cache"],
        "B_v_cache": _B_in["v_cache"],
        "B_wq": _B_in["wq"],
        "B_wo": _B_in["wo"],
    }

def reference(A_x, A_k_cache, A_v_cache, A_wq, A_wo, B_x, B_k_cache, B_v_cache, B_wq, B_wo):
    def _A_ref(x, k_cache, v_cache, wq, wo):
        B, Sq, D = x.shape
        Hq, Dh = 32, 128
        Hkv = k_cache.shape[1]
        rep = Hq // Hkv
        q = (lambda x, *d: x.permute(*d))((x @ wq).reshape(B, Sq, Hq, Dh), 0, 2, 1, 3)
        k = (lambda x, n, axis: torch.repeat_interleave(x, n, dim=axis))(k_cache, rep, axis=1)
        v = (lambda x, n, axis: torch.repeat_interleave(x, n, dim=axis))(v_cache, rep, axis=1)
        scores = torch.einsum("bhqd,bhkd->bhqk", q, k) * (Dh ** -0.5)
        p = _softmax(scores, axis=-1)
        o = torch.einsum("bhqk,bhkd->bhqd", p, v)
        return (lambda x, *d: x.permute(*d))(o, 0, 2, 1, 3).reshape(B, Sq, Hq * Dh) @ wo

    def _B_ref(x, k_cache, v_cache, wq, wo):
        B, Sq, D = x.shape
        H, Dh = 32, 128
        q = (lambda x, *d: x.permute(*d))((x @ wq).reshape(B, Sq, H, Dh), 0, 2, 1, 3)
        scores = torch.einsum("bhqd,bhkd->bhqk", q, k_cache) * (Dh ** -0.5)
        p = _softmax(scores, axis=-1)
        o = torch.einsum("bhqk,bhkd->bhqd", p, v_cache)
        return (lambda x, *d: x.permute(*d))(o, 0, 2, 1, 3).reshape(B, Sq, H * Dh) @ wo

    a = _A_ref(A_x, A_k_cache, A_v_cache, A_wq, A_wo)
    b = _B_ref(B_x, B_k_cache, B_v_cache, B_wq, B_wo)
    return torch.concatenate([a, b], axis=-1)
```

```python
import sys, math

NAME = "concat_heads__gqa_block_cached__mha_block_cached__near_ridge"

class Cfg:
    nt_kv = True
    stamps = 0
cfg = Cfg()
for a in sys.argv[1:]:
    if "=" in a:
        k, v = a.split("=")
        setattr(cfg, k, type(getattr(cfg, k))(int(v)) if isinstance(getattr(cfg, k), (bool, int)) else v)

L = []
def E(s=""):
    L.append(s)
def I(s):
    L.append("  " + s)
def vr(b, n=1):
    return "v%d" % b if n == 1 else "v[%d:%d]" % (b, b + n - 1)
def ar(b, n=1):
    return "a%d" % b if n == 1 else "a[%d:%d]" % (b, b + n - 1)
def sr(b, n=1):
    return "s%d" % b if n == 1 else "s[%d:%d]" % (b, b + n - 1)

MFMA = "v_mfma_f32_16x16x32_bf16"
def mfma(d, a, b, c):
    return "%s %s, %s, %s, %s" % (MFMA, d, a, b, c)

def stamp(k):
    if cfg.stamps:
        I("%s s[%d:%d]" % ("s_memrealtime" if cfg.stamps == 1 else "s_memtime", 80 + 2 * k, 81 + 2 * k))
def stamp_out(n, wsreg, wavereg, off):
    if cfg.stamps:
        I("s_waitcnt lgkmcnt(0)")
        I("s_lshl_b32 s98, s2, 2")
        I("s_add_u32 s98, s98, %s" % sr(wavereg))
        I("s_lshl_b32 s98, s98, 5")
        I("s_add_u32 s98, s98, 0x%x" % off)
        for k in range(8):
            if k < n:
                I("v_mov_b32 v%d, s%d" % (8 + k, 80 + 2 * k))
            else:
                I("v_mov_b32 v%d, 0" % (8 + k))
        I("v_mov_b32 v16, s98")
        I("global_store_dwordx4 v16, v[8:11], %s" % sr(wsreg, 2))
        I("global_store_dwordx4 v16, v[12:15], %s offset:16" % sr(wsreg, 2))

def interleave(mf, fills):
    for s in fills.get(-1, []):
        I(s)
    for i, m in enumerate(mf):
        I(m)
        for s in fills.get(i, []):
            I(s)

QSCALE = math.log2(math.e) / math.sqrt(128.0)
import struct
def f32bits(x):
    return struct.unpack("<I", struct.pack("<f", x))[0]
OWS_BRANCH = 80 * 131072
NTS = "nt " if cfg.nt_kv else ""

S_K, S_V, S_W, S_X, S_O = 32, 36, 40, 44, 48
sWAVE, sTYPE, sHP, sBP, sB, sH = 52, 53, 54, 55, 56, 57
sLW = 58
sT0, sT1, sT2, sT3 = 60, 61, 62, 63
sKK = 64
sWOFF, sXOFF = 65, 66
sMW, sMX = 67, 68
sVOFF, sKOFF = 69, 70
sRETRY = 71
sM0a = 72
sSTAMP = 76
QF, SS, PP, KF, VF, NM = 16, 96, 136, 144, 176, 208
vKR, vVR, vKD, vVD = 228, 232, 240, 244
vWD, vXD, vBR = 246, 250, 253
vAR, vAR2 = 1, 5
vT = 9
vLANE16 = 254
QACC, WF, XF = 16, 176, 208
OA, LA, ONE = 0, 160, 180
def oacc(T, j): return OA + (j * 8 + T) * 4
def qacc(T, j): return QACC + (j * 8 + T) * 4
WBUF = [16384, 49152, 81920]
XBUF = [131072 + u * 10752 for u in range(3)]
K1_LDS = 131072 + 3 * 10752

def dma(voff, srd, soff, imm, nt=""):
    return "buffer_load_dwordx4 %s, %s, %s offen offset:%d %slds" % (vr(voff), sr(srd, 4), soff, imm, nt)

def stage_dma(u):
    r = []
    r.append(["s_add_u32 m0, %s, %d" % (sr(sMW), WBUF[u]), "s_nop 0", dma(vWD + 0, S_W, sr(sWOFF), 0)])
    for n in range(1, 4):
        r.append([dma(vWD + n, S_W, sr(sWOFF), n * 1024)])
    r.append(["s_add_u32 m0, %s, %d" % (sr(sMX), XBUF[u]), "s_nop 0", dma(vXD + 0, S_X, sr(sXOFF), 0)])
    for n in range(1, 3):
        r.append([dma(vXD + n, S_X, sr(sXOFF), n * 1024)])
    return r

def kv_dma(is_k, slot_par, soff):
    base = slot_par * 16384 + (0 if is_k else 8192)
    srd = S_K if is_k else S_V
    r = []
    for n in range(8):
        pre = []
        if n == 0:
            pre = ["s_add_u32 m0, %s, %d" % (sr(sLW), base), "s_nop 0"]
        if n == 4:
            pre = ["s_add_u32 m0, %s, %d" % (sr(sLW), base + 4096), "s_add_u32 %s, %s, 4096" % (sr(sT0 if is_k else sT1), sr(soff))]
        vo = (vKD + (n & 3)) if is_k else (vVD + (n & 1))
        so = sr(soff) if n < 4 else sr(sT0 if is_k else sT1)
        r.append(pre + [dma(vo, srd, so, (n & 3) * 1024, NTS)])
    return r

def a_reads(u, T):
    s = T >> 1
    if u < 2:
        ad, off = vAR + s, WBUF[u] - WBUF[0]
    else:
        ad, off = vAR2 + s, 0
    off += (T & 1) * 8
    return ["ds_read_b64_tr_b16 %s, %s offset:%d" % (vr(WF + 4 * T, 2), vr(ad), off),
            "ds_read_b64_tr_b16 %s, %s offset:%d" % (vr(WF + 4 * T + 2, 2), vr(ad), off + 2048)]
def b_read(u, j):
    return "ds_read_b128 %s, %s offset:%d" % (vr(XF + 4 * j, 4), vr(vBR), XBUF[u] - XBUF[0] + j * 1024)

def k_read(par, mt, s):
    return "ds_read_b128 %s, %s offset:%d" % (vr(KF + (mt * 4 + s) * 4, 4), vr(vKR + s), par * 16384 + mt * 4096)
def v_reads(par, T):
    off = 8192 + par * 16384
    return ["ds_read_b64_tr_b16 %s, %s offset:%d" % (vr(VF + 4 * T, 2), vr(vVR + T), off),
            "ds_read_b64_tr_b16 %s, %s offset:%d" % (vr(VF + 4 * T + 2, 2), vr(vVR + T), off + 4096)]

def qk_group(j, czero=False):
    r = []
    for mt in range(2):
        for s in range(4):
            d = vr(SS + 8 * j + 4 * mt, 4)
            c = d if s else ("0" if czero else vr(NM + 4 * j, 4))
            r.append(mfma(d, vr(KF + (mt * 4 + s) * 4, 4), vr(QF + (j * 4 + s) * 4, 4), c))
    return r
def pv_group(j):
    p = vr(PP + 4 * (j & 1), 4)
    r = [mfma(ar(oacc(T, j), 4), vr(VF + 4 * T, 4), p, ar(oacc(T, j), 4)) for T in range(8)]
    r.append(mfma(ar(LA + 4 * j, 4), ar(ONE, 4), p, ar(LA + 4 * j, 4)))
    return r
def exps(j):
    return ["v_exp_f32 %s, %s" % (vr(SS + 8 * j + k), vr(SS + 8 * j + k)) for k in range(8)]
def cvts(j):
    return ["v_cvt_pk_bf16_f32 %s, %s, %s" % (vr(PP + 4 * (j & 1) + k), vr(SS + 8 * j + 2 * k), vr(SS + 8 * j + 2 * k + 1)) for k in range(4)]

def add_fill(f, gap, ins):
    f.setdefault(gap, []).extend(ins if isinstance(ins, list) else [ins])

def att_step(e):
    mf = pv_group(4) + qk_group(3)
    f = {}
    add_fill(f, -1, "s_waitcnt vmcnt(24)")
    for T in range(8):
        add_fill(f, T, v_reads(e, T))
    ex, cv = exps(0), cvts(0)
    for k in range(8):
        add_fill(f, 8 + k, ex[k])
    add_fill(f, 11, cv[0]); add_fill(f, 13, cv[1]); add_fill(f, 15, cv[2]); add_fill(f, 16, ["s_nop 0", cv[3]])
    interleave(mf, f)
    mf = qk_group(4) + pv_group(0)
    f = {}
    add_fill(f, -1, "s_waitcnt vmcnt(16)")
    for mt in range(2):
        for s in range(4):
            add_fill(f, mt * 4 + s, k_read(1 - e, mt, s))
    add_fill(f, 7, "s_waitcnt lgkmcnt(8)")
    ex, cv = exps(1), cvts(1)
    for k in range(4):
        add_fill(f, 2 * k, ex[k])
    for k in range(4):
        add_fill(f, 8 + 2 * k, ex[4 + k])
    add_fill(f, 5, cv[0]); add_fill(f, 9, cv[1]); add_fill(f, 13, cv[2]); add_fill(f, 16, cv[3])
    vd = kv_dma(False, e, sVOFF)
    add_fill(f, 11, vd[0]); add_fill(f, 13, vd[1]); add_fill(f, 15, vd[2])
    interleave(mf, f)
    def plain_sb(j, dmas, pre=None):
        mf = qk_group((j - 2) % 5) + pv_group(j - 1)
        f = {}
        if pre:
            add_fill(f, -1, pre)
        ex, cv = exps(j), cvts(j)
        for k in range(8):
            add_fill(f, 2 * k, ex[k])
        add_fill(f, 3, cv[0]); add_fill(f, 7, cv[1]); add_fill(f, 11, cv[2]); add_fill(f, 15, cv[3])
        gaps = [1, 5, 9, 13, 16]
        for g, d in zip(gaps, dmas):
            add_fill(f, g, d)
        interleave(mf, f)
    kd = kv_dma(True, 1 - e, sKOFF)
    plain_sb(2, vd[3:8], "s_waitcnt lgkmcnt(0)")
    plain_sb(3, kd[0:4])
    plain_sb(4, kd[4:8] + [["s_add_u32 %s, %s, 8192" % (sr(sVOFF), sr(sVOFF)), "s_add_u32 %s, %s, 8192" % (sr(sKOFF), sr(sKOFF))]])

def gen_k1():
    E(".globl attn_kernel")
    E(".p2align 8")
    E(".type attn_kernel,@function")
    E("attn_kernel:")
    I("s_cmp_ge_u32 s2, 256")
    I("s_cbranch_scc1 K1_END")
    I("s_load_dwordx16 s[4:19], s[0:1], 0")
    I("s_load_dwordx8 s[20:27], s[0:1], 64")
    I("s_load_dwordx2 s[28:29], s[0:1], 96")
    stamp(0)
    I("v_lshrrev_b32 v1, 6, v0")
    I("v_and_b32 v0, 63, v0")
    I("v_readfirstlane_b32 %s, v1" % sr(sWAVE))
    I("s_and_b32 %s, s2, 7" % sr(sT0))
    I("s_lshr_b32 %s, s2, 3" % sr(sT1))
    I("s_and_b32 %s, %s, 1" % (sr(sTYPE), sr(sT1)))
    I("s_lshr_b32 %s, %s, 1" % (sr(sT1), sr(sT1)))
    I("s_and_b32 %s, %s, 1" % (sr(sT2), sr(sT1)))
    I("s_lshl_b32 %s, %s, 1" % (sr(sHP), sr(sT0)))
    I("s_add_u32 %s, %s, %s" % (sr(sHP), sr(sHP), sr(sT2)))
    I("s_lshr_b32 %s, %s, 1" % (sr(sBP), sr(sT1)))
    I("s_lshr_b32 %s, %s, 1" % (sr(sT0), sr(sWAVE)))
    I("s_lshl_b32 %s, %s, 1" % (sr(sB), sr(sBP)))
    I("s_add_u32 %s, %s, %s" % (sr(sB), sr(sB), sr(sT0)))
    I("s_and_b32 %s, %s, 1" % (sr(sT0), sr(sWAVE)))
    I("s_lshl_b32 %s, %s, 1" % (sr(sH), sr(sHP)))
    I("s_add_u32 %s, %s, %s" % (sr(sH), sr(sH), sr(sT0)))
    I("s_lshl_b32 %s, %s, 15" % (sr(sLW), sr(sWAVE)))
    I("s_lshl_b32 %s, %s, 12" % (sr(sMW), sr(sWAVE)))
    I("s_mul_i32 %s, %s, 2560" % (sr(sMX), sr(sWAVE)))
    vg, vi, vrr, vc = 9, 10, 11, 12
    I("v_lshrrev_b32 %s, 4, v0" % vr(vg))
    I("v_and_b32 %s, 15, v0" % vr(vi))
    I("v_lshrrev_b32 %s, 2, %s" % (vr(vrr), vr(vi)))
    I("v_and_b32 %s, 3, %s" % (vr(vc), vr(vi)))
    I("v_lshlrev_b32 %s, 4, v0" % vr(vLANE16))
    t0, t1, t2 = 13, 14, 15
    for m in range(4):
        I("v_add_u32 %s, %d, %s" % (vr(t0), 4 * m, vr(vg)))
        I("v_xor_b32 %s, %s, %s" % (vr(t0), vr(t0), vr(vi)))
        I("v_lshlrev_b32 %s, 4, %s" % (vr(t0), vr(t0)))
        I("v_lshl_add_u32 %s, %s, 8, %s" % (vr(vKD + m), vr(vg), vr(t0)))
    for m in range(2):
        I("v_add_u32 %s, %d, %s" % (vr(t0), 4 * m, vr(vg)))
        I("v_lshlrev_b32 %s, 1, %s" % (vr(t0), vr(t0)))
        I("v_xor_b32 %s, %s, %s" % (vr(t0), vr(t0), vr(vi)))
        I("v_lshlrev_b32 %s, 4, %s" % (vr(t0), vr(t0)))
        I("v_lshl_add_u32 %s, %s, 8, %s" % (vr(vVD + m), vr(vg), vr(t0)))
    I("v_lshrrev_b32 %s, 5, v0" % vr(t1))
    I("v_and_b32 %s, 31, v0" % vr(t2))
    I("s_lshl_b32 %s, %s, 3" % (sr(sT0), sr(sWAVE)))
    for n in range(4):
        I("v_add_u32 %s, %d, %s" % (vr(t0), (2 * n) & 3, vr(t1)))
        I("v_lshlrev_b32 %s, 2, %s" % (vr(t0), vr(t0)))
        I("v_xor_b32 %s, %s, %s" % (vr(t0), vr(t0), vr(t2)))
        I("v_lshlrev_b32 %s, 4, %s" % (vr(t0), vr(t0)))
        I("v_add_u32 %s, %s, %s" % (vr(vWD + n), sr(sT0), vr(t1)))
        I("v_add_u32 %s, %d, %s" % (vr(vWD + n), 2 * n, vr(vWD + n)))
        I("v_lshl_add_u32 %s, %s, 13, %s" % (vr(vWD + n), vr(vWD + n), vr(t0)))
        if n:
            I("v_subrev_u32 %s, %d, %s" % (vr(vWD + n), n * 1024, vr(vWD + n)))
    I("s_lshl_b32 %s, %s, 1" % (sr(sT0), sr(sWAVE)))
    I("v_add_u32 %s, %s, %s" % (vr(t0), sr(sT0), vr(vg)))
    I("v_sub_u32 %s, 0, %s" % (vr(t0), vr(t0)))
    I("v_and_b32 %s, 3, %s" % (vr(t0), vr(t0)))
    I("v_and_b32 %s, 3, v0" % vr(t1))
    I("v_xor_b32 %s, %s, %s" % (vr(t0), vr(t0), vr(t1)))
    I("v_lshlrev_b32 %s, 4, %s" % (vr(t0), vr(t0)))
    I("v_lshrrev_b32 %s, 2, v0" % vr(t1))
    I("s_mul_i32 %s, %s, 40" % (sr(sT0), sr(sWAVE)))
    I("v_add_u32 %s, %s, %s" % (vr(t1), sr(sT0), vr(t1)))
    I("s_movk_i32 %s, 1152" % sr(sT1))
    I("v_mul_lo_u32 %s, %s, %s" % (vr(t1), vr(t1), sr(sT1)))
    I("v_add_u32 %s, %s, %s" % (vr(vXD), vr(t0), vr(t1)))
    for n in range(1, 3):
        I("v_add_u32 %s, %d, %s" % (vr(vXD + n), n * (16 * 1152 - 1024), vr(vXD)))
    I("s_waitcnt lgkmcnt(0)")
    I("s_cmp_eq_u32 %s, 0" % sr(sTYPE))
    I("s_cselect_b32 %s, s4, s14" % sr(S_X))
    I("s_cselect_b32 %s, s5, s15" % sr(S_X + 1))
    I("s_cselect_b32 %s, s6, s16" % sr(S_K))
    I("s_cselect_b32 %s, s7, s17" % sr(S_K + 1))
    I("s_cselect_b32 %s, s8, s18" % sr(S_V))
    I("s_cselect_b32 %s, s9, s19" % sr(S_V + 1))
    I("s_cselect_b32 %s, s10, s20" % sr(S_W))
    I("s_cselect_b32 %s, s11, s21" % sr(S_W + 1))
    I("s_lshl_b32 %s, %s, 4" % (sr(sT0), sr(sB)))
    I("s_add_u32 %s, %s, %s" % (sr(sT0), sr(sT0), sr(sHP)))
    I("s_lshl_b32 %s, %s, 5" % (sr(sT1), sr(sB)))
    I("s_add_u32 %s, %s, %s" % (sr(sT1), sr(sT1), sr(sH)))
    I("s_cmp_eq_u32 %s, 0" % sr(sTYPE))
    I("s_cselect_b32 %s, %s, %s" % (sr(sT0), sr(sT0), sr(sT1)))
    I("s_lshl_b32 %s, %s, 17" % (sr(sT0), sr(sT0)))
    for S in (S_K, S_V):
        I("s_add_u32 %s, %s, %s" % (sr(S), sr(S), sr(sT0)))
        I("s_addc_u32 %s, %s, 0" % (sr(S + 1), sr(S + 1)))
        I("s_and_b32 %s, %s, 0xffff" % (sr(S + 1), sr(S + 1)))
        I("s_mov_b32 %s, 0x20000" % sr(S + 2))
        I("s_mov_b32 %s, 0x20000" % sr(S + 3))
    I("s_lshl_b32 %s, %s, 9" % (sr(sT0), sr(sHP)))
    I("s_add_u32 %s, %s, %s" % (sr(S_W), sr(S_W), sr(sT0)))
    I("s_addc_u32 %s, %s, 0" % (sr(S_W + 1), sr(S_W + 1)))
    I("s_and_b32 %s, %s, 0xffff" % (sr(S_W + 1), sr(S_W + 1)))
    I("s_sub_u32 %s, %d, %s" % (sr(S_W + 2), 576 * 8192, sr(sT0)))
    I("s_mov_b32 %s, 0x20000" % sr(S_W + 3))
    I("s_mul_i32 %s, %s, %d" % (sr(sT0), sr(sBP), 160 * 1152))
    I("s_add_u32 %s, %s, %s" % (sr(S_X), sr(S_X), sr(sT0)))
    I("s_addc_u32 %s, %s, 0" % (sr(S_X + 1), sr(S_X + 1)))
    I("s_and_b32 %s, %s, 0xffff" % (sr(S_X + 1), sr(S_X + 1)))
    I("s_sub_u32 %s, %d, %s" % (sr(S_X + 2), 1280 * 1152, sr(sT0)))
    I("s_mov_b32 %s, 0x20000" % sr(S_X + 3))
    for u in range(3):
        I("s_mov_b32 %s, %d" % (sr(sWOFF), u * 262144))
        I("s_mov_b32 %s, %d" % (sr(sXOFF), u * 64))
        for grp in stage_dma(u):
            for s in grp:
                I(s)
    I("s_mov_b32 %s, 0" % sr(sKOFF))
    I("s_mov_b32 %s, 0" % sr(sVOFF))
    for grp in kv_dma(True, 0, sKOFF):
        for s in grp: I(s)
    for grp in kv_dma(False, 0, sVOFF):
        for s in grp: I(s)
    I("s_mul_i32 %s, %s, %d" % (sr(sT0), sr(sTYPE), OWS_BRANCH))
    I("s_mul_i32 %s, %s, %d" % (sr(sT1), sr(sB), 5 * 131072))
    I("s_add_u32 %s, %s, %s" % (sr(sT0), sr(sT0), sr(sT1)))
    I("s_lshl_b32 %s, %s, 12" % (sr(sT1), sr(sH)))
    I("s_add_u32 %s, %s, %s" % (sr(sT0), sr(sT0), sr(sT1)))
    I("s_add_u32 %s, s28, %s" % (sr(S_O), sr(sT0)))
    I("s_addc_u32 %s, s29, 0" % sr(S_O + 1))
    I("s_and_b32 %s, %s, 0xffff" % (sr(S_O + 1), sr(S_O + 1)))
    I("s_mov_b32 %s, %d" % (sr(S_O + 2), 4 * 131072 + 4096))
    I("s_mov_b32 %s, 0x20000" % sr(S_O + 3))
    I("s_and_b32 %s, %s, 1" % (sr(sT0), sr(sWAVE)))
    I("s_lshl_b32 %s, %s, 8" % (sr(sT0), sr(sT0)))
    I("s_add_u32 %s, %s, %d" % (sr(sT0), sr(sT0), WBUF[0]))
    I("v_lshl_add_u32 %s, %s, 3, %s" % (vr(t1), vr(vg), vr(vrr)))
    I("v_lshlrev_b32 %s, 9, %s" % (vr(t1), vr(t1)))
    I("v_lshl_add_u32 %s, %s, 4, %s" % (vr(t1), vr(vc), vr(t1)))
    I("v_add_u32 %s, %s, %s" % (vr(t1), sr(sT0), vr(t1)))
    for s in range(4):
        I("v_xor_b32 %s, %d, %s" % (vr(t0), s, vr(vrr)))
        I("v_lshl_add_u32 %s, %s, 6, %s" % (vr(vAR + s), vr(t0), vr(t1)))
        I("v_add_u32 %s, %d, %s" % (vr(vAR2 + s), WBUF[2] - WBUF[0], vr(vAR + s)))
    I("s_lshr_b32 %s, %s, 1" % (sr(sT0), sr(sWAVE)))
    I("s_mul_i32 %s, %s, %d" % (sr(sT0), sr(sT0), 80 * 64))
    I("s_add_u32 %s, %s, %d" % (sr(sT0), sr(sT0), XBUF[0]))
    I("v_sub_u32 %s, 0, %s" % (vr(t0), vr(vrr)))
    I("v_and_b32 %s, 3, %s" % (vr(t0), vr(t0)))
    I("v_xor_b32 %s, %s, %s" % (vr(t0), vr(t0), vr(vg)))
    I("v_lshlrev_b32 %s, 4, %s" % (vr(t0), vr(t0)))
    I("v_lshl_add_u32 %s, %s, 6, %s" % (vr(t0), vr(vi), vr(t0)))
    I("v_add_u32 %s, %s, %s" % (vr(vBR), sr(sT0), vr(t0)))
    for s in range(4):
        I("v_add_u32 %s, %d, %s" % (vr(t0), 4 * s, vr(vg)))
        I("v_xor_b32 %s, %s, %s" % (vr(t0), vr(t0), vr(vi)))
        I("v_lshlrev_b32 %s, 4, %s" % (vr(t0), vr(t0)))
        I("v_lshl_add_u32 %s, %s, 8, %s" % (vr(t0), vr(vi), vr(t0)))
        I("v_add_u32 %s, %s, %s" % (vr(vKR + s), sr(sLW), vr(t0)))
    I("v_lshl_add_u32 %s, %s, 2, %s" % (vr(t1), vr(vg), vr(vrr)))
    I("v_and_b32 %s, 7, %s" % (vr(t2), vr(t1)))
    I("v_lshlrev_b32 %s, 8, %s" % (vr(t1), vr(t1)))
    I("v_lshl_add_u32 %s, %s, 3, %s" % (vr(t1), vr(vc), vr(t1)))
    I("v_add_u32 %s, %s, %s" % (vr(t1), sr(sLW), vr(t1)))
    for T in range(8):
        I("v_xor_b32 %s, %d, %s" % (vr(t0), T, vr(t2)))
        I("v_lshl_add_u32 %s, %s, 5, %s" % (vr(vVR + T), vr(t0), vr(t1)))
    for r in range(160):
        I("v_mov_b32 %s, 0" % vr(QACC + r))
    for r in range(180):
        I("v_accvgpr_write_b32 %s, 0" % ar(r))
    I("v_mov_b32 %s, 0x3f803f80" % vr(t0))
    for r in range(4):
        I("v_accvgpr_write_b32 %s, %s" % (ar(ONE + r), vr(t0)))
    I("s_mov_b32 %s, 0" % sr(sRETRY))
    stamp(1)
    I("s_waitcnt vmcnt(30)")
    I("s_barrier")
    stamp(2)
    for T in range(8):
        for s in a_reads(0, T): I(s)
    for j in range(5):
        I(b_read(0, j))
    I("s_waitcnt lgkmcnt(0)")
    I("s_mov_b32 %s, 0" % sr(sKK))
    E("K1_QLOOP:")
    for u in range(3):
        un = (u + 1) % 3
        mf = []
        for j in range(5):
            for T in range(8):
                mf.append(mfma(vr(qacc(T, j), 4), vr(WF + 4 * T, 4), vr(XF + 4 * j, 4), vr(qacc(T, j), 4)))
        f = {}
        add_fill(f, -1, "s_waitcnt lgkmcnt(11)")
        add_fill(f, 2, "s_waitcnt lgkmcnt(5)")
        add_fill(f, 5, "s_waitcnt lgkmcnt(1)")
        add_fill(f, 0, ["s_add_u32 %s, %s, %d" % (sr(sT2), sr(sKK), u + 3), "s_lshl_b32 %s, %s, 18" % (sr(sWOFF), sr(sT2))])
        add_fill(f, 1, ["s_lshl_b32 %s, %s, 6" % (sr(sXOFF), sr(sT2)), "s_cmp_lt_u32 %s, 18" % sr(sT2)])
        add_fill(f, 2, ["s_cselect_b32 %s, %s, 0x40000000" % (sr(sXOFF), sr(sXOFF))])
        if u < 2:
            lab = "K1_QW%d" % u
            w = ["s_cmp_eq_u32 %s, 0" % sr(sKK), "s_cbranch_scc1 %s_first" % lab, "s_waitcnt vmcnt(7) lgkmcnt(0)", "s_branch %s_go" % lab,
                 "%s_first:" % lab, "s_waitcnt vmcnt(23) lgkmcnt(0)", "%s_go:" % lab, "s_barrier"]
        else:
            w = ["s_waitcnt vmcnt(7) lgkmcnt(0)", "s_barrier"]
        add_fill(f, 7, w + [b_read(un, 0)])
        sd = stage_dma(u)
        for g, d in zip([9, 12, 14, 17, 20, 22, 25], sd):
            add_fill(f, g, d)
        add_fill(f, 15, b_read(un, 1))
        add_fill(f, 23, b_read(un, 2))
        add_fill(f, 31, b_read(un, 3))
        for T in range(8):
            add_fill(f, 32 + T, a_reads(un, T))
        add_fill(f, 39, b_read(un, 4))
        interleave(mf, f)
    I("s_add_u32 %s, %s, 3" % (sr(sKK), sr(sKK)))
    I("s_cmp_lt_u32 %s, 18" % sr(sKK))
    I("s_cbranch_scc1 K1_QLOOP")
    stamp(3)
    I("s_waitcnt vmcnt(0) lgkmcnt(0)")
    I("s_barrier")
    I("s_mov_b32 %s, 8192" % sr(sKOFF))
    I("s_mov_b32 %s, 8192" % sr(sVOFF))
    for grp in kv_dma(True, 1, sKOFF):
        for s in grp: I(s)
    for grp in kv_dma(False, 1, sVOFF):
        for s in grp: I(s)
    I("s_mov_b32 %s, 0x%08x" % (sr(sT0), f32bits(QSCALE)))
    I("s_mov_b32 %s, %s" % (sr(sT1), sr(sT0)))
    for j in range(5):
        for s in range(4):
            src = qacc(2 * s, j)
            for k in range(0, 8, 2):
                I("v_pk_mul_f32 %s, %s, %s" % (vr(src + k, 2), vr(src + k, 2), sr(sT0, 2)))
            dst = QF + (j * 4 + s) * 4
            for k in range(4):
                I("v_cvt_pk_bf16_f32 %s, %s, %s" % (vr(dst + k), vr(src + 2 * k), vr(src + 2 * k + 1)))
    for mt in range(2):
        for s in range(4):
            I(k_read(0, mt, s))
    E("K1_ATT_COMMON:")
    I("s_waitcnt lgkmcnt(0)")
    I("s_mov_b32 %s, 16384" % sr(sKOFF))
    for grp in kv_dma(True, 0, sKOFF):
        for s in grp: I(s)
    I("s_mov_b32 %s, 16384" % sr(sVOFF))
    I("s_mov_b32 %s, 24576" % sr(sKOFF))
    for j in range(5):
        for m in qk_group(j, czero=True): I(m)
    I("s_nop 7")
    I("s_nop 1")
    I("s_cmp_lg_u32 %s, 0" % sr(sRETRY))
    I("s_cbranch_scc1 K1_HAVE_MAX")
    for j in range(5):
        b = SS + 8 * j
        I("v_max3_f32 %s, %s, %s, %s" % (vr(t0), vr(b), vr(b + 1), vr(b + 2)))
        I("v_max3_f32 %s, %s, %s, %s" % (vr(t0), vr(t0), vr(b + 3), vr(b + 4)))
        I("v_max3_f32 %s, %s, %s, %s" % (vr(t0), vr(t0), vr(b + 5), vr(b + 6)))
        I("v_max_f32 %s, %s, %s" % (vr(t0), vr(t0), vr(b + 7)))
        xlane_max(t0, t1)
        for k in range(4):
            I("v_sub_f32 %s, 0, %s" % (vr(NM + 4 * j + k), vr(t0)))
    E("K1_HAVE_MAX:")
    for j in range(3):
        for k in range(8):
            I("v_add_f32 %s, %s, %s" % (vr(SS + 8 * j + k), vr(SS + 8 * j + k), vr(NM + 4 * j)))
    for k in range(4):
        I("v_mov_b32 %s, 0" % vr(PP + k))
    for k in range(32):
        I("v_mov_b32 %s, 0" % vr(VF + k))
    I("s_mov_b32 %s, 0" % sr(sKK))
    stamp(4)
    E("K1_ALOOP:")
    att_step(0)
    att_step(1)
    I("s_add_u32 %s, %s, 2" % (sr(sKK), sr(sKK)))
    I("s_cmp_lt_u32 %s, 16" % sr(sKK))
    I("s_cbranch_scc1 K1_ALOOP")
    for m in pv_group(4): I(m)
    stamp(5)
    I("s_nop 7")
    I("s_nop 1")
    lv = [SS + j for j in range(5)]
    for j in range(5):
        I("v_accvgpr_read_b32 %s, %s" % (vr(lv[j]), ar(LA + 4 * j)))
    I("s_cmp_lg_u32 %s, 0" % sr(sRETRY))
    I("s_cbranch_scc1 K1_NORM")
    I("v_add_f32 %s, %s, %s" % (vr(t1), vr(lv[0]), vr(lv[1])))
    I("v_add_f32 %s, %s, %s" % (vr(t1), vr(t1), vr(lv[2])))
    I("v_add_f32 %s, %s, %s" % (vr(t1), vr(t1), vr(lv[3])))
    I("v_add_f32 %s, %s, %s" % (vr(t1), vr(t1), vr(lv[4])))
    I("v_mov_b32 %s, 0x4e800000" % vr(t2))
    I("v_cmp_nlt_f32 vcc, %s, %s" % (vr(t1), vr(t2)))
    I("s_nop 4")
    I("s_cbranch_vccnz K1_FALLBACK")
    E("K1_NORM:")
    for j in range(5):
        I("v_rcp_f32 %s, %s" % (vr(lv[j] + 5), vr(lv[j])))
    I("s_nop 0")
    tmpsets = [KF, KF + 8, KF + 16, KF + 24]
    cnt = 0
    for j in range(5):
        rc = lv[j] + 5
        for p in range(4):
            tb = tmpsets[cnt % 4]; cnt += 1
            for k in range(4):
                I("v_accvgpr_read_b32 %s, %s" % (vr(tb + k), ar(oacc(2 * p, j) + k)))
                I("v_accvgpr_read_b32 %s, %s" % (vr(tb + 4 + k), ar(oacc(2 * p + 1, j) + k)))
            for k in range(8):
                I("v_mul_f32 %s, %s, %s" % (vr(tb + k), vr(tb + k), vr(rc)))
            ob = VF + 4 * (cnt % 8)
            for k in range(4):
                I("v_cvt_pk_bf16_f32 %s, %s, %s" % (vr(ob + k), vr(tb + 2 * k), vr(tb + 2 * k + 1)))
            I("s_mov_b32 %s, %d" % (sr(sT0), j * 131072))
            I("buffer_store_dwordx4 %s, %s, %s, %s offen offset:%d" % (vr(ob, 4), vr(vLANE16), sr(S_O, 4), sr(sT0), p * 1024))
    stamp(6)
    if cfg.stamps:
        I("s_waitcnt vmcnt(0)")
    stamp(7)
    stamp_out(8, 28, sWAVE, 0x4000000)
    E("K1_END:")
    I("s_endpgm")
    E("K1_FALLBACK:")
    I("s_waitcnt vmcnt(0) lgkmcnt(0)")
    mx = [VF + j for j in range(5)]
    for j in range(5):
        I("v_mov_b32 %s, 0xff800000" % vr(mx[j]))
    I("s_mov_b32 %s, 0" % sr(sKOFF))
    E("K1_FB_LOOP:")
    for grp in kv_dma(True, 0, sKOFF):
        for s in grp: I(s)
    I("s_waitcnt vmcnt(0)")
    for mt in range(2):
        for s in range(4):
            I(k_read(0, mt, s))
    I("s_waitcnt lgkmcnt(0)")
    for j in range(5):
        for m in qk_group(j, czero=True): I(m)
    I("s_nop 7")
    I("s_nop 1")
    for j in range(5):
        b = SS + 8 * j
        for k in range(0, 8, 2):
            I("v_max3_f32 %s, %s, %s, %s" % (vr(mx[j]), vr(mx[j]), vr(b + k), vr(b + k + 1)))
    I("s_add_u32 %s, %s, 8192" % (sr(sKOFF), sr(sKOFF)))
    I("s_cmp_lt_u32 %s, 131072" % sr(sKOFF))
    I("s_cbranch_scc1 K1_FB_LOOP")
    for j in range(5):
        I("v_mov_b32 %s, %s" % (vr(t0), vr(mx[j])))
        xlane_max(t0, t1)
        for k in range(4):
            I("v_sub_f32 %s, 0, %s" % (vr(NM + 4 * j + k), vr(t0)))
    for r in range(180):
        I("v_accvgpr_write_b32 %s, 0" % ar(r))
    I("s_mov_b32 %s, 1" % sr(sRETRY))
    I("s_mov_b32 %s, 0" % sr(sKOFF))
    I("s_mov_b32 %s, 0" % sr(sVOFF))
    for grp in kv_dma(True, 0, sKOFF):
        for s in grp: I(s)
    for grp in kv_dma(False, 0, sVOFF):
        for s in grp: I(s)
    I("s_mov_b32 %s, 8192" % sr(sKOFF))
    I("s_mov_b32 %s, 8192" % sr(sVOFF))
    for grp in kv_dma(True, 1, sKOFF):
        for s in grp: I(s)
    for grp in kv_dma(False, 1, sVOFF):
        for s in grp: I(s)
    I("s_waitcnt vmcnt(24)")
    for mt in range(2):
        for s in range(4):
            I(k_read(0, mt, s))
    I("s_branch K1_ATT_COMMON")

def xlane_max(x, y):
    I("v_mov_b32 %s, %s" % (vr(y), vr(x)))
    I("s_nop 1")
    I("v_permlane32_swap_b32 %s, %s" % (vr(x), vr(y)))
    I("s_nop 1")
    I("v_max_f32 %s, %s, %s" % (vr(x), vr(x), vr(y)))
    I("v_mov_b32 %s, %s" % (vr(y), vr(x)))
    I("s_nop 1")
    I("v_permlane16_swap_b32 %s, %s" % (vr(x), vr(y)))
    I("s_nop 1")
    I("v_max_f32 %s, %s, %s" % (vr(x), vr(x), vr(y)))

K2_STAGE = 40960
K2_LDS = 3 * K2_STAGE
def gen_k2():
    sOW, sWO, sOUT = 32, 36, 40
    sW_, sBR, sMT, sNT, sH_, sOoff, sWoff = 44, 45, 46, 47, 48, 49, 50
    sa, sb, sc = 52, 53, 54
    sM = 55
    ACC = 0
    vWDk = 16
    vL16 = 22
    vAe, vAo = 24, 28
    vB = 32
    BF = 40
    AF = 56
    E(".globl oproj_kernel")
    E(".p2align 8")
    E(".type oproj_kernel,@function")
    E("oproj_kernel:")
    I("s_cmp_ge_u32 s2, 240")
    I("s_cbranch_scc1 K2_END")
    I("s_load_dwordx2 s[4:5], s[0:1], 32")
    I("s_load_dwordx2 s[6:7], s[0:1], 72")
    I("s_load_dwordx2 s[8:9], s[0:1], 80")
    I("s_load_dwordx2 s[10:11], s[0:1], 96")
    stamp(0)
    I("v_lshrrev_b32 v1, 6, v0")
    I("v_and_b32 v0, 63, v0")
    I("v_readfirstlane_b32 %s, v1" % sr(sW_))
    I("s_and_b32 %s, s2, 7" % sr(sa))
    I("s_lshr_b32 %s, s2, 3" % sr(sb))
    I("s_and_b32 %s, %s, 1" % (sr(sBR), sr(sa)))
    I("s_lshr_b32 %s, %s, 1" % (sr(sa), sr(sa)))
    I("s_mul_i32 %s, %s, 5" % (sr(sMT), sr(sa)))
    I("s_mul_i32 %s, %s, 43" % (sr(sc), sr(sb)))
    I("s_lshr_b32 %s, %s, 8" % (sr(sc), sr(sc)))
    I("s_add_u32 %s, %s, %s" % (sr(sMT), sr(sMT), sr(sc)))
    I("s_mul_i32 %s, %s, 6" % (sr(sc), sr(sc)))
    I("s_sub_u32 %s, %s, %s" % (sr(sNT), sr(sb), sr(sc)))
    vg, vi, vrr, vc = 9, 10, 11, 12
    t0, t1, t2 = 13, 14, 15
    I("v_lshrrev_b32 %s, 4, v0" % vr(vg))
    I("v_and_b32 %s, 15, v0" % vr(vi))
    I("v_lshrrev_b32 %s, 2, %s" % (vr(vrr), vr(vi)))
    I("v_and_b32 %s, 3, %s" % (vr(vc), vr(vi)))
    I("v_lshlrev_b32 %s, 4, v0" % vr(vL16))
    I("s_lshl_b32 %s, %s, 5" % (sr(sa), sr(sW_)))
    I("s_movk_i32 %s, 1152" % sr(sb))
    I("s_mov_b32 %s, 5462" % sr(sc))
    for n in range(6):
        I("v_add_u32 %s, %d, v0" % (vr(t0), 64 * n))
        I("v_mul_lo_u32 %s, %s, %s" % (vr(t1), vr(t0), sr(sc)))
        I("v_lshrrev_b32 %s, 16, %s" % (vr(t1), vr(t1)))
        I("v_mul_u32_u24 %s, 12, %s" % (vr(t2), vr(t1)))
        I("v_sub_u32 %s, %s, %s" % (vr(t0), vr(t0), vr(t2)))
        I("v_lshrrev_b32 %s, 1, %s" % (vr(t2), vr(t1)))
        I("v_and_b32 %s, 2, %s" % (vr(t2), vr(t2)))
        I("v_xor_b32 %s, %s, %s" % (vr(t0), vr(t0), vr(t2)))
        I("v_add_u32 %s, %s, %s" % (vr(t1), sr(sa), vr(t1)))
        I("v_mul_lo_u32 %s, %s, %s" % (vr(t1), vr(t1), sr(sb)))
        I("v_lshl_add_u32 %s, %s, 4, %s" % (vr(vWDk + n), vr(t0), vr(t1)))
        if n & 3:
            I("v_subrev_u32 %s, %d, %s" % (vr(vWDk + n), (n & 3) * 1024, vr(vWDk + n)))
    for q in range(384):
        assert (q * 5462) >> 16 == q // 12
    I("s_waitcnt lgkmcnt(0)")
    I("s_cmp_eq_u32 %s, 0" % sr(sBR))
    I("s_cselect_b32 %s, s4, s6" % sr(sWO))
    I("s_cselect_b32 %s, s5, s7" % sr(sWO + 1))
    I("s_mul_i32 %s, %s, 192" % (sr(sa), sr(sNT)))
    I("s_add_u32 %s, %s, %s" % (sr(sWO), sr(sWO), sr(sa)))
    I("s_addc_u32 %s, %s, 0" % (sr(sWO + 1), sr(sWO + 1)))
    I("s_and_b32 %s, %s, 0xffff" % (sr(sWO + 1), sr(sWO + 1)))
    I("s_sub_u32 %s, %d, %s" % (sr(sWO + 2), 4096 * 1152, sr(sa)))
    I("s_mov_b32 %s, 0x20000" % sr(sWO + 3))
    I("s_mul_i32 %s, %s, %d" % (sr(sa), sr(sBR), OWS_BRANCH))
    I("s_lshl_b32 %s, %s, 2" % (sr(sb), sr(sMT)))
    I("s_add_u32 %s, %s, %s" % (sr(sb), sr(sb), sr(sW_)))
    I("s_lshl_b32 %s, %s, 17" % (sr(sb), sr(sb)))
    I("s_add_u32 %s, %s, %s" % (sr(sa), sr(sa), sr(sb)))
    I("s_add_u32 %s, s10, %s" % (sr(sOW), sr(sa)))
    I("s_addc_u32 %s, s11, 0" % sr(sOW + 1))
    I("s_and_b32 %s, %s, 0xffff" % (sr(sOW + 1), sr(sOW + 1)))
    I("s_mov_b32 %s, 0x20000" % sr(sOW + 2))
    I("s_mov_b32 %s, 0x20000" % sr(sOW + 3))
    def k2_dma(u):
        r = []
        r.append(["s_lshl_b32 %s, %s, 12" % (sr(sM), sr(sW_)), "s_add_u32 m0, %s, %d" % (sr(sM), u * K2_STAGE), "s_nop 0",
                  dma(vL16, sOW, sr(sOoff), 0)])
        for n in range(1, 4):
            r.append([dma(vL16, sOW, sr(sOoff), n * 1024)])
        r.append(["s_mul_i32 %s, %s, 6144" % (sr(sM), sr(sW_)), "s_add_u32 m0, %s, %d" % (sr(sM), u * K2_STAGE + 16384), "s_nop 0",
                  dma(vWDk + 0, sWO, sr(sWoff), 0)])
        for n in range(1, 4):
            r.append([dma(vWDk + n, sWO, sr(sWoff), n * 1024)])
        r.append(["s_add_u32 m0, %s, %d" % (sr(sM), u * K2_STAGE + 16384 + 4096), "s_nop 0", dma(vWDk + 4, sWO, sr(sWoff), 0)])
        r.append([dma(vWDk + 5, sWO, sr(sWoff), 1024)])
        return r
    for u in range(2):
        I("s_mov_b32 %s, %d" % (sr(sOoff), u * 4096))
        I("s_mov_b32 %s, %d" % (sr(sWoff), u * 128 * 1152))
        for grp in k2_dma(u):
            for s in grp: I(s)
    I("s_lshr_b32 %s, %s, 1" % (sr(sa), sr(sW_)))
    I("s_lshl_b32 %s, %s, 13" % (sr(sa), sr(sa)))
    for u in range(3):
        I("s_add_u32 %s, %s, %d" % (sr(sb), sr(sa), u * K2_STAGE))
        I("v_add_u32 %s, %s, %s" % (vr(vB + u), sr(sb), vr(vL16)))
    I("v_lshl_add_u32 %s, %s, 2, %s" % (vr(t0), vr(vg), vr(vrr)))
    I("v_mul_u32_u24 %s, 192, %s" % (vr(t0), vr(t0)))
    I("v_lshl_add_u32 %s, %s, 3, %s" % (vr(t0), vr(vc), vr(t0)))
    I("v_and_b32 %s, 1, %s" % (vr(t1), vr(vg)))
    I("v_lshlrev_b32 %s, 5, %s" % (vr(t1), vr(t1)))
    I("s_and_b32 %s, %s, 1" % (sr(sa), sr(sW_)))
    I("s_mul_i32 %s, %s, 96" % (sr(sb), sr(sa)))
    I("s_add_u32 %s, %s, %d" % (sr(sb), sr(sb), 16384))
    I("v_add_u32 %s, %s, %s" % (vr(t0), sr(sb), vr(t0)))
    I("v_add_u32 %s, %s, %s" % (vr(t2), vr(t0), vr(t1)))
    I("v_sub_u32 %s, %s, %s" % (vr(t0), vr(t0), vr(t1)))
    I("s_cmp_eq_u32 %s, 0" % sr(sa))
    I("s_cselect_b64 vcc, -1, 0")
    I("v_cndmask_b32 %s, %s, %s, vcc" % (vr(t1), vr(t0), vr(t2)))
    I("v_cndmask_b32 %s, %s, %s, vcc" % (vr(t0), vr(t2), vr(t0)))
    for u in range(3):
        I("v_add_u32 %s, %d, %s" % (vr(vAe + u), u * K2_STAGE, vr(t1)))
        I("v_add_u32 %s, %d, %s" % (vr(vAo + u), u * K2_STAGE, vr(t0)))
    for r in range(24):
        I("v_accvgpr_write_b32 %s, 0" % ar(ACC + r))
    I("s_mov_b32 %s, 0" % sr(sH_))
    stamp(1)
    E("K2_LOOP:")
    for u in range(3):
        if u == 2:
            I("s_cmp_ge_u32 %s, 30" % sr(sH_))
            I("s_cbranch_scc1 K2_DONE")
        I("s_waitcnt vmcnt(10)")
        I("s_barrier")
        I("s_add_u32 %s, %s, %d" % (sr(sa), sr(sH_), u + 2))
        I("s_lshl_b32 %s, %s, 12" % (sr(sOoff), sr(sa)))
        I("s_mul_i32 %s, %s, %d" % (sr(sWoff), sr(sa), 128 * 1152))
        d = k2_dma((u + 2) % 3)
        def rd(p):
            bb = BF + (p & 1) * 8; ab = AF + (p & 1) * 12
            r = []
            for q in range(2):
                r.append("ds_read_b128 %s, %s offset:%d" % (vr(bb + 4 * q, 4), vr(vB + u), q * 4096 + p * 1024))
            for k in range(3):
                ad = (vAe if k != 1 else vAo) + u
                off = p * 32 * 192 + k * 32
                r.append("ds_read_b64_tr_b16 %s, %s offset:%d" % (vr(ab + 4 * k, 2), vr(ad), off))
                r.append("ds_read_b64_tr_b16 %s, %s offset:%d" % (vr(ab + 4 * k + 2, 2), vr(ad), off + 16 * 192))
            return r
        for s in rd(0): I(s)
        di = 0
        for p in range(4):
            if p < 3:
                for s in rd(p + 1): I(s)
                I("s_waitcnt lgkmcnt(8)")
            else:
                I("s_waitcnt lgkmcnt(0)")
            bb = BF + (p & 1) * 8; ab = AF + (p & 1) * 12
            n = 0
            for q in range(2):
                for k in range(3):
                    a = ar(ACC + (q * 3 + k) * 4, 4)
                    I(mfma(a, vr(ab + 4 * k, 4), vr(bb + 4 * q, 4), a))
                    if n % 2 == 0 and di < len(d) :
                        for s in d[di]: I(s)
                        di += 1
                    n += 1
        assert di == len(d) or True
        while di < len(d):
            for s in d[di]: I(s)
            di += 1
    I("s_add_u32 %s, %s, 3" % (sr(sH_), sr(sH_)))
    I("s_branch K2_LOOP")
    E("K2_DONE:")
    stamp(2)
    I("s_nop 7")
    I("s_nop 1")
    I("s_lshl_b32 %s, %s, 6" % (sr(sa), sr(sMT)))
    I("s_lshr_b32 %s, %s, 1" % (sr(sb), sr(sW_)))
    I("s_lshl_b32 %s, %s, 5" % (sr(sb), sr(sb)))
    I("s_add_u32 %s, %s, %s" % (sr(sa), sr(sa), sr(sb)))
    I("v_add_u32 %s, %s, %s" % (vr(t0), sr(sa), vr(vi)))
    I("s_movk_i32 %s, 2304" % sr(sb))
    I("v_mul_lo_u32 %s, %s, %s" % (vr(t0), vr(t0), sr(sb)))
    I("v_lshl_add_u32 %s, %s, 3, %s" % (vr(t0), vr(vg), vr(t0)))
    I("s_mul_i32 %s, %s, 1152" % (sr(sa), sr(sBR)))
    I("s_mul_i32 %s, %s, 192" % (sr(sb), sr(sNT)))
    I("s_add_u32 %s, %s, %s" % (sr(sa), sr(sa), sr(sb)))
    I("s_and_b32 %s, %s, 1" % (sr(sb), sr(sW_)))
    I("s_mul_i32 %s, %s, 96" % (sr(sb), sr(sb)))
    I("s_add_u32 %s, %s, %s" % (sr(sa), sr(sa), sr(sb)))
    I("v_add_u32 %s, %s, %s" % (vr(t0), sr(sa), vr(t0)))
    I("s_mov_b32 %s, s8" % sr(sOUT))
    I("s_and_b32 %s, s9, 0xffff" % sr(sOUT + 1))
    I("s_mov_b32 %s, %d" % (sr(sOUT + 2), 16 * 80 * 1152 * 2))
    I("s_mov_b32 %s, 0x20000" % sr(sOUT + 3))
    for q in range(2):
        I("s_mov_b32 %s, %d" % (sr(sa), q * 16 * 2304))
        for k in range(3):
            a = ACC + (q * 3 + k) * 4
            tb = BF + ((q * 3 + k) % 4) * 8
            for r in range(4):
                I("v_accvgpr_read_b32 %s, %s" % (vr(tb + r), ar(a + r)))
            I("v_cvt_pk_bf16_f32 %s, %s, %s" % (vr(tb + 4), vr(tb), vr(tb + 1)))
            I("v_cvt_pk_bf16_f32 %s, %s, %s" % (vr(tb + 5), vr(tb + 2), vr(tb + 3)))
            I("buffer_store_dwordx2 %s, %s, %s, %s offen offset:%d" % (vr(tb + 4, 2), vr(t0), sr(sOUT, 4), sr(sa), k * 32))
    stamp(3)
    if cfg.stamps:
        I("s_waitcnt vmcnt(0)")
    stamp(4)
    stamp_out(5, 10, sW_, 0x4010000)
    E("K2_END:")
    I("s_endpgm")

def kd(name, nv, ns, acc):
    E(".amdhsa_kernel %s" % name)
    E("  .amdhsa_next_free_vgpr %d" % nv)
    E("  .amdhsa_next_free_sgpr %d" % ns)
    E("  .amdhsa_accum_offset %d" % acc)
    E("  .amdhsa_group_segment_fixed_size 0")
    E("  .amdhsa_kernarg_size 104")
    E("  .amdhsa_user_sgpr_count 2")
    E("  .amdhsa_user_sgpr_kernarg_segment_ptr 1")
    E("  .amdhsa_system_sgpr_workgroup_id_x 1")
    E(".end_amdhsa_kernel")

E("; @launch kernel=attn_kernel grid=(256,1,1) block=(256,1,1) lds=%d" % K1_LDS)
E("; @launch kernel=oproj_kernel grid=(240,1,1) block=(256,1,1) lds=%d" % K2_LDS)
E('.amdgcn_target "amdgcn-amd-amdhsa--gfx950"')
E(".text")
gen_k1()
gen_k2()
E('.section .rodata,"a"')
E(".p2align 6")
kd("attn_kernel", 512, 102, 256)
E(".p2align 6")
kd("oproj_kernel", 128, 102, 96)
print("\n".join(L))
```

```python
import sys, math, struct

class Cfg:
    nt_kv = 1
    stamps = 0
    pf_q = 1
    pf_wo = 1
    st_flag = ""
    wo_step = 10
cfg = Cfg()
for a in sys.argv[1:]:
    if "=" in a:
        k, v = a.split("=")
        setattr(cfg, k, int(v) if isinstance(getattr(cfg, k), int) else v)

L = []
def E(s=""): L.append(s)
def I(s):
    if s.endswith(":"): L.append(s)
    else: L.append("  " + s)
def vr(b, n=1): return "v%d" % b if n == 1 else "v[%d:%d]" % (b, b + n - 1)
def ar(b, n=1): return "a%d" % b if n == 1 else "a[%d:%d]" % (b, b + n - 1)
def sr(b, n=1): return "s%d" % b if n == 1 else "s[%d:%d]" % (b, b + n - 1)
MFMA = "v_mfma_f32_16x16x32_bf16"
def mfma(d, a, b, c): return "%s %s, %s, %s, %s" % (MFMA, d, a, b, c)
def f32bits(x): return struct.unpack("<I", struct.pack("<f", x))[0]

def stamp(k):
    if cfg.stamps:
        I("%s s[%d:%d]" % ("s_memrealtime" if cfg.stamps == 1 else "s_memtime", 80 + 2 * k, 81 + 2 * k))
def stamp_out(n, wsreg, idreg, off):
    if cfg.stamps:
        I("s_waitcnt lgkmcnt(0)")
        I("s_lshl_b32 s98, %s, 5" % sr(idreg))
        I("s_add_u32 s98, s98, 0x%x" % off)
        for k in range(8):
            I("v_mov_b32 v%d, %s" % (8 + k, ("s%d" % (80 + 2 * k)) if k < n else "0"))
        I("v_mov_b32 v16, s98")
        I("global_store_dwordx4 v16, v[8:11], %s" % sr(wsreg, 2))
        I("global_store_dwordx4 v16, v[12:15], %s offset:16" % sr(wsreg, 2))

def interleave(mf, fills):
    for s in fills.get(-1, []): I(s)
    for i, m in enumerate(mf):
        I(m)
        for s in fills.get(i, []): I(s)
def add_fill(f, gap, ins):
    f.setdefault(gap, []).extend(ins if isinstance(ins, list) else [ins])
def flat(groups):
    for g in groups:
        for s in g: I(s)

QSCALE = math.log2(math.e) / math.sqrt(128.0)
NTS = "nt " if cfg.nt_kv else ""
PSTR_HP = 16 * 2 * 46080
PSTR_TYPE = 16 * PSTR_HP
STAMP_OFF = 0x4000000

S_K, S_V, S_W, S_X, S_O, S_P = 32, 36, 40, 44, 48, 52
sWAVE, sTYPE, sHP, sBP, sB, sH = 56, 57, 58, 59, 60, 61
sLW = 62
sT0, sT1, sT2, sT3 = 64, 65, 66, 67
sKK = 68
sWOFF, sXOFF = 69, 70
sMW, sMX = 71, 72
sVOFF, sKOFF = 73, 74
sRETRY = 75
sHALF = 76
sM3 = 77
sUID = 78
sPOFF = 79
QF, SS, PP, KF, VF, NM = 16, 96, 136, 144, 176, 208
vKR, vVR, vKD, vVD = 228, 232, 240, 244
vWD, vXD, vBR = 246, 250, 253
vAR, vAR2 = 1, 5
vLANE16 = 254
vPF = 255
vg, vi, vrr, vc = 9, 10, 11, 12
t0, t1, t2 = 13, 14, 15
QACC, WF, XF = 16, 176, 208
OA, LA, ONE = 0, 160, 180
def oacc(T, j): return OA + (j * 8 + T) * 4
def qacc(T, j): return QACC + (j * 8 + T) * 4
WBUF = [16384, 49152, 81920]
XBUF = [131072 + u * 10752 for u in range(3)]
K1_LDS = 163840
W3 = [131072, 0, 32768]
XCH = 49152
OFO, OFP = 16, 96
A3 = 176
vA3 = 232
vW3D = 234
PK = 208
def acc3(par, ct, j): return par * 40 + (ct * 5 + j) * 4

def dma(voff, srd, soff, imm, nt=""):
    return "buffer_load_dwordx4 %s, %s, %s offen offset:%d %slds" % (vr(voff), sr(srd, 4), soff, imm, nt)

def stage_dma(u):
    r = []
    r.append(["s_add_u32 m0, %s, %d" % (sr(sMW), WBUF[u]), "s_nop 0", dma(vWD + 0, S_W, sr(sWOFF), 0)])
    for n in range(1, 4): r.append([dma(vWD + n, S_W, sr(sWOFF), n * 1024)])
    r.append(["s_add_u32 m0, %s, %d" % (sr(sMX), XBUF[u]), "s_nop 0", dma(vXD + 0, S_X, sr(sXOFF), 0)])
    for n in range(1, 3): r.append([dma(vXD + n, S_X, sr(sXOFF), n * 1024)])
    return r

def kv_dma(is_k, slot_par, soff, shared=False):
    base = slot_par * 16384 + (0 if is_k else 8192)
    srd = S_K if is_k else S_V
    tmp = sT0 if is_k else sT1
    r = []
    if shared:
        for n in range(4):
            pre = []
            if n == 0:
                pre = ["s_add_u32 %s, %s, %s" % (sr(tmp), sr(sLW), sr(sHALF)), "s_add_u32 m0, %s, %d" % (sr(tmp), base),
                       "s_add_u32 %s, %s, %s" % (sr(tmp), sr(soff), sr(sHALF))]
            vo = (vKD + n) if is_k else (vVD + (n & 1))
            r.append(pre + [dma(vo, srd, sr(tmp), n * 1024, NTS)])
        return r
    for n in range(8):
        pre = []
        if n == 0: pre = ["s_add_u32 m0, %s, %d" % (sr(sLW), base), "s_nop 0"]
        if n == 4: pre = ["s_add_u32 m0, %s, %d" % (sr(sLW), base + 4096), "s_add_u32 %s, %s, 4096" % (sr(tmp), sr(soff))]
        vo = (vKD + (n & 3)) if is_k else (vVD + (n & 1))
        so = sr(soff) if n < 4 else sr(tmp)
        r.append(pre + [dma(vo, srd, so, (n & 3) * 1024, NTS)])
    return r

def a_reads(u, T):
    s = T >> 1
    if u < 2: ad, off = vAR + s, WBUF[u] - WBUF[0]
    else: ad, off = vAR2 + s, 0
    off += (T & 1) * 8
    return ["ds_read_b64_tr_b16 %s, %s offset:%d" % (vr(WF + 4 * T, 2), vr(ad), off),
            "ds_read_b64_tr_b16 %s, %s offset:%d" % (vr(WF + 4 * T + 2, 2), vr(ad), off + 2048)]
def b_read(u, j):
    return "ds_read_b128 %s, %s offset:%d" % (vr(XF + 4 * j, 4), vr(vBR), XBUF[u] - XBUF[0] + j * 1024)
def k_read(par, mt, s):
    return "ds_read_b128 %s, %s offset:%d" % (vr(KF + (mt * 4 + s) * 4, 4), vr(vKR + s), par * 16384 + mt * 4096)
def v_reads(par, T):
    off = 8192 + par * 16384
    return ["ds_read_b64_tr_b16 %s, %s offset:%d" % (vr(VF + 4 * T, 2), vr(vVR + T), off),
            "ds_read_b64_tr_b16 %s, %s offset:%d" % (vr(VF + 4 * T + 2, 2), vr(vVR + T), off + 4096)]
def qk_group(j, czero=False):
    r = []
    for mt in range(2):
        for s in range(4):
            d = vr(SS + 8 * j + 4 * mt, 4)
            c = d if s else ("0" if czero else vr(NM + 4 * j, 4))
            r.append(mfma(d, vr(KF + (mt * 4 + s) * 4, 4), vr(QF + (j * 4 + s) * 4, 4), c))
    return r
def pv_group(j):
    p = vr(PP + 4 * (j & 1), 4)
    r = [mfma(ar(oacc(T, j), 4), vr(VF + 4 * T, 4), p, ar(oacc(T, j), 4)) for T in range(8)]
    r.append(mfma(ar(LA + 4 * j, 4), ar(ONE, 4), p, ar(LA + 4 * j, 4)))
    return r
def exps(j): return ["v_exp_f32 %s, %s" % (vr(SS + 8 * j + k), vr(SS + 8 * j + k)) for k in range(8)]
def cvts(j): return ["v_cvt_pk_bf16_f32 %s, %s, %s" % (vr(PP + 4 * (j & 1) + k), vr(SS + 8 * j + 2 * k), vr(SS + 8 * j + 2 * k + 1)) for k in range(4)]

def att_step(e, shared):
    mf = pv_group(4) + qk_group(3)
    f = {}
    if shared: add_fill(f, -1, ["s_waitcnt vmcnt(8)", "s_barrier"])
    else: add_fill(f, -1, "s_waitcnt vmcnt(24)")
    for T in range(8): add_fill(f, T, v_reads(e, T))
    ex, cv = exps(0), cvts(0)
    for k in range(8): add_fill(f, 8 + k, ex[k])
    add_fill(f, 11, cv[0]); add_fill(f, 13, cv[1]); add_fill(f, 15, cv[2]); add_fill(f, 16, ["s_nop 0", cv[3]])
    interleave(mf, f)
    mf = qk_group(4) + pv_group(0)
    f = {}
    if not shared: add_fill(f, -1, "s_waitcnt vmcnt(16)")
    for mt in range(2):
        for s in range(4): add_fill(f, mt * 4 + s, k_read(1 - e, mt, s))
    add_fill(f, 7, "s_waitcnt lgkmcnt(8)")
    ex, cv = exps(1), cvts(1)
    for k in range(4): add_fill(f, 2 * k, ex[k])
    for k in range(4): add_fill(f, 8 + 2 * k, ex[4 + k])
    add_fill(f, 5, cv[0]); add_fill(f, 9, cv[1]); add_fill(f, 13, cv[2]); add_fill(f, 16, cv[3])
    vd = kv_dma(False, e, sVOFF, shared)
    kd = kv_dma(True, 1 - e, sKOFF, shared)
    if not shared:
        add_fill(f, 11, vd[0]); add_fill(f, 13, vd[1]); add_fill(f, 15, vd[2])
    interleave(mf, f)
    def plain_sb(j, dmas, pre=None):
        mf = qk_group((j - 2) % 5) + pv_group(j - 1)
        f = {}
        if pre: add_fill(f, -1, pre)
        ex, cv = exps(j), cvts(j)
        for k in range(8): add_fill(f, 2 * k, ex[k])
        add_fill(f, 3, cv[0]); add_fill(f, 7, cv[1]); add_fill(f, 11, cv[2]); add_fill(f, 15, cv[3])
        for g, d in zip([1, 5, 9, 13, 16], dmas): add_fill(f, g, d)
        interleave(mf, f)
    inc = [["s_add_u32 %s, %s, 8192" % (sr(sVOFF), sr(sVOFF)), "s_add_u32 %s, %s, 8192" % (sr(sKOFF), sr(sKOFF))]]
    if shared:
        plain_sb(2, vd[0:4], ["s_waitcnt lgkmcnt(0)", "s_barrier"])
        plain_sb(3, kd[0:4])
        plain_sb(4, inc)
    else:
        plain_sb(2, vd[3:8], "s_waitcnt lgkmcnt(0)")
        plain_sb(3, kd[0:4])
        plain_sb(4, kd[4:8] + inc)

def xlane_max(x, y):
    I("v_mov_b32 %s, %s" % (vr(y), vr(x)))
    I("s_nop 1")
    I("v_permlane32_swap_b32 %s, %s" % (vr(x), vr(y)))
    I("s_nop 1")
    I("v_max_f32 %s, %s, %s" % (vr(x), vr(x), vr(y)))
    I("v_mov_b32 %s, %s" % (vr(y), vr(x)))
    I("s_nop 1")
    I("v_permlane16_swap_b32 %s, %s" % (vr(x), vr(y)))
    I("s_nop 1")
    I("v_max_f32 %s, %s, %s" % (vr(x), vr(x), vr(y)))

def srd(S, lo, hi, off_sreg, nrec):
    if off_sreg is not None:
        I("s_add_u32 %s, %s, %s" % (sr(S), sr(S), sr(off_sreg)))
        I("s_addc_u32 %s, %s, 0" % (sr(S + 1), sr(S + 1)))
    I("s_and_b32 %s, %s, 0xffff" % (sr(S + 1), sr(S + 1)))
    if nrec is not None:
        I("s_mov_b32 %s, %d" % (sr(S + 2), nrec))
    I("s_mov_b32 %s, 0x20000" % sr(S + 3))

def w3_dma(u, soffreg):
    r = []
    for n in range(8):
        pre = []
        if n == 0: pre = ["s_add_u32 m0, %s, %d" % (sr(sM3), W3[u]), "s_nop 0"]
        if n == 4: pre = ["s_add_u32 m0, %s, %d" % (sr(sM3), W3[u] + 4096), "s_add_u32 %s, %s, %d" % (sr(sT3), sr(soffreg), 64 * 1152)]
        so = sr(soffreg) if n < 4 else sr(sT3)
        r.append(pre + [dma(vW3D + (n & 3), S_O, so, (n & 3) * 1024)])
    return r

def q_epilogue():
    I("s_mov_b32 %s, 0x%08x" % (sr(sT2), f32bits(QSCALE)))
    I("s_mov_b32 %s, %s" % (sr(sT3), sr(sT2)))
    for j in range(5):
        for s in range(4):
            src = qacc(2 * s, j)
            for k in range(0, 8, 2):
                I("v_pk_mul_f32 %s, %s, %s" % (vr(src + k, 2), vr(src + k, 2), sr(sT2, 2)))
            dst = QF + (j * 4 + s) * 4
            for k in range(4):
                I("v_cvt_pk_bf16_f32 %s, %s, %s" % (vr(dst + k), vr(src + 2 * k), vr(src + 2 * k + 1)))
    for mt in range(2):
        for s in range(4): I(k_read(0, mt, s))

def att_prologue_and_loop(shared, tag):
    E("K1_ATT_COMMON_%s:" % tag)
    I("s_waitcnt lgkmcnt(0)")
    if shared: I("s_barrier")
    I("s_mov_b32 %s, 16384" % sr(sKOFF))
    flat(kv_dma(True, 0, sKOFF, shared))
    I("s_mov_b32 %s, 16384" % sr(sVOFF))
    I("s_mov_b32 %s, 24576" % sr(sKOFF))
    for j in range(5):
        for m in qk_group(j, czero=True): I(m)
    I("s_nop 7"); I("s_nop 1")
    if not shared:
        I("s_cmp_lg_u32 %s, 0" % sr(sRETRY))
        I("s_cbranch_scc1 K1_HAVE_MAX_%s" % tag)
    for j in range(5):
        b = SS + 8 * j
        I("v_max3_f32 %s, %s, %s, %s" % (vr(t0), vr(b), vr(b + 1), vr(b + 2)))
        I("v_max3_f32 %s, %s, %s, %s" % (vr(t0), vr(t0), vr(b + 3), vr(b + 4)))
        I("v_max3_f32 %s, %s, %s, %s" % (vr(t0), vr(t0), vr(b + 5), vr(b + 6)))
        I("v_max_f32 %s, %s, %s" % (vr(t0), vr(t0), vr(b + 7)))
        xlane_max(t0, t1)
        for k in range(4): I("v_sub_f32 %s, 0, %s" % (vr(NM + 4 * j + k), vr(t0)))
    E("K1_HAVE_MAX_%s:" % tag)
    for j in range(3):
        for k in range(8):
            I("v_add_f32 %s, %s, %s" % (vr(SS + 8 * j + k), vr(SS + 8 * j + k), vr(NM + 4 * j)))
    for k in range(4): I("v_mov_b32 %s, 0" % vr(PP + k))
    for k in range(32): I("v_mov_b32 %s, 0" % vr(VF + k))
    I("s_mov_b32 %s, 0" % sr(sKK))
    stamp(4)
    E("K1_ALOOP_%s:" % tag)
    if cfg.pf_wo:
        I("s_cmp_lg_u32 %s, %d" % (sr(sKK), cfg.wo_step))
        I("s_cbranch_scc1 K1_NOPF_%s" % tag)
        I("s_mul_i32 %s, %s, 72" % (sr(sT2), sr(sWAVE)))
        I("v_add_u32 %s, %s, v0" % (vr(t0), sr(sT2)))
        for rep in range(2):
            if rep: I("v_add_u32 %s, 64, %s" % (vr(t0), vr(t0)))
            I("v_mul_u32_u24 %s, 7282, %s" % (vr(t1), vr(t0)))
            I("v_lshrrev_b32 %s, 16, %s" % (vr(t1), vr(t1)))
            I("v_mul_u32_u24 %s, 9, %s" % (vr(t2), vr(t1)))
            I("v_sub_u32 %s, %s, %s" % (vr(t2), vr(t0), vr(t2)))
            I("s_lshl_b32 %s, %s, 5" % (sr(sT3), sr(sBP)))
            I("v_add_u32 %s, %s, %s" % (vr(t1), sr(sT3), vr(t1)))
            I("v_mul_u32_u24 %s, 1152, %s" % (vr(t1), vr(t1)))
            I("v_lshl_add_u32 %s, %s, 7, %s" % (vr(t1), vr(t2), vr(t1)))
            if rep:
                I("v_cmp_gt_u32 vcc, 8, v0")
                I("v_mov_b32 %s, 0x40000000" % vr(t2))
                I("s_nop 0")
                I("v_cndmask_b32 %s, %s, %s, vcc" % (vr(t1), vr(t2), vr(t1)))
            I("buffer_load_dword %s, %s, %s, 0 offen" % (vr(vPF), vr(t1), sr(S_O, 4)))
        for q in range(360): assert (q * 7282) >> 16 == q // 9
        E("K1_NOPF_%s:" % tag)
    att_step(0, shared)
    att_step(1, shared)
    I("s_add_u32 %s, %s, 2" % (sr(sKK), sr(sKK)))
    I("s_cmp_lt_u32 %s, 16" % sr(sKK))
    I("s_cbranch_scc1 K1_ALOOP_%s" % tag)

def gen_k1():
    E(".globl attn_kernel"); E(".p2align 8"); E(".type attn_kernel,@function"); E("attn_kernel:")
    I("s_cmp_ge_u32 s2, 256")
    I("s_cbranch_scc1 K1_END")
    I("s_load_dwordx16 s[4:19], s[0:1], 0")
    I("s_load_dwordx8 s[20:27], s[0:1], 64")
    I("s_load_dwordx2 s[28:29], s[0:1], 96")
    stamp(0)
    I("v_lshrrev_b32 v1, 6, v0")
    I("v_and_b32 v0, 63, v0")
    I("v_readfirstlane_b32 %s, v1" % sr(sWAVE))
    I("s_and_b32 %s, s2, 7" % sr(sT0))
    I("s_lshr_b32 %s, s2, 3" % sr(sT1))
    I("s_and_b32 %s, %s, 1" % (sr(sTYPE), sr(sT1)))
    I("s_lshr_b32 %s, %s, 1" % (sr(sT1), sr(sT1)))
    I("s_and_b32 %s, %s, 1" % (sr(sT2), sr(sT1)))
    I("s_lshl_b32 %s, %s, 1" % (sr(sHP), sr(sT0)))
    I("s_add_u32 %s, %s, %s" % (sr(sHP), sr(sHP), sr(sT2)))
    I("s_lshr_b32 %s, %s, 1" % (sr(sBP), sr(sT1)))
    I("v_lshrrev_b32 %s, 4, v0" % vr(vg))
    I("v_and_b32 %s, 15, v0" % vr(vi))
    I("s_lshr_b32 %s, %s, 1" % (sr(sT0), sr(sWAVE)))
    I("s_lshl_b32 %s, %s, 1" % (sr(sB), sr(sBP)))
    I("s_add_u32 %s, %s, %s" % (sr(sB), sr(sB), sr(sT0)))
    I("s_and_b32 %s, %s, 1" % (sr(sT0), sr(sWAVE)))
    I("s_lshl_b32 %s, %s, 1" % (sr(sH), sr(sHP)))
    I("s_add_u32 %s, %s, %s" % (sr(sH), sr(sH), sr(sT0)))
    I("s_lshl_b32 %s, %s, 12" % (sr(sHALF), sr(sT0)))
    I("s_lshl_b32 %s, s2, 2" % sr(sUID))
    I("s_add_u32 %s, %s, %s" % (sr(sUID), sr(sUID), sr(sWAVE)))
    I("s_and_b32 %s, %s, 2" % (sr(sT0), sr(sWAVE)))
    I("s_cmp_eq_u32 %s, 0" % sr(sTYPE))
    I("s_cselect_b32 %s, %s, %s" % (sr(sLW), sr(sT0), sr(sWAVE)))
    I("s_lshl_b32 %s, %s, 15" % (sr(sLW), sr(sLW)))
    I("s_lshl_b32 %s, %s, 12" % (sr(sMW), sr(sWAVE)))
    I("s_mul_i32 %s, %s, 2560" % (sr(sMX), sr(sWAVE)))
    I("v_lshrrev_b32 %s, 2, %s" % (vr(vrr), vr(vi)))
    I("v_and_b32 %s, 3, %s" % (vr(vc), vr(vi)))
    I("v_lshlrev_b32 %s, 4, v0" % vr(vLANE16))
    I("v_lshrrev_b32 %s, 5, v0" % vr(t1))
    I("v_and_b32 %s, 31, v0" % vr(t2))
    I("s_lshl_b32 %s, %s, 3" % (sr(sT0), sr(sWAVE)))
    for n in range(4):
        I("v_add_u32 %s, %d, %s" % (vr(t0), (2 * n) & 3, vr(t1)))
        I("v_lshlrev_b32 %s, 2, %s" % (vr(t0), vr(t0)))
        I("v_xor_b32 %s, %s, %s" % (vr(t0), vr(t0), vr(t2)))
        I("v_lshlrev_b32 %s, 4, %s" % (vr(t0), vr(t0)))
        I("v_add_u32 %s, %s, %s" % (vr(vWD + n), sr(sT0), vr(t1)))
        I("v_add_u32 %s, %d, %s" % (vr(vWD + n), 2 * n, vr(vWD + n)))
        I("v_lshl_add_u32 %s, %s, 13, %s" % (vr(vWD + n), vr(vWD + n), vr(t0)))
        if n: I("v_subrev_u32 %s, %d, %s" % (vr(vWD + n), n * 1024, vr(vWD + n)))
    I("s_lshl_b32 %s, %s, 1" % (sr(sT0), sr(sWAVE)))
    I("v_add_u32 %s, %s, %s" % (vr(t0), sr(sT0), vr(vg)))
    I("v_sub_u32 %s, 0, %s" % (vr(t0), vr(t0)))
    I("v_and_b32 %s, 3, %s" % (vr(t0), vr(t0)))
    I("v_and_b32 %s, 3, v0" % vr(t1))
    I("v_xor_b32 %s, %s, %s" % (vr(t0), vr(t0), vr(t1)))
    I("v_lshlrev_b32 %s, 4, %s" % (vr(t0), vr(t0)))
    I("v_lshrrev_b32 %s, 2, v0" % vr(t1))
    I("s_mul_i32 %s, %s, 40" % (sr(sT0), sr(sWAVE)))
    I("v_add_u32 %s, %s, %s" % (vr(t1), sr(sT0), vr(t1)))
    I("v_mul_u32_u24 %s, 1152, %s" % (vr(t1), vr(t1)))
    I("v_add_u32 %s, %s, %s" % (vr(vXD), vr(t0), vr(t1)))
    for n in range(1, 3): I("v_add_u32 %s, %d, %s" % (vr(vXD + n), n * (16 * 1152 - 1024), vr(vXD)))
    I("s_waitcnt lgkmcnt(0)")
    I("s_cmp_eq_u32 %s, 0" % sr(sTYPE))
    for S, a, b in ((S_X, 4, 14), (S_K, 6, 16), (S_V, 8, 18), (S_W, 10, 20), (S_O, 12, 22)):
        I("s_cselect_b32 %s, s%d, s%d" % (sr(S), a, b))
        I("s_cselect_b32 %s, s%d, s%d" % (sr(S + 1), a + 1, b + 1))
    I("s_lshl_b32 %s, %s, 9" % (sr(sT0), sr(sHP)))
    I("s_sub_u32 %s, %d, %s" % (sr(S_W + 2), 576 * 8192, sr(sT0)))
    srd(S_W, None, None, sT0, None)
    I("s_mul_i32 %s, %s, %d" % (sr(sT0), sr(sBP), 160 * 1152))
    I("s_sub_u32 %s, %d, %s" % (sr(S_X + 2), 1280 * 1152, sr(sT0)))
    srd(S_X, None, None, sT0, None)
    I("s_mov_b32 %s, 0" % sr(sWOFF)); I("s_mov_b32 %s, 0" % sr(sXOFF))
    flat(stage_dma(0))
    npf = 0
    if cfg.pf_q:
        I("s_lshl_b32 %s, %s, 2" % (sr(sT0), sr(sWAVE)))
        I("v_add_u32 %s, %s, %s" % (vr(t0), sr(sT0), vr(vg)))
        I("v_lshlrev_b32 %s, 5, %s" % (vr(t0), vr(t0)))
        I("s_lshl_b32 %s, %s, 2" % (sr(sT0), sr(sBP)))
        I("v_add_u32 %s, %s, %s" % (vr(t0), sr(sT0), vr(t0)))
        I("v_add_u32 %s, %s, %s" % (vr(t0), vr(t0), vr(vrr)))
        I("v_lshlrev_b32 %s, 13, %s" % (vr(t0), vr(t0)))
        I("v_lshl_add_u32 %s, %s, 7, %s" % (vr(t0), vr(vc), vr(t0)))
        I("buffer_load_dword %s, %s, %s, 0 offen" % (vr(vPF), vr(t0), sr(S_W, 4)))
        I("s_and_b32 %s, %s, 1" % (sr(sT1), sr(sHP)))
        I("s_mul_i32 %s, %s, 80" % (sr(sT1), sr(sT1)))
        for rep in range(3):
            I("s_lshl_b32 %s, %s, 6" % (sr(sT0), sr(sWAVE)))
            I("s_add_u32 %s, %s, %d" % (sr(sT0), sr(sT0), rep * 256))
            I("v_add_u32 %s, %s, v0" % (vr(t0), sr(sT0)))
            I("v_mul_u32_u24 %s, 3277, %s" % (vr(t1), vr(t0)))
            I("v_lshrrev_b32 %s, 18, %s" % (vr(t1), vr(t1)))
            I("v_mul_u32_u24 %s, 80, %s" % (vr(t2), vr(t1)))
            I("v_sub_u32 %s, %s, %s" % (vr(t2), vr(t0), vr(t2)))
            I("v_add_u32 %s, %s, %s" % (vr(t2), sr(sT1), vr(t2)))
            I("v_mul_u32_u24 %s, 1152, %s" % (vr(t2), vr(t2)))
            I("v_lshl_add_u32 %s, %s, 7, %s" % (vr(t2), vr(t1), vr(t2)))
            I("v_cmp_gt_u32 vcc, 9, %s" % vr(t1))
            I("v_mov_b32 %s, 0x40000000" % vr(t1))
            I("s_nop 0")
            I("v_cndmask_b32 %s, %s, %s, vcc" % (vr(t2), vr(t1), vr(t2)))
            I("buffer_load_dword %s, %s, %s, 0 offen" % (vr(vPF), vr(t2), sr(S_X, 4)))
        for q in range(768): assert (q * 3277) >> 18 == q // 80
        npf = 4
    I("s_mov_b32 %s, %d" % (sr(sWOFF), 262144)); I("s_mov_b32 %s, 64" % sr(sXOFF))
    flat(stage_dma(1))
    for r in range(160): I("v_mov_b32 %s, 0" % vr(QACC + r))
    I("s_mov_b32 %s, %d" % (sr(sWOFF), 2 * 262144)); I("s_mov_b32 %s, 128" % sr(sXOFF))
    flat(stage_dma(2))
    for m in range(4):
        I("v_add_u32 %s, %d, %s" % (vr(t0), 4 * m, vr(vg)))
        I("v_xor_b32 %s, %s, %s" % (vr(t0), vr(t0), vr(vi)))
        I("v_lshlrev_b32 %s, 4, %s" % (vr(t0), vr(t0)))
        I("v_lshl_add_u32 %s, %s, 8, %s" % (vr(vKD + m), vr(vg), vr(t0)))
    for m in range(2):
        I("v_add_u32 %s, %d, %s" % (vr(t0), 4 * m, vr(vg)))
        I("v_lshlrev_b32 %s, 1, %s" % (vr(t0), vr(t0)))
        I("v_xor_b32 %s, %s, %s" % (vr(t0), vr(t0), vr(vi)))
        I("v_lshlrev_b32 %s, 4, %s" % (vr(t0), vr(t0)))
        I("v_lshl_add_u32 %s, %s, 8, %s" % (vr(vVD + m), vr(vg), vr(t0)))
    I("s_lshl_b32 %s, %s, 4" % (sr(sT0), sr(sB)))
    I("s_add_u32 %s, %s, %s" % (sr(sT0), sr(sT0), sr(sHP)))
    I("s_lshl_b32 %s, %s, 5" % (sr(sT1), sr(sB)))
    I("s_add_u32 %s, %s, %s" % (sr(sT1), sr(sT1), sr(sH)))
    I("s_cmp_eq_u32 %s, 0" % sr(sTYPE))
    I("s_cselect_b32 %s, %s, %s" % (sr(sT0), sr(sT0), sr(sT1)))
    I("s_lshl_b32 %s, %s, 17" % (sr(sT2), sr(sT0)))
    srd(S_K, None, None, sT2, 0x20000)
    srd(S_V, None, None, sT2, 0x20000)
    I("s_mov_b32 %s, 0" % sr(sKOFF)); I("s_mov_b32 %s, 0" % sr(sVOFF))
    I("s_cmp_eq_u32 %s, 0" % sr(sTYPE))
    I("s_cbranch_scc0 K1_KV0_B")
    flat(kv_dma(True, 0, sKOFF, True)); flat(kv_dma(False, 0, sVOFF, True))
    I("s_branch K1_KV0_DONE")
    E("K1_KV0_B:")
    flat(kv_dma(True, 0, sKOFF, False)); flat(kv_dma(False, 0, sVOFF, False))
    E("K1_KV0_DONE:")
    I("s_mul_i32 %s, %s, %d" % (sr(sT0), sr(sHP), 256 * 1152))
    srd(S_O, None, None, sT0, 256 * 1152)
    I("s_mul_i32 %s, %s, %d" % (sr(sT0), sr(sTYPE), PSTR_TYPE))
    I("s_mul_i32 %s, %s, %d" % (sr(sT1), sr(sHP), PSTR_HP))
    I("s_add_u32 %s, %s, %s" % (sr(sT0), sr(sT0), sr(sT1)))
    I("s_lshl_b32 %s, %s, 1" % (sr(sT1), sr(sB)))
    I("s_and_b32 %s, %s, 1" % (sr(sT2), sr(sWAVE)))
    I("s_add_u32 %s, %s, %s" % (sr(sT1), sr(sT1), sr(sT2)))
    I("s_mul_i32 %s, %s, 46080" % (sr(sT1), sr(sT1)))
    I("s_add_u32 %s, %s, %s" % (sr(sT0), sr(sT0), sr(sT1)))
    I("s_mov_b32 %s, s28" % sr(S_P)); I("s_mov_b32 %s, s29" % sr(S_P + 1))
    srd(S_P, None, None, sT0, 46080)
    I("s_and_b32 %s, %s, 1" % (sr(sT0), sr(sWAVE)))
    I("s_lshl_b32 %s, %s, 8" % (sr(sT0), sr(sT0)))
    I("s_add_u32 %s, %s, %d" % (sr(sT0), sr(sT0), WBUF[0]))
    I("v_lshl_add_u32 %s, %s, 3, %s" % (vr(t1), vr(vg), vr(vrr)))
    I("v_lshlrev_b32 %s, 9, %s" % (vr(t1), vr(t1)))
    I("v_lshl_add_u32 %s, %s, 4, %s" % (vr(t1), vr(vc), vr(t1)))
    I("v_add_u32 %s, %s, %s" % (vr(t1), sr(sT0), vr(t1)))
    for s in range(4):
        I("v_xor_b32 %s, %d, %s" % (vr(t0), s, vr(vrr)))
        I("v_lshl_add_u32 %s, %s, 6, %s" % (vr(vAR + s), vr(t0), vr(t1)))
        I("v_add_u32 %s, %d, %s" % (vr(vAR2 + s), WBUF[2] - WBUF[0], vr(vAR + s)))
    I("s_lshr_b32 %s, %s, 1" % (sr(sT0), sr(sWAVE)))
    I("s_mul_i32 %s, %s, %d" % (sr(sT0), sr(sT0), 80 * 64))
    I("s_add_u32 %s, %s, %d" % (sr(sT0), sr(sT0), XBUF[0]))
    I("v_sub_u32 %s, 0, %s" % (vr(t0), vr(vrr)))
    I("v_and_b32 %s, 3, %s" % (vr(t0), vr(t0)))
    I("v_xor_b32 %s, %s, %s" % (vr(t0), vr(t0), vr(vg)))
    I("v_lshlrev_b32 %s, 4, %s" % (vr(t0), vr(t0)))
    I("v_lshl_add_u32 %s, %s, 6, %s" % (vr(t0), vr(vi), vr(t0)))
    I("v_add_u32 %s, %s, %s" % (vr(vBR), sr(sT0), vr(t0)))
    def ring_addrs():
        for s in range(4):
            I("v_add_u32 %s, %d, %s" % (vr(t0), 4 * s, vr(vg)))
            I("v_xor_b32 %s, %s, %s" % (vr(t0), vr(t0), vr(vi)))
            I("v_lshlrev_b32 %s, 4, %s" % (vr(t0), vr(t0)))
            I("v_lshl_add_u32 %s, %s, 8, %s" % (vr(t0), vr(vi), vr(t0)))
            I("v_add_u32 %s, %s, %s" % (vr(vKR + s), sr(sLW), vr(t0)))
        I("v_lshl_add_u32 %s, %s, 2, %s" % (vr(t1), vr(vg), vr(vrr)))
        I("v_and_b32 %s, 7, %s" % (vr(t2), vr(t1)))
        I("v_lshlrev_b32 %s, 8, %s" % (vr(t1), vr(t1)))
        I("v_lshl_add_u32 %s, %s, 3, %s" % (vr(t1), vr(vc), vr(t1)))
        I("v_add_u32 %s, %s, %s" % (vr(t1), sr(sLW), vr(t1)))
        for T in range(8):
            I("v_xor_b32 %s, %d, %s" % (vr(t0), T, vr(t2)))
            I("v_lshl_add_u32 %s, %s, 5, %s" % (vr(vVR + T), vr(t0), vr(t1)))
    ring_addrs()
    for r in range(180): I("v_accvgpr_write_b32 %s, 0" % ar(r))
    I("v_mov_b32 %s, 0x3f803f80" % vr(t0))
    for r in range(4): I("v_accvgpr_write_b32 %s, %s" % (ar(ONE + r), vr(t0)))
    I("s_mov_b32 %s, 0" % sr(sRETRY))
    stamp(1)
    I("s_waitcnt vmcnt(%d)" % (npf + 14 + 8))
    I("s_barrier")
    stamp(2)
    for T in range(8):
        for s in a_reads(0, T): I(s)
    for j in range(5): I(b_read(0, j))
    I("s_waitcnt lgkmcnt(0)")
    I("s_mov_b32 %s, 0" % sr(sKK))
    E("K1_QLOOP:")
    for u in range(3):
        un = (u + 1) % 3
        mf = []
        for j in range(5):
            for T in range(8):
                mf.append(mfma(vr(qacc(T, j), 4), vr(WF + 4 * T, 4), vr(XF + 4 * j, 4), vr(qacc(T, j), 4)))
        f = {}
        add_fill(f, -1, "s_waitcnt lgkmcnt(11)")
        add_fill(f, 2, "s_waitcnt lgkmcnt(5)")
        add_fill(f, 5, "s_waitcnt lgkmcnt(1)")
        add_fill(f, 0, ["s_add_u32 %s, %s, %d" % (sr(sT2), sr(sKK), u + 3), "s_lshl_b32 %s, %s, 18" % (sr(sWOFF), sr(sT2))])
        add_fill(f, 1, ["s_lshl_b32 %s, %s, 6" % (sr(sXOFF), sr(sT2)), "s_cmp_lt_u32 %s, 18" % sr(sT2)])
        add_fill(f, 2, ["s_cselect_b32 %s, %s, 0x40000000" % (sr(sXOFF), sr(sXOFF))])
        if u < 2:
            lab = "K1_QW%d" % u
            w = ["s_cmp_eq_u32 %s, 0" % sr(sKK), "s_cbranch_scc1 %s_first" % lab, "s_waitcnt vmcnt(7) lgkmcnt(0)", "s_branch %s_go" % lab,
                 "%s_first:" % lab, "s_cmp_eq_u32 %s, 0" % sr(sTYPE), "s_cbranch_scc1 %s_firstA" % lab,
                 "s_waitcnt vmcnt(23) lgkmcnt(0)", "s_branch %s_go" % lab,
                 "%s_firstA:" % lab, "s_waitcnt vmcnt(15) lgkmcnt(0)", "%s_go:" % lab, "s_barrier"]
        else:
            w = ["s_waitcnt vmcnt(7) lgkmcnt(0)", "s_barrier"]
        add_fill(f, 7, w + [b_read(un, 0)])
        for g, d in zip([9, 12, 14, 17, 20, 22, 25], stage_dma(u)): add_fill(f, g, d)
        add_fill(f, 15, b_read(un, 1)); add_fill(f, 23, b_read(un, 2)); add_fill(f, 31, b_read(un, 3))
        for T in range(8): add_fill(f, 32 + T, a_reads(un, T))
        add_fill(f, 39, b_read(un, 4))
        interleave(mf, f)
    I("s_add_u32 %s, %s, 3" % (sr(sKK), sr(sKK)))
    I("s_cmp_lt_u32 %s, 18" % sr(sKK))
    I("s_cbranch_scc1 K1_QLOOP")
    stamp(3)
    I("s_waitcnt vmcnt(0) lgkmcnt(0)")
    I("s_barrier")
    I("s_lshr_b32 %s, %s, 1" % (sr(sT0), sr(sWAVE)))
    I("s_and_b32 %s, %s, 1" % (sr(sT1), sr(sWAVE)))
    I("s_lshl_b32 %s, %s, 14" % (sr(sM3), sr(sT1)))
    I("s_lshl_b32 %s, %s, 13" % (sr(sT2), sr(sT0)))
    I("s_add_u32 %s, %s, %s" % (sr(sM3), sr(sM3), sr(sT2)))
    W3T = 1
    I("s_lshl_b32 %s, %s, 7" % (sr(sT0), sr(sT0)))
    I("s_mulk_i32 %s, 576" % sr(sT1))
    I("v_lshrrev_b32 %s, 2, v0" % vr(t0))
    I("v_add_u32 %s, %s, %s" % (vr(t0), sr(sT0), vr(t0)))
    I("v_mul_u32_u24 %s, 1152, %s" % (vr(t0), vr(t0)))
    I("v_lshl_add_u32 %s, %s, 4, %s" % (vr(t0), vr(vc), vr(t0)))
    I("v_add_u32 %s, %s, %s" % (vr(W3T), sr(sT1), vr(t0)))
    for n in range(1, 4): I("v_add_u32 %s, %d, %s" % (vr(W3T + n), n * (16 * 1152 - 1024), vr(W3T)))
    global vW3D
    vW3D = W3T
    I("s_mov_b32 %s, 0" % sr(sPOFF))
    flat(w3_dma(0, sPOFF))
    I("s_mov_b32 %s, 8192" % sr(sKOFF)); I("s_mov_b32 %s, 8192" % sr(sVOFF))
    I("s_cmp_eq_u32 %s, 0" % sr(sTYPE))
    I("s_cbranch_scc0 K1_B_PATH")
    flat(kv_dma(True, 1, sKOFF, True)); flat(kv_dma(False, 1, sVOFF, True))
    q_epilogue()
    att_prologue_and_loop(True, "A")
    I("s_waitcnt vmcnt(0)")
    I("s_barrier")
    I("s_branch K1_POST")
    E("K1_B_PATH:")
    flat(kv_dma(True, 1, sKOFF, False)); flat(kv_dma(False, 1, sVOFF, False))
    q_epilogue()
    att_prologue_and_loop(False, "B")
    E("K1_POST:")
    for m in pv_group(4): I(m)
    stamp(5)
    I("s_nop 7"); I("s_nop 1")
    lv = [SS + j for j in range(5)]
    for j in range(5): I("v_accvgpr_read_b32 %s, %s" % (vr(lv[j]), ar(LA + 4 * j)))
    I("s_cmp_lg_u32 %s, 0" % sr(sRETRY))
    I("s_cbranch_scc1 K1_NORM")
    I("v_add_f32 %s, %s, %s" % (vr(t1), vr(lv[0]), vr(lv[1])))
    I("v_add_f32 %s, %s, %s" % (vr(t1), vr(t1), vr(lv[2])))
    I("v_add_f32 %s, %s, %s" % (vr(t1), vr(t1), vr(lv[3])))
    I("v_add_f32 %s, %s, %s" % (vr(t1), vr(t1), vr(lv[4])))
    I("v_mov_b32 %s, 0x4e800000" % vr(t2))
    I("v_cmp_nlt_f32 vcc, %s, %s" % (vr(t1), vr(t2)))
    I("s_nop 4")
    I("s_cbranch_vccnz K1_FALLBACK")
    E("K1_NORM:")
    rc = [PK + j for j in range(5)]
    for j in range(5): I("v_rcp_f32 %s, %s" % (vr(rc[j]), vr(lv[j])))
    I("s_nop 0")
    tmpsets = [KF, KF + 8, KF + 16, KF + 24]
    cnt = 0
    for p in range(4):
        for j in range(5):
            tb = tmpsets[cnt % 4]; cnt += 1
            for k in range(4):
                I("v_accvgpr_read_b32 %s, %s" % (vr(tb + k), ar(oacc(2 * p, j) + k)))
                I("v_accvgpr_read_b32 %s, %s" % (vr(tb + 4 + k), ar(oacc(2 * p + 1, j) + k)))
            for k in range(8): I("v_mul_f32 %s, %s, %s" % (vr(tb + k), vr(tb + k), vr(rc[j])))
            ob = OFO + (p * 5 + j) * 4
            for k in range(4): I("v_cvt_pk_bf16_f32 %s, %s, %s" % (vr(ob + k), vr(tb + 2 * k), vr(tb + 2 * k + 1)))
    I("s_waitcnt vmcnt(0)")
    I("s_barrier")
    I("s_mov_b32 %s, 64" % sr(sPOFF))
    flat(w3_dma(1, sPOFF))
    I("s_mul_i32 %s, %s, 20480" % (sr(sT0), sr(sWAVE)))
    I("s_add_u32 %s, %s, %d" % (sr(sT0), sr(sT0), XCH))
    I("v_add_u32 %s, %s, %s" % (vr(t0), sr(sT0), vr(vLANE16)))
    for q in range(20): I("ds_write_b128 %s, %s offset:%d" % (vr(t0), vr(OFO + 4 * q, 4), q * 1024))
    I("s_and_b32 %s, %s, 1" % (sr(sT1), sr(sWAVE)))
    I("v_lshl_add_u32 %s, %s, 2, %s" % (vr(t1), vr(vg), vr(vrr)))
    I("v_lshlrev_b32 %s, 6, %s" % (vr(t1), vr(t1)))
    I("v_lshl_add_u32 %s, %s, 4, %s" % (vr(t1), vr(vc), vr(t1)))
    I("s_lshl_b32 %s, %s, 14" % (sr(sT2), sr(sT1)))
    I("s_lshl_b32 %s, %s, 13" % (sr(sT3), sr(sT1)))
    I("s_add_u32 %s, %s, %s" % (sr(sT3), sr(sT3), sr(sT2)))
    I("s_xor_b32 %s, %s, 8192" % (sr(sT2), sr(sT3)))
    for u in range(3):
        I("v_add_u32 %s, %s, %s" % (vr(vA3 + 2 * u), sr(sT3), vr(t1)))
        I("v_add_u32 %s, %s, %s" % (vr(vA3 + 2 * u + 1), sr(sT2), vr(t1)))
        if W3[u]:
            I("v_add_u32 %s, %d, %s" % (vr(vA3 + 2 * u), W3[u], vr(vA3 + 2 * u)))
            I("v_add_u32 %s, %d, %s" % (vr(vA3 + 2 * u + 1), W3[u], vr(vA3 + 2 * u + 1)))
    I("s_xor_b32 %s, %s, 1" % (sr(sT0), sr(sWAVE)))
    I("s_mul_i32 %s, %s, 20480" % (sr(sT0), sr(sT0)))
    I("s_add_u32 %s, %s, %d" % (sr(sT0), sr(sT0), XCH))
    I("v_add_u32 %s, %s, %s" % (vr(t0), sr(sT0), vr(vLANE16)))
    I("s_waitcnt lgkmcnt(0)")
    I("s_barrier")
    for q in range(10): I("ds_read_b128 %s, %s offset:%d" % (vr(OFP + 4 * q, 4), vr(t0), q * 1024))
    I("s_waitcnt lgkmcnt(5)")
    for q in range(10, 20): I("ds_read_b128 %s, %s offset:%d" % (vr(OFP + 4 * q, 4), vr(t0), q * 1024))
    def a3_reads(u, ct, kl):
        ad = vA3 + 2 * u + (kl >> 2)
        off = (kl & 3) * 2048 + ct * 8
        return ["ds_read_b64_tr_b16 %s, %s offset:%d" % (vr(A3 + 4 * kl, 2), vr(ad), off),
                "ds_read_b64_tr_b16 %s, %s offset:%d" % (vr(A3 + 4 * kl + 2, 2), vr(ad), off + 1024)]
    I("s_waitcnt lgkmcnt(0)")
    for kl in range(8):
        for s in a3_reads(0, 0, kl): I(s)
    I("s_waitcnt lgkmcnt(0)")
    stamp(6)
    I("s_mov_b32 %s, 0" % sr(sKK))
    def bfrag(kl, j): return (OFO if kl < 4 else OFP) + ((kl & 3) * 5 + j) * 4
    def pack_store(par, j):
        tb = PK + (j & 1) * 12
        r = []
        for k in range(4): r.append("v_accvgpr_read_b32 %s, %s" % (vr(tb + k), ar(acc3(par, 0, j) + k)))
        for k in range(4): r.append("v_accvgpr_read_b32 %s, %s" % (vr(tb + 4 + k), ar(acc3(par, 1, j) + k)))
        for k in range(4): r.append("v_cvt_pk_bf16_f32 %s, %s, %s" % (vr(tb + 8 + k), vr(tb + 2 * k), vr(tb + 2 * k + 1)))
        r.append("s_add_u32 %s, %s, %d" % (sr(sT2), sr(sPOFF), j * 1024))
        r.append("buffer_store_dwordx4 %s, %s, %s, %s offen %s" % (vr(tb + 8, 4), vr(vLANE16), sr(S_P, 4), sr(sT2), cfg.st_flag))
        return r
    E("K1_P3LOOP:")
    for u in range(3):
        un = (u + 1) % 3
        for ct in range(2):
            mf = []
            for j in range(5):
                for kl in range(8):
                    d = ar(u * 40 + (ct * 5 + j) * 4, 4)
                    mf.append(mfma(d, vr(A3 + 4 * kl, 4), vr(bfrag(kl, j), 4), d if kl else "0"))
            f = {}
            add_fill(f, -1, "s_waitcnt lgkmcnt(10)")
            add_fill(f, 2, "s_waitcnt lgkmcnt(4)")
            add_fill(f, 5, "s_waitcnt lgkmcnt(0)")
            if ct == 0:
                up = (u + 2) % 3
                pre = []
                if u == 0:
                    pre = ["s_cmp_eq_u32 %s, 0" % sr(sKK), "s_cbranch_scc1 K1_P3_NOST"]
                blk = []
                blk.append("s_add_u32 %s, %s, %d" % (sr(sPOFF), sr(sKK), u - 1 if u else 0) if u else "s_sub_u32 %s, %s, 1" % (sr(sPOFF), sr(sKK)))
                blk.append("s_mulk_i32 %s, 5120" % sr(sPOFF))
                if u == 0:
                    unit = pre + blk
                    for j in range(5):
                        tb = PK + (j & 1) * 12
                        r = []
                        for k in range(4): r.append("v_accvgpr_read_b32 %s, %s" % (vr(tb + k), ar(up * 40 + (0 * 5 + j) * 4 + k)))
                        for k in range(4): r.append("v_accvgpr_read_b32 %s, %s" % (vr(tb + 4 + k), ar(up * 40 + (5 + j) * 4 + k)))
                        for k in range(4): r.append("v_cvt_pk_bf16_f32 %s, %s, %s" % (vr(tb + 8 + k), vr(tb + 2 * k), vr(tb + 2 * k + 1)))
                        r.append("s_add_u32 %s, %s, %d" % (sr(sT2), sr(sPOFF), j * 1024))
                        r.append("buffer_store_dwordx4 %s, %s, %s, %s offen %s" % (vr(tb + 8, 4), vr(vLANE16), sr(S_P, 4), sr(sT2), cfg.st_flag))
                        unit += r
                    unit.append("K1_P3_NOST:")
                    add_fill(f, 8, unit)
                else:
                    add_fill(f, 6, blk)
                    gp = 7
                    for j in range(5):
                        tb = PK + (j & 1) * 12
                        r = []
                        for k in range(4): r.append("v_accvgpr_read_b32 %s, %s" % (vr(tb + k), ar(up * 40 + (0 * 5 + j) * 4 + k)))
                        for k in range(4): r.append("v_accvgpr_read_b32 %s, %s" % (vr(tb + 4 + k), ar(up * 40 + (5 + j) * 4 + k)))
                        for k in range(4): r.append("v_cvt_pk_bf16_f32 %s, %s, %s" % (vr(tb + 8 + k), vr(tb + 2 * k), vr(tb + 2 * k + 1)))
                        for q in range(0, 12, 2):
                            add_fill(f, gp, r[q:q + 2]); gp += 1
                        add_fill(f, gp - 1, ["s_add_u32 %s, %s, %d" % (sr(sT2), sr(sPOFF), j * 1024),
                                 "buffer_store_dwordx4 %s, %s, %s, %s offen %s" % (vr(tb + 8, 4), vr(vLANE16), sr(S_P, 4), sr(sT2), cfg.st_flag)])
                    assert gp <= 38, gp
                for kl in range(8): add_fill(f, 32 + kl, a3_reads(u, 1, kl))
            else:
                if u == 0:
                    w = ["s_cmp_eq_u32 %s, 0" % sr(sKK), "s_cbranch_scc1 K1_P3W0_first", "s_waitcnt vmcnt(18)", "s_barrier", "s_branch K1_P3W0_go",
                         "K1_P3W0_first:", "s_waitcnt vmcnt(0)", "s_barrier", "s_movk_i32 %s, 128" % sr(sT2)]
                    for g in w3_dma(2, sT2): w += g
                    w += ["K1_P3W0_go:"]
                elif u == 1:
                    w = ["s_cmp_eq_u32 %s, 0" % sr(sKK), "s_cbranch_scc1 K1_P3W1_first", "s_waitcnt vmcnt(18)", "s_branch K1_P3W1_go",
                         "K1_P3W1_first:", "s_waitcnt vmcnt(13)", "K1_P3W1_go:", "s_barrier"]
                else:
                    w = ["s_waitcnt vmcnt(18)", "s_barrier"]
                add_fill(f, 7, w)
                add_fill(f, 8, ["s_add_u32 %s, %s, %d" % (sr(sT2), sr(sKK), u + 3), "s_cmp_lt_u32 %s, 9" % sr(sT2), "s_mul_i32 %s, %s, 64" % (sr(sT2), sr(sT2)),
                                ])
                add_fill(f, 9, ["s_add_u32 %s, %s, %d" % (sr(sT0), sr(sKK), u + 3), "s_cmp_lt_u32 %s, 9" % sr(sT0), "s_cselect_b32 %s, %s, 0x40000000" % (sr(sT2), sr(sT2))])
                for g, d in zip([11, 13, 15, 17, 19, 21, 23, 25], w3_dma(u, sT2)): add_fill(f, g, d)
                for kl in range(8): add_fill(f, 32 + kl, a3_reads(un, 0, kl))
            interleave(mf, f)
    I("s_add_u32 %s, %s, 3" % (sr(sKK), sr(sKK)))
    I("s_cmp_lt_u32 %s, 9" % sr(sKK))
    I("s_cbranch_scc1 K1_P3LOOP")
    I("s_nop 7"); I("s_nop 1")
    I("s_mov_b32 %s, %d" % (sr(sPOFF), 8 * 5120))
    for j in range(5):
        tb = PK + (j & 1) * 12
        for k in range(4): I("v_accvgpr_read_b32 %s, %s" % (vr(tb + k), ar(2 * 40 + j * 4 + k)))
        for k in range(4): I("v_accvgpr_read_b32 %s, %s" % (vr(tb + 4 + k), ar(2 * 40 + (5 + j) * 4 + k)))
        for k in range(4): I("v_cvt_pk_bf16_f32 %s, %s, %s" % (vr(tb + 8 + k), vr(tb + 2 * k), vr(tb + 2 * k + 1)))
        I("s_add_u32 %s, %s, %d" % (sr(sT2), sr(sPOFF), j * 1024))
        I("buffer_store_dwordx4 %s, %s, %s, %s offen %s" % (vr(tb + 8, 4), vr(vLANE16), sr(S_P, 4), sr(sT2), cfg.st_flag))
    if cfg.stamps: I("s_waitcnt vmcnt(0)")
    stamp(7)
    stamp_out(8, 28, sUID, STAMP_OFF)
    E("K1_END:")
    I("s_endpgm")
    E("K1_FALLBACK:")
    I("s_waitcnt vmcnt(0) lgkmcnt(0)")
    I("s_lshl_b32 %s, %s, 15" % (sr(sLW), sr(sWAVE)))
    ring_addrs()
    mx = [VF + j for j in range(5)]
    for j in range(5): I("v_mov_b32 %s, 0xff800000" % vr(mx[j]))
    I("s_mov_b32 %s, 0" % sr(sKOFF))
    E("K1_FB_LOOP:")
    flat(kv_dma(True, 0, sKOFF))
    I("s_waitcnt vmcnt(0)")
    for mt in range(2):
        for s in range(4): I(k_read(0, mt, s))
    I("s_waitcnt lgkmcnt(0)")
    for j in range(5):
        for m in qk_group(j, czero=True): I(m)
    I("s_nop 7"); I("s_nop 1")
    for j in range(5):
        b = SS + 8 * j
        for k in range(0, 8, 2): I("v_max3_f32 %s, %s, %s, %s" % (vr(mx[j]), vr(mx[j]), vr(b + k), vr(b + k + 1)))
    I("s_add_u32 %s, %s, 8192" % (sr(sKOFF), sr(sKOFF)))
    I("s_cmp_lt_u32 %s, 131072" % sr(sKOFF))
    I("s_cbranch_scc1 K1_FB_LOOP")
    for j in range(5):
        I("v_mov_b32 %s, %s" % (vr(t0), vr(mx[j])))
        xlane_max(t0, t1)
        for k in range(4): I("v_sub_f32 %s, 0, %s" % (vr(NM + 4 * j + k), vr(t0)))
    for r in range(180): I("v_accvgpr_write_b32 %s, 0" % ar(r))
    I("s_mov_b32 %s, 1" % sr(sRETRY))
    I("s_mov_b32 %s, 0" % sr(sKOFF)); I("s_mov_b32 %s, 0" % sr(sVOFF))
    flat(kv_dma(True, 0, sKOFF)); flat(kv_dma(False, 0, sVOFF))
    I("s_mov_b32 %s, 8192" % sr(sKOFF)); I("s_mov_b32 %s, 8192" % sr(sVOFF))
    flat(kv_dma(True, 1, sKOFF)); flat(kv_dma(False, 1, sVOFF))
    I("s_waitcnt vmcnt(24)")
    for mt in range(2):
        for s in range(4): I(k_read(0, mt, s))
    I("s_branch K1_ATT_COMMON_B")

def gen_k2():
    E(".globl reduce_kernel"); E(".p2align 8"); E(".type reduce_kernel,@function"); E("reduce_kernel:")
    I("s_cmp_ge_u32 s2, 720")
    I("s_cbranch_scc1 K2_END")
    I("s_load_dwordx2 s[8:9], s[0:1], 80")
    I("s_load_dwordx2 s[10:11], s[0:1], 96")
    stamp(0)
    I("v_lshrrev_b32 v1, 6, v0")
    I("v_and_b32 v0, 63, v0")
    I("v_readfirstlane_b32 s12, v1")
    I("s_lshl_b32 s13, s2, 2")
    I("v_lshlrev_b32 v2, 4, v0")
    I("s_add_u32 s13, s13, s12")
    I("s_mov_b32 s78, s13")
    I("s_mul_i32 s14, s13, 46604")
    I("s_lshr_b32 s14, s14, 21")
    for u in range(2880): assert (u * 46604) >> 21 == u // 45
    I("s_mul_i32 s15, s14, 45")
    I("s_sub_u32 s15, s13, s15")
    I("s_lshr_b32 s16, s14, 5")
    I("s_and_b32 s17, s14, 31")
    I("s_mul_i32 s18, s16, %d" % PSTR_TYPE)
    I("s_mul_i32 s19, s17, 46080")
    I("s_add_u32 s18, s18, s19")
    I("s_lshl_b32 s19, s15, 10")
    I("s_add_u32 s18, s18, s19")
    I("s_waitcnt lgkmcnt(0)")
    I("s_add_u32 s20, s10, s18")
    I("s_addc_u32 s21, s11, 0")
    I("s_and_b32 s21, s21, 0xffff")
    I("s_mov_b32 s22, %d" % (15 * PSTR_HP + 1024))
    I("s_mov_b32 s23, 0x20000")
    for hp in range(16):
        I("s_mov_b32 s24, %d" % (hp * PSTR_HP))
        I("buffer_load_dwordx4 %s, v2, s[20:23], s24 offen" % vr(16 + 4 * hp, 4))
    I("s_mul_i32 s25, s15, 13108")
    I("s_lshr_b32 s25, s25, 16")
    for q in range(45): assert (q * 13108) >> 16 == q // 5
    I("s_mul_i32 s26, s25, 5")
    I("s_sub_u32 s26, s15, s26")
    I("s_lshr_b32 s27, s17, 1")
    I("s_and_b32 s28, s17, 1")
    I("s_mul_i32 s29, s27, 80")
    I("s_lshl_b32 s30, s26, 4")
    I("s_add_u32 s29, s29, s30")
    I("v_and_b32 v3, 15, v0")
    I("v_add_u32 v3, s29, v3")
    I("v_mul_u32_u24 v3, 2304, v3")
    I("v_lshrrev_b32 v4, 4, v0")
    I("v_lshl_add_u32 v3, v4, 4, v3")
    I("s_mul_i32 s30, s16, 1152")
    I("s_mul_i32 s31, s28, 576")
    I("s_add_u32 s30, s30, s31")
    I("s_lshl_b32 s31, s25, 6")
    I("s_add_u32 s30, s30, s31")
    I("s_mov_b32 s32, s8")
    I("s_and_b32 s33, s9, 0xffff")
    I("s_mov_b32 s34, %d" % (16 * 80 * 1152 * 2))
    I("s_mov_b32 s35, 0x20000")
    I("s_mov_b32 s36, 0xffff0000")
    for hp in range(16):
        I("s_waitcnt vmcnt(%d)" % (15 - hp))
        for k in range(4):
            src = 16 + 4 * hp + k
            if hp == 0:
                I("v_lshlrev_b32 %s, 16, %s" % (vr(8 + 2 * k), vr(src)))
                I("v_and_b32 %s, s36, %s" % (vr(9 + 2 * k), vr(src)))
            else:
                I("v_lshlrev_b32 v5, 16, %s" % vr(src))
                I("v_and_b32 v6, s36, %s" % vr(src))
                I("v_add_f32 %s, %s, v5" % (vr(8 + 2 * k), vr(8 + 2 * k)))
                I("v_add_f32 %s, %s, v6" % (vr(9 + 2 * k), vr(9 + 2 * k)))
    for k in range(4): I("v_cvt_pk_bf16_f32 %s, %s, %s" % (vr(16 + k), vr(8 + 2 * k), vr(9 + 2 * k)))
    I("buffer_store_dwordx4 v[16:19], v3, s[32:35], s30 offen")
    if cfg.stamps: I("s_waitcnt vmcnt(0)")
    stamp(1)
    stamp_out(2, 10, 78, STAMP_OFF + 0x10000)
    E("K2_END:")
    I("s_endpgm")

def kd(name, nv, ns, acc):
    E(".amdhsa_kernel %s" % name)
    E("  .amdhsa_next_free_vgpr %d" % nv)
    E("  .amdhsa_next_free_sgpr %d" % ns)
    E("  .amdhsa_accum_offset %d" % acc)
    E("  .amdhsa_group_segment_fixed_size 0")
    E("  .amdhsa_kernarg_size 104")
    E("  .amdhsa_user_sgpr_count 2")
    E("  .amdhsa_user_sgpr_kernarg_segment_ptr 1")
    E("  .amdhsa_system_sgpr_workgroup_id_x 1")
    E(".end_amdhsa_kernel")

E("; @launch kernel=attn_kernel grid=(256,1,1) block=(256,1,1) lds=%d" % K1_LDS)
E("; @launch kernel=reduce_kernel grid=(720,1,1) block=(256,1,1) lds=0")
E('.amdgcn_target "amdgcn-amd-amdhsa--gfx950"')
E(".text")
gen_k1()
gen_k2()
E('.section .rodata,"a"')
E(".p2align 6")
kd("attn_kernel", 512, 102, 256)
E(".p2align 6")
kd("reduce_kernel", 80, 102, 80)
print("\n".join(L))
```

```python
import sys, math, struct

class Cfg:
    nt_kv = 1
    stamps = 0
    pf_q = 0
    pf_d = 6
    pf_wo = 0
    st_flag = ""
    wo_step = 12
    rot = 1
    capA = 0
    capB = 0
    idle_per = 3
    pf_b = 0
    warm_k = 11
    capI = 6
    mid = 0
    p3_split = 11
    q_lo = 15
    q_hi = 39
    q_bud = 2
    trace = 0
    krot = 1
    x_nodma = 0
    x_nocomp = 0
    q_nodma = 0
    q_now = 0
    q_nox = 0
    q_nocomp = 0
    q_nopf = 0
    p_nodma = 0
    p_nocomp = 0
    p_nost = 0
    x_nods = 0
cfg = Cfg()
for a in sys.argv[1:]:
    if "=" in a:
        k, v = a.split("=")
        setattr(cfg, k, int(v) if isinstance(getattr(cfg, k), int) else v)

L = []
def E(s=""): L.append(s)
def I(s):
    if s.endswith(":"): L.append(s)
    else: L.append("  " + s)
def vr(b, n=1): return "v%d" % b if n == 1 else "v[%d:%d]" % (b, b + n - 1)
def ar(b, n=1): return "a%d" % b if n == 1 else "a[%d:%d]" % (b, b + n - 1)
def sr(b, n=1): return "s%d" % b if n == 1 else "s[%d:%d]" % (b, b + n - 1)
MFMA = "v_mfma_f32_16x16x32_bf16"
def mfma(d, a, b, c): return "%s %s, %s, %s, %s" % (MFMA, d, a, b, c)
def f32bits(x): return struct.unpack("<I", struct.pack("<f", x))[0]

def stamp(k):
    if cfg.stamps:
        I("%s s[%d:%d]" % ("s_memrealtime" if cfg.stamps == 1 else "s_memtime", 80 + 2 * k, 81 + 2 * k))
def stamp_out(n, wsreg, idreg, off):
    if cfg.stamps:
        I("s_waitcnt lgkmcnt(0)")
        I("s_lshl_b32 s98, %s, 5" % sr(idreg))
        I("s_add_u32 s98, s98, 0x%x" % off)
        for k in range(8):
            I("v_mov_b32 v%d, %s" % (8 + k, ("s%d" % (80 + 2 * k)) if k < n else "0"))
        I("v_mov_b32 v16, s98")
        I("global_store_dwordx4 v16, v[8:11], %s" % sr(wsreg, 2))
        I("global_store_dwordx4 v16, v[12:15], %s offset:16" % sr(wsreg, 2))

XMODE = [False]
def keep(s):
    m = XMODE[0]
    if not m: return True
    isdma = s.startswith("buffer_load_dwordx4") and s.endswith("lds")
    iscomp = s.startswith("v_mfma") or s.startswith("v_exp") or s.startswith("v_cvt") or s.startswith("ds_read") or s.startswith("v_accvgpr")
    if m == "x":
        if cfg.x_nodma and isdma: return False
        if cfg.x_nocomp and iscomp: return False
        if cfg.x_nods and s.startswith("ds_read"): return False
    if m == "q":
        if cfg.q_nodma and isdma: return False
        if cfg.q_now and isdma and "s[40:43]" in s: return False
        if cfg.q_nox and isdma and "s[44:47]" in s: return False
        if cfg.q_nocomp and iscomp: return False
        if cfg.q_nopf and s.startswith("buffer_load_dword "): return False
    if m == "p":
        if cfg.p_nodma and isdma: return False
        if cfg.p_nocomp and iscomp: return False
        if cfg.p_nost and s.startswith("buffer_store"): return False
    return True
def trace_pt(idx_lines):
    if not cfg.trace: return []
    return ["s_memtime s[6:7]", "s_waitcnt lgkmcnt(0)"] + idx_lines + ["v_mov_b32 v6, s6", "v_cmp_eq_u32 vcc, s4, v0", "s_nop 1", "v_cndmask_b32 v7, v7, v6, vcc"]
def interleave(mf, fills):
    for s in fills.get(-1, []):
        if keep(s): I(s)
    for i, m in enumerate(mf):
        if keep(m): I(m)
        for s in fills.get(i, []):
            if keep(s): I(s)
class Fill:
    def __init__(self, n):
        self.n = n; self.f = {}; self.load = {}
    @staticmethod
    def cost(ins):
        c = 0
        for x in ins:
            if x.endswith(":"): continue
            c += 2 if x.startswith("v_exp") or x.startswith("v_rcp") else 1
        return c
    def put(self, g, ins):
        ins = ins if isinstance(ins, list) else [ins]
        self.f.setdefault(g, []).extend(ins); self.load[g] = self.load.get(g, 0) + self.cost(ins)
    def flow(self, items, lo, hi, budget=2, spread=True):
        items = [x if isinstance(x, list) else [x] for x in items]
        n = len(items); g = lo
        for i, it in enumerate(items):
            tgt = lo + (i * (hi - lo + 1)) // n if spread else lo
            g = max(g, tgt)
            c = self.cost(it)
            while g <= hi and self.load.get(g, 0) + c > max(budget, c): g += 1
            if g > hi:
                g = hi
            self.put(g, it)
def atomize(lst):
    out = []
    for x in lst:
        if out and isinstance(out[-1], list) and out[-1][0].startswith("s_cmp") and x.startswith("s_cselect"):
            out[-1].append(x)
        elif x.startswith("s_cmp"):
            out.append([x])
        else:
            out.append(x)
    return out
def add_fill(f, gap, ins):
    f.setdefault(gap, []).extend(ins if isinstance(ins, list) else [ins])
def flat(groups):
    for g in groups:
        for s in g: I(s)

QSCALE = math.log2(math.e) / math.sqrt(128.0)
NTS = "nt " if cfg.nt_kv else ""
PSTR_HP = 16 * 2 * 46080
PSTR_TYPE = 16 * PSTR_HP
STAMP_OFF = 0x4000000

S_K, S_V, S_W, S_X, S_O, S_P = 32, 36, 40, 44, 48, 52
sWAVE, sTYPE, sHP, sHI, sB, sH = 56, 57, 58, 59, 60, 61
sLW = 62
sT0, sT1, sT2, sT3 = 64, 65, 66, 67
sKK = 68
sWOFF, sXOFF = 69, 70
sPW, sPX = 71, 72
sVOFF, sKOFF = 73, 74
sRETRY = 5
sHALF = 76
sM3 = 77
sUID = 78
sPOFF = 79
sROT = 96
sTI = 97
sKQ = 75
sQOFF = 3
sCOFF = 98
sMW = [99, 100, 101]
sMX = [30, 31, 63]
QF, SS, PP, KF, VF, NM = 16, 96, 136, 144, 176, 208
vKR, vVR, vKD, vVD = 228, 232, 246, 250
vWD, vXD = 246, 250
vK0 = 255
vAR = 228
vBR = 240
vLANE16 = 254
vPF = 8
vPW2 = 7
vg, vi, vrr, vc = 9, 10, 11, 12
t0, t1, t2 = 13, 14, 15
QACC, WF, XF = 16, 176, 208
OA, LA, ONE = 0, 160, 180
def oacc(T, j): return OA + (j * 8 + T) * 4
def qacc(T, j): return QACC + (j * 8 + T) * 4
WQB = [[(u * 2 + t) * 16384 for t in range(2)] for u in range(3)]
XB_ = [[98304 + (u * 2 + t) * 10240 for t in range(2)] for u in range(3)]
assert XB_[2][1] + 10240 <= 163840
K1_LDS = 163840
FBW1 = 65536
P3B = [[65536, 131072], [0, 32768]]
K0A = 184
OFO, OFP = 16, 96
A3 = 176
vA3 = 232
vW3D = 1
PK = 208

def dma(voff, srd, soff, imm, nt=""):
    assert 0 <= imm < 4096
    return "buffer_load_dwordx4 %s, %s, %s offen offset:%d %slds" % (vr(voff), sr(srd, 4), soff, imm, nt)

def stage_dma(u):
    r = []
    for n in range(8):
        pre = []
        if n == 0: pre = ["s_mov_b32 m0, %s" % sr(sMW[u]), "s_nop 0"]
        if n == 4: pre = ["s_add_u32 m0, %s, 4096" % sr(sMW[u]), "s_add_u32 %s, %s, 65536" % (sr(sT3), sr(sWOFF))]
        r.append(pre + [dma(vWD + (n & 3), S_W, sr(sWOFF) if n < 4 else sr(sT3), (n & 3) * 1024)])
    return r
def x_dma(ub):
    r = [["s_mov_b32 m0, %s" % sr(sMX[ub]), "s_nop 0", dma(vXD + 0, S_X, sr(sXOFF), 0)]]
    for n in range(1, 4): r.append([dma(vXD + n, S_X, sr(sXOFF), n * 1024)])
    r.append(["s_add_u32 m0, %s, 4096" % sr(sMX[ub]), "s_add_u32 %s, %s, %d" % (sr(sT3), sr(sXOFF), 32 * 1152), dma(vXD + 0, S_X, sr(sT3), 0)])
    return r
def q_offs_imm(t):
    return ["s_add_u32 %s, %s, %d" % (sr(sT2), sr(sQOFF), t), "s_sub_u32 %s, %s, 18" % (sr(sT3), sr(sT2)), "s_cmp_ge_u32 %s, 18" % sr(sT2),
            "s_cselect_b32 %s, %s, %s" % (sr(sT2), sr(sT3), sr(sT2)), "s_lshl_b32 %s, %s, 18" % (sr(sWOFF), sr(sT2)), "s_lshl_b32 %s, %s, 6" % (sr(sXOFF), sr(sT2))]
def pf_loads():
    return [["buffer_load_dword %s, %s, %s, %s offen" % (vr(vPF), vr(vPW), sr(S_W, 4), sr(sPW))],
            ["buffer_load_dword %s, %s, %s, %s offen" % (vr(vPF), vr(vPX), sr(S_X, 4), sr(sPX))]]

def kv_dma(is_k, slot_par, soff, shared=False, cap=0, lw=None, srdk=None, srdv=None, half=None):
    base = slot_par * 16384 + (0 if is_k else 8192)
    srd = (srdk or S_K) if is_k else (srdv or S_V)
    lw = lw if lw is not None else sr(sLW)
    half = half if half is not None else sr(sHALF)
    tmp = sT0 if is_k else sT1
    thr = ["s_waitcnt vmcnt(%d)" % (cap - 1)] if cap else []
    r = []
    if shared:
        for n in range(4):
            pre = []
            if n == 0:
                pre = ["s_add_u32 %s, %s, %s" % (sr(tmp), lw, half), "s_add_u32 m0, %s, %d" % (sr(tmp), base),
                       "s_add_u32 %s, %s, %s" % (sr(tmp), sr(soff), half)]
            vo = (vKD + n) if is_k else (vVD + (n & 1))
            r.append(pre + thr + [dma(vo, srd, sr(tmp), n * 1024, NTS)])
        return r
    for n in range(8):
        pre = []
        if n == 0: pre = ["s_add_u32 m0, %s, %d" % (lw, base), "s_nop 0"]
        if n == 4: pre = ["s_add_u32 m0, %s, %d" % (lw, base + 4096), "s_add_u32 %s, %s, 4096" % (sr(tmp), sr(soff))]
        vo = (vKD + (n & 3)) if is_k else (vVD + (n & 1))
        so = sr(soff) if n < 4 else sr(tmp)
        r.append(pre + thr + [dma(vo, srd, so, (n & 3) * 1024, NTS)])
    return r

def tile_off(dst, idx):
    I("s_add_u32 %s, %s, %d" % (sr(dst), sr(sROT), idx))
    I("s_and_b32 %s, %s, 15" % (sr(dst), sr(dst)))
    I("s_lshl_b32 %s, %s, 13" % (sr(dst), sr(dst)))
def next_offs():
    r = []
    r.append(["s_add_u32 %s, %s, 1" % (sr(sTI), sr(sTI)), "s_add_u32 %s, %s, %s" % (sr(sT2), sr(sTI), sr(sROT))])
    r.append(["s_add_u32 %s, %s, 2" % (sr(sVOFF), sr(sT2)), "s_and_b32 %s, %s, 15" % (sr(sVOFF), sr(sVOFF))])
    r.append(["s_lshl_b32 %s, %s, 13" % (sr(sVOFF), sr(sVOFF)), "s_cmp_lt_u32 %s, 14" % sr(sTI), "s_cselect_b32 %s, %s, 0x40000000" % (sr(sVOFF), sr(sVOFF))])
    r.append(["s_add_u32 %s, %s, 3" % (sr(sKOFF), sr(sT2)), "s_and_b32 %s, %s, 15" % (sr(sKOFF), sr(sKOFF))])
    r.append(["s_lshl_b32 %s, %s, 13" % (sr(sKOFF), sr(sKOFF)), "s_cmp_lt_u32 %s, 13" % sr(sTI), "s_cselect_b32 %s, %s, 0x40000000" % (sr(sKOFF), sr(sKOFF))])
    return r

def a_reads(u, T):
    ad, off = vAR + 4 * u + (T >> 1), (T & 1) * 8
    return ["ds_read_b64_tr_b16 %s, %s offset:%d" % (vr(WF + 4 * T, 2), vr(ad), off),
            "ds_read_b64_tr_b16 %s, %s offset:%d" % (vr(WF + 4 * T + 2, 2), vr(ad), off + 2048)]
def b_read(kk, j):
    return "ds_read_b128 %s, %s offset:%d" % (vr(XF + 4 * j, 4), vr(vBR + ((kk >> 1) % 3) * 2 + (kk & 1)), j * 2048)
def k_read(par, mt, s):
    return "ds_read_b128 %s, %s offset:%d" % (vr(KF + (mt * 4 + s) * 4, 4), vr(vKR + s), par * 16384 + mt * 4096)
def v_reads(par, T):
    off = 8192 + par * 16384
    return ["ds_read_b64_tr_b16 %s, %s offset:%d" % (vr(VF + 4 * T, 2), vr(vVR + T), off),
            "ds_read_b64_tr_b16 %s, %s offset:%d" % (vr(VF + 4 * T + 2, 2), vr(vVR + T), off + 4096)]
def qk_group(j, czero=False):
    r = []
    for mt in range(2):
        for s in range(4):
            d = vr(SS + 8 * j + 4 * mt, 4)
            c = d if s else ("0" if czero else vr(NM + 4 * j, 4))
            r.append(mfma(d, vr(KF + (mt * 4 + s) * 4, 4), vr(QF + (j * 4 + s) * 4, 4), c))
    return r
def pv_group(j):
    p = vr(PP + 4 * (j & 1), 4)
    r = [mfma(ar(oacc(T, j), 4), vr(VF + 4 * T, 4), p, ar(oacc(T, j), 4)) for T in range(8)]
    r.append(mfma(ar(LA + 4 * j, 4), ar(ONE, 4), p, ar(LA + 4 * j, 4)))
    return r
def exps(j): return ["v_exp_f32 %s, %s" % (vr(SS + 8 * j + k), vr(SS + 8 * j + k)) for k in range(8)]
def cvts(j): return ["v_cvt_pk_bf16_f32 %s, %s, %s" % (vr(PP + 4 * (j & 1) + k), vr(SS + 8 * j + 2 * k), vr(SS + 8 * j + 2 * k + 1)) for k in range(4)]

LBL = [0]
def barrier_seq(bar):
    if bar == "cond":
        LBL[0] += 1
        l = "K1_CB%d" % LBL[0]
        return ["s_cmp_lt_u32 %s, 8" % sr(sTI), "s_cbranch_scc0 %s" % l, "s_barrier", "%s:" % l]
    return ["s_barrier"] if bar else []

def att_step(e, shared, bar):
    mf = pv_group(4) + qk_group(3)
    f = {}
    if shared: add_fill(f, -1, ["s_waitcnt vmcnt(8)", "s_barrier"])
    else: add_fill(f, -1, ["s_waitcnt vmcnt(24)"] + barrier_seq(bar))
    add_fill(f, -1, trace_pt(["s_add_u32 s4, %s, 20" % sr(sTI)]))
    for T in range(8): add_fill(f, T, v_reads(e, T))
    ex, cv = exps(0), cvts(0)
    for k in range(8): add_fill(f, 8 + k, ex[k])
    add_fill(f, 11, cv[0]); add_fill(f, 13, cv[1]); add_fill(f, 15, cv[2]); add_fill(f, 16, ["s_nop 0", cv[3]])
    interleave(mf, f)
    mf = qk_group(4) + pv_group(0)
    f = {}
    if not shared: add_fill(f, -1, "s_waitcnt vmcnt(16)")
    for mt in range(2):
        for s in range(4): add_fill(f, mt * 4 + s, k_read(1 - e, mt, s))
    add_fill(f, 7, "s_waitcnt lgkmcnt(8)")
    ex, cv = exps(1), cvts(1)
    for k in range(4): add_fill(f, 2 * k, ex[k])
    for k in range(4): add_fill(f, 8 + 2 * k, ex[4 + k])
    add_fill(f, 5, cv[0]); add_fill(f, 9, cv[1]); add_fill(f, 13, cv[2]); add_fill(f, 16, cv[3])
    cap = cfg.capA if shared else cfg.capB
    vd = kv_dma(False, e, sVOFF, shared, cap)
    kd = kv_dma(True, 1 - e, sKOFF, shared, cap)
    if not shared:
        add_fill(f, 11, vd[0]); add_fill(f, 13, vd[1]); add_fill(f, 15, vd[2])
    interleave(mf, f)
    def plain_sb(j, dmas, pre=None):
        mf = qk_group((j - 2) % 5) + pv_group(j - 1)
        f = {}
        if pre: add_fill(f, -1, pre)
        ex, cv = exps(j), cvts(j)
        for k in range(8): add_fill(f, 2 * k, ex[k])
        add_fill(f, 3, cv[0]); add_fill(f, 7, cv[1]); add_fill(f, 11, cv[2]); add_fill(f, 15, cv[3])
        for g, d in zip([1, 5, 9, 13, 16], dmas): add_fill(f, g, d)
        interleave(mf, f)
    no = next_offs()
    if shared:
        plain_sb(2, vd[0:4], ["s_waitcnt lgkmcnt(0)", "s_barrier"])
        plain_sb(3, kd[0:4])
        plain_sb(4, no)
    else:
        plain_sb(2, vd[3:8], ["s_waitcnt lgkmcnt(0)"] + barrier_seq(bar))
        plain_sb(3, kd[0:4])
        plain_sb(4, kd[4:8] + [no[0] + no[1] + no[2] + no[3] + no[4]])

def xlane_max(x, y):
    I("v_mov_b32 %s, %s" % (vr(y), vr(x)))
    I("s_nop 1")
    I("v_permlane32_swap_b32 %s, %s" % (vr(x), vr(y)))
    I("s_nop 1")
    I("v_max_f32 %s, %s, %s" % (vr(x), vr(x), vr(y)))
    I("v_mov_b32 %s, %s" % (vr(y), vr(x)))
    I("s_nop 1")
    I("v_permlane16_swap_b32 %s, %s" % (vr(x), vr(y)))
    I("s_nop 1")
    I("v_max_f32 %s, %s, %s" % (vr(x), vr(x), vr(y)))

def srd(S, lo, hi, off_sreg, nrec):
    if off_sreg is not None:
        I("s_add_u32 %s, %s, %s" % (sr(S), sr(S), sr(off_sreg)))
        I("s_addc_u32 %s, %s, 0" % (sr(S + 1), sr(S + 1)))
    I("s_and_b32 %s, %s, 0xffff" % (sr(S + 1), sr(S + 1)))
    if nrec is not None:
        I("s_mov_b32 %s, %d" % (sr(S + 2), nrec))
    I("s_mov_b32 %s, 0x20000" % sr(S + 3))

def q_epilogue():
    I("s_mov_b32 %s, 0x%08x" % (sr(sT2), f32bits(QSCALE)))
    I("s_mov_b32 %s, %s" % (sr(sT3), sr(sT2)))
    for j in range(5):
        for s in range(4):
            src = qacc(2 * s, j)
            for k in range(0, 8, 2):
                I("v_pk_mul_f32 %s, %s, %s" % (vr(src + k, 2), vr(src + k, 2), sr(sT2, 2)))
            dst = QF + (j * 4 + s) * 4
            for k in range(4):
                I("v_cvt_pk_bf16_f32 %s, %s, %s" % (vr(dst + k), vr(src + 2 * k), vr(src + 2 * k + 1)))

def att_prologue_and_loop(shared, tag, bar):
    E("K1_ATT_COMMON_%s:" % tag)
    I("s_waitcnt lgkmcnt(0)")
    if bar: I("s_barrier")
    tile_off(sKOFF, 2)
    flat(kv_dma(True, 0, sKOFF, shared))
    tile_off(sVOFF, 2)
    tile_off(sKOFF, 3)
    I("s_mov_b32 %s, 0" % sr(sTI))
    for j in range(5):
        for m in qk_group(j, czero=True): I(m)
    I("s_nop 7"); I("s_nop 1")
    if not bar:
        I("s_cmp_lg_u32 %s, 0" % sr(sRETRY))
        I("s_cbranch_scc1 K1_HAVE_MAX_%s" % tag)
    for j in range(5):
        b = SS + 8 * j
        I("v_max3_f32 %s, %s, %s, %s" % (vr(t0), vr(b), vr(b + 1), vr(b + 2)))
        I("v_max3_f32 %s, %s, %s, %s" % (vr(t0), vr(t0), vr(b + 3), vr(b + 4)))
        I("v_max3_f32 %s, %s, %s, %s" % (vr(t0), vr(t0), vr(b + 5), vr(b + 6)))
        I("v_max_f32 %s, %s, %s" % (vr(t0), vr(t0), vr(b + 7)))
        xlane_max(t0, t1)
        for k in range(4): I("v_sub_f32 %s, 0, %s" % (vr(NM + 4 * j + k), vr(t0)))
    E("K1_HAVE_MAX_%s:" % tag)
    for j in range(3):
        for k in range(8):
            I("v_add_f32 %s, %s, %s" % (vr(SS + 8 * j + k), vr(SS + 8 * j + k), vr(NM + 4 * j)))
    for k in range(4): I("v_mov_b32 %s, 0" % vr(PP + k))
    for k in range(32): I("v_mov_b32 %s, 0" % vr(VF + k))
    I("s_mov_b32 %s, 0" % sr(sKK))
    stamp(4)
    E("K1_ALOOP_%s:" % tag)
    if cfg.mid and cfg.stamps:
        I("s_cmp_lg_u32 %s, 8" % sr(sKK))
        I("s_cbranch_scc1 K1_MID_%s" % tag)
        stamp(1)
        E("K1_MID_%s:" % tag)
    XMODE[0] = 'x'
    att_step(0, shared, bar)
    att_step(1, shared, bar)
    XMODE[0] = False
    I("s_add_u32 %s, %s, 2" % (sr(sKK), sr(sKK)))
    I("s_cmp_lt_u32 %s, 16" % sr(sKK))
    I("s_cbranch_scc1 K1_ALOOP_%s" % tag)

def w3_dma(bufreg, soffreg):
    r = []
    for n in range(16):
        pre = []
        q = n >> 2
        if n & 3 == 0:
            pre = ["s_add_u32 m0, %s, %d" % (sr(bufreg), q * 4096)]
            if q: pre += ["s_add_u32 %s, %s, %d" % (sr(sT3), sr(soffreg), q * 32 * 1152)]
            else: pre += ["s_nop 0"]
        so = sr(soffreg) if q == 0 else sr(sT3)
        r.append(pre + [dma(vW3D + (n & 3), S_O, so, (n & 3) * 1024)])
    return r

def wrap9(reg):
    return ["s_add_u32 %s, %s, %s" % (sr(reg), sr(reg), sr(sCOFF)), "s_sub_u32 %s, %s, 9" % (sr(sT1), sr(reg)), "s_cmp_ge_u32 %s, 9" % sr(reg),
            "s_cselect_b32 %s, %s, %s" % (sr(reg), sr(sT1), sr(reg))]

def ring_addrs():
    for s_ in range(4):
        I("v_add_u32 %s, %d, %s" % (vr(t0), 4 * s_, vr(vg)))
        I("v_xor_b32 %s, %s, %s" % (vr(t0), vr(t0), vr(vi)))
        I("v_lshlrev_b32 %s, 4, %s" % (vr(t0), vr(t0)))
        I("v_lshl_add_u32 %s, %s, 8, %s" % (vr(t0), vr(vi), vr(t0)))
        I("v_add_u32 %s, %s, %s" % (vr(vKR + s_), sr(sLW), vr(t0)))
    I("v_lshl_add_u32 %s, %s, 2, %s" % (vr(t1), vr(vg), vr(vrr)))
    I("v_and_b32 %s, 7, %s" % (vr(t2), vr(t1)))
    I("v_lshlrev_b32 %s, 8, %s" % (vr(t1), vr(t1)))
    I("v_lshl_add_u32 %s, %s, 3, %s" % (vr(t1), vr(vc), vr(t1)))
    I("v_add_u32 %s, %s, %s" % (vr(t1), sr(sLW), vr(t1)))
    for T in range(8):
        I("v_xor_b32 %s, %d, %s" % (vr(t0), T, vr(t2)))
        I("v_lshl_add_u32 %s, %s, 5, %s" % (vr(vVR + T), vr(t0), vr(t1)))

sXOWN = 70
sT2X = 69
sBUF0, sBUF1 = 71, 72

def gen_k1():
    E(".globl attn_kernel"); E(".p2align 8"); E(".type attn_kernel,@function"); E("attn_kernel:")
    I("s_cmp_ge_u32 s2, 256")
    I("s_cbranch_scc1 K1_END")
    I("s_load_dwordx16 s[4:19], s[0:1], 0")
    I("s_load_dwordx8 s[20:27], s[0:1], 64")
    I("s_load_dwordx2 s[28:29], s[0:1], 96")
    stamp(0)
    I("v_lshrrev_b32 v1, 6, v0")
    I("v_and_b32 v0, 63, v0")
    I("v_readfirstlane_b32 %s, v1" % sr(sWAVE))
    if cfg.trace:
        I("s_memtime s[30:31]"); I("v_mov_b32 v7, 0"); I("s_waitcnt lgkmcnt(0)"); I("v_writelane_b32 v7, s30, 63")
    I("s_and_b32 %s, s2, 7" % sr(sT0))
    I("s_lshr_b32 %s, s2, 3" % sr(sT1))
    I("s_and_b32 %s, %s, 1" % (sr(sB), sr(sT0)))
    I("s_lshl_b32 %s, %s, 3" % (sr(sB), sr(sB)))
    I("s_and_b32 %s, %s, 7" % (sr(sT2), sr(sT1)))
    I("s_add_u32 %s, %s, %s" % (sr(sB), sr(sB), sr(sT2)))
    I("s_lshr_b32 %s, %s, 1" % (sr(sHP), sr(sT0)))
    I("s_lshl_b32 %s, %s, 2" % (sr(sHP), sr(sHP)))
    I("s_lshr_b32 %s, %s, 3" % (sr(sT2), sr(sT1)))
    I("s_add_u32 %s, %s, %s" % (sr(sHP), sr(sHP), sr(sT2)))
    I("s_and_b32 %s, %s, 7" % (sr(sCOFF), sr(sB)))
    I("s_and_b32 %s, %s, 3" % (sr(sT2), sr(sHP)))
    I("s_mul_i32 %s, %s, 6" % (sr(sT2), sr(sT2)))
    I("s_lshl_b32 %s, %s, 1" % (sr(sQOFF), sr(sCOFF)))
    I("s_add_u32 %s, %s, %s" % (sr(sQOFF), sr(sQOFF), sr(sT2)))
    I("s_sub_u32 %s, %s, 18" % (sr(sT2), sr(sQOFF)))
    I("s_cmp_ge_u32 %s, 18" % sr(sQOFF))
    I("s_cselect_b32 %s, %s, %s" % (sr(sQOFF), sr(sT2), sr(sQOFF)))
    if not cfg.krot:
        I("s_mov_b32 %s, 0" % sr(sQOFF)); I("s_mov_b32 %s, 0" % sr(sCOFF))
    I("v_lshrrev_b32 %s, 4, v0" % vr(vg))
    I("v_and_b32 %s, 15, v0" % vr(vi))
    I("s_lshr_b32 %s, %s, 1" % (sr(sTYPE), sr(sWAVE)))
    I("s_and_b32 %s, %s, 1" % (sr(sHI), sr(sWAVE)))
    I("s_lshl_b32 %s, %s, 1" % (sr(sH), sr(sHP)))
    I("s_add_u32 %s, %s, %s" % (sr(sH), sr(sH), sr(sHI)))
    I("s_lshl_b32 %s, %s, 12" % (sr(sHALF), sr(sHI)))
    I("s_lshl_b32 %s, s2, 2" % sr(sUID))
    I("s_add_u32 %s, %s, %s" % (sr(sUID), sr(sUID), sr(sWAVE)))
    I("s_mov_b32 %s, 0" % sr(sLW))
    I("s_cmp_eq_u32 %s, 2" % sr(sWAVE))
    I("s_cselect_b32 %s, 98304, %s" % (sr(sLW), sr(sLW)))
    I("s_cmp_eq_u32 %s, 3" % sr(sWAVE))
    I("s_cselect_b32 %s, 32768, %s" % (sr(sLW), sr(sLW)))
    I("s_lshl_b32 %s, %s, 13" % (sr(sT0), sr(sHI)))
    I("s_mul_i32 %s, %s, 2560" % (sr(sT1), sr(sHI)))
    I("s_mul_i32 %s, %s, 5120" % (sr(sT1), sr(sHI)))
    I("s_lshl_b32 %s, %s, 14" % (sr(sT2), sr(sTYPE)))
    I("s_add_u32 %s, %s, %s" % (sr(sT0), sr(sT0), sr(sT2)))
    for u in range(3): I("s_add_u32 %s, %s, %d" % (sr(sMW[u]), sr(sT0), WQB[u][0]))
    I("s_mul_i32 %s, %s, 10240" % (sr(sT2), sr(sTYPE)))
    I("s_add_u32 %s, %s, %s" % (sr(sT1), sr(sT1), sr(sT2)))
    for u in range(3): I("s_add_u32 %s, %s, %d" % (sr(sMX[u]), sr(sT1), XB_[u][0]))
    I("v_lshrrev_b32 %s, 2, %s" % (vr(vrr), vr(vi)))
    I("v_and_b32 %s, 3, %s" % (vr(vc), vr(vi)))
    I("v_lshlrev_b32 %s, 4, v0" % vr(vLANE16))
    I("v_lshrrev_b32 %s, 5, v0" % vr(t1))
    I("v_and_b32 %s, 31, v0" % vr(t2))
    I("s_lshl_b32 %s, %s, 4" % (sr(sT0), sr(sHI)))
    for n in range(4):
        I("v_add_u32 %s, %d, %s" % (vr(t0), (2 * n) & 3, vr(t1)))
        I("v_lshlrev_b32 %s, 2, %s" % (vr(t0), vr(t0)))
        I("v_xor_b32 %s, %s, %s" % (vr(t0), vr(t0), vr(t2)))
        I("v_lshlrev_b32 %s, 4, %s" % (vr(t0), vr(t0)))
        I("v_add_u32 %s, %s, %s" % (vr(vWD + n), sr(sT0), vr(t1)))
        I("v_add_u32 %s, %d, %s" % (vr(vWD + n), 2 * n, vr(vWD + n)))
        I("v_lshl_add_u32 %s, %s, 13, %s" % (vr(vWD + n), vr(vWD + n), vr(t0)))
        if n: I("v_subrev_u32 %s, %d, %s" % (vr(vWD + n), n * 1024, vr(vWD + n)))
    I("v_lshrrev_b32 %s, 3, v0" % vr(t1))
    I("s_mul_i32 %s, %s, 40" % (sr(sT0), sr(sHI)))
    I("v_add_u32 %s, %s, %s" % (vr(t1), sr(sT0), vr(t1)))
    I("v_mul_u32_u24 %s, 1152, %s" % (vr(t1), vr(t1)))
    I("s_lshl_b32 %s, %s, 2" % (sr(sT0), sr(sHI)))
    for n in range(4):
        I("v_add_u32 %s, %s, %s" % (vr(t0), sr(sT0), vr(vg)))
        if n: I("v_add_u32 %s, %d, %s" % (vr(t0), 4 * n, vr(t0)))
        I("v_and_b32 %s, 7, %s" % (vr(t0), vr(t0)))
        I("v_and_b32 %s, 7, v0" % vr(t2))
        I("v_xor_b32 %s, %s, %s" % (vr(t0), vr(t0), vr(t2)))
        I("v_lshl_add_u32 %s, %s, 4, %s" % (vr(vXD + n), vr(t0), vr(t1)))
        if n: I("v_add_u32 %s, %d, %s" % (vr(vXD + n), n * (8 * 1152 - 1024), vr(vXD + n)))
    I("s_waitcnt lgkmcnt(0)")
    I("s_cmp_eq_u32 %s, 0" % sr(sTYPE))
    for S, a_, b_ in ((S_X, 4, 14), (S_K, 6, 16), (S_V, 8, 18), (S_W, 10, 20), (S_O, 12, 22)):
        I("s_cselect_b32 %s, s%d, s%d" % (sr(S), a_, b_))
        I("s_cselect_b32 %s, s%d, s%d" % (sr(S + 1), a_ + 1, b_ + 1))
    for x in trace_pt(["s_mov_b32 s4, 50"]): I(x)
    I("s_lshl_b32 %s, %s, 9" % (sr(sT0), sr(sHP)))
    I("s_sub_u32 %s, %d, %s" % (sr(S_W + 2), 576 * 8192, sr(sT0)))
    srd(S_W, None, None, sT0, None)
    I("s_mul_i32 %s, %s, %d" % (sr(sT0), sr(sB), 80 * 1152))
    I("s_sub_u32 %s, %d, %s" % (sr(S_X + 2), 1280 * 1152, sr(sT0)))
    srd(S_X, None, None, sT0, None)
    def q_start():
        pass
    npf = 0; npro = 0
    if cfg.pf_q:
        I("s_and_b32 %s, %s, 7" % (sr(sT0), sr(sB)))
        I("s_lshl_b32 %s, %s, 2" % (sr(sT0), sr(sT0)))
        I("s_lshl_b32 %s, %s, 1" % (sr(sT1), sr(sHI)))
        I("s_add_u32 %s, %s, %s" % (sr(sT0), sr(sT0), sr(sT1)))
        I("v_lshrrev_b32 %s, 3, v0" % vr(t0))
        I("v_lshlrev_b32 %s, 5, %s" % (vr(t0), vr(t0)))
        I("v_bfe_u32 %s, v0, 2, 1" % vr(t1))
        I("v_add_u32 %s, %s, %s" % (vr(t0), vr(t0), vr(t1)))
        I("v_add_u32 %s, %s, %s" % (vr(t0), sr(sT0), vr(t0)))
        I("v_lshlrev_b32 %s, 13, %s" % (vr(t0), vr(t0)))
        I("v_lshl_add_u32 %s, %s, 7, %s" % (vr(t0), vr(vc), vr(t0)))
        for n in range(3):
            I("s_mov_b32 %s, %d" % (sr(sT1), n * 8 * 262144))
            I("buffer_load_dword %s, %s, %s, %s offen" % (vr(vPF), vr(t0), sr(S_W, 4), sr(sT1)))
        I("s_and_b32 %s, %s, 3" % (sr(sT0), sr(sHP)))
        I("s_mul_i32 %s, %s, 20" % (sr(sT0), sr(sT0)))
        I("s_mul_i32 %s, %s, 10" % (sr(sT1), sr(sHI)))
        I("s_add_u32 %s, %s, %s" % (sr(sT0), sr(sT0), sr(sT1)))
        for n in range(2):
            I("v_add_u32 %s, %d, v0" % (vr(t0), 64 * n))
            I("v_mul_u32_u24 %s, 7282, %s" % (vr(t1), vr(t0)))
            I("v_lshrrev_b32 %s, 16, %s" % (vr(t1), vr(t1)))
            I("v_mul_u32_u24 %s, 9, %s" % (vr(t2), vr(t1)))
            I("v_sub_u32 %s, %s, %s" % (vr(t2), vr(t0), vr(t2)))
            I("v_add_u32 %s, %s, %s" % (vr(t1), sr(sT0), vr(t1)))
            I("v_mul_u32_u24 %s, 1152, %s" % (vr(t1), vr(t1)))
            I("v_lshl_add_u32 %s, %s, 7, %s" % (vr(t1), vr(t2), vr(t1)))
            if n:
                I("v_cmp_gt_u32 vcc, 26, v0")
                I("v_mov_b32 %s, 0x40000000" % vr(t2))
                I("s_nop 0")
                I("v_cndmask_b32 %s, %s, %s, vcc" % (vr(t1), vr(t2), vr(t1)))
            I("buffer_load_dword %s, %s, %s, 0 offen" % (vr(vPF), vr(t1), sr(S_X, 4)))
    for x in q_offs_imm(0): I(x)
    flat(stage_dma(0)); flat(x_dma(0))
    for x in trace_pt(["s_mov_b32 s4, 51"]): I(x)
    I("s_lshl_b32 %s, %s, 4" % (sr(sT0), sr(sB)))
    I("s_add_u32 %s, %s, %s" % (sr(sT0), sr(sT0), sr(sHP)))
    I("s_lshl_b32 %s, %s, 5" % (sr(sT1), sr(sB)))
    I("s_add_u32 %s, %s, %s" % (sr(sT1), sr(sT1), sr(sH)))
    I("s_cmp_eq_u32 %s, 0" % sr(sTYPE))
    I("s_cselect_b32 %s, %s, %s" % (sr(sT0), sr(sT0), sr(sT1)))
    I("s_lshl_b32 %s, %s, 17" % (sr(sT2), sr(sT0)))
    srd(S_K, None, None, sT2, 0x20000)
    srd(S_V, None, None, sT2, 0x20000)
    I("s_cmp_eq_u32 %s, 0" % sr(sTYPE))
    I("s_cselect_b32 %s, 0, %s" % (sr(sT0), sr(sWAVE)))
    I("s_mul_i32 %s, %s, 5" % (sr(sT0), sr(sT0)))
    I("s_lshr_b32 %s, s2, 1" % sr(sT1))
    I("s_add_u32 %s, %s, %s" % (sr(sROT), sr(sT0), sr(sT1)))
    I("s_and_b32 %s, %s, %d" % (sr(sROT), sr(sROT), 15 if cfg.rot else 0))
    for r in range(160): I("v_mov_b32 %s, 0" % vr(QACC + r))
    I("s_mul_i32 %s, %s, %d" % (sr(sT0), sr(sHP), 256 * 1152))
    srd(S_O, None, None, sT0, 256 * 1152)
    I("s_mul_i32 %s, %s, %d" % (sr(sT0), sr(sTYPE), PSTR_TYPE))
    I("s_mul_i32 %s, %s, %d" % (sr(sT1), sr(sHP), PSTR_HP))
    I("s_add_u32 %s, %s, %s" % (sr(sT0), sr(sT0), sr(sT1)))
    I("s_mul_i32 %s, %s, 92160" % (sr(sT1), sr(sB)))
    I("s_add_u32 %s, %s, %s" % (sr(sT0), sr(sT0), sr(sT1)))
    I("s_mov_b32 %s, s28" % sr(S_P)); I("s_mov_b32 %s, s29" % sr(S_P + 1))
    srd(S_P, None, None, sT0, 92160)
    I("v_lshl_add_u32 %s, %s, 3, %s" % (vr(t1), vr(vg), vr(vrr)))
    I("v_lshlrev_b32 %s, 9, %s" % (vr(t1), vr(t1)))
    I("v_lshl_add_u32 %s, %s, 4, %s" % (vr(t1), vr(vc), vr(t1)))
    I("s_lshl_b32 %s, %s, 8" % (sr(sT0), sr(sHI)))
    I("s_lshl_b32 %s, %s, 13" % (sr(sT1), sr(sHI)))
    for u in range(3):
        I("s_sub_u32 %s, %s, %s" % (sr(sT2), sr(sMW[u]), sr(sT1)))
        I("s_add_u32 %s, %s, %s" % (sr(sT2), sr(sT2), sr(sT0)))
        for s_ in range(4):
            I("v_xor_b32 %s, %d, %s" % (vr(t0), s_, vr(vrr)))
            I("v_lshl_add_u32 %s, %s, 6, %s" % (vr(t0), vr(t0), vr(t1)))
            I("v_add_u32 %s, %s, %s" % (vr(vAR + 4 * u + s_), sr(sT2), vr(t0)))
    I("v_lshrrev_b32 %s, 1, %s" % (vr(t1), vr(vi)))
    I("s_mul_i32 %s, %s, 5120" % (sr(sT1), sr(sHI)))
    for ub in range(3):
        I("s_sub_u32 %s, %s, %s" % (sr(sT2), sr(sMX[ub]), sr(sT1)))
        for p_ in range(2):
            I("v_add_u32 %s, %d, %s" % (vr(t0), 4 * p_, vr(vg)))
            I("v_xor_b32 %s, %s, %s" % (vr(t0), vr(t0), vr(t1)))
            I("v_lshlrev_b32 %s, 4, %s" % (vr(t0), vr(t0)))
            I("v_lshl_add_u32 %s, %s, 7, %s" % (vr(t0), vr(vi), vr(t0)))
            I("v_add_u32 %s, %s, %s" % (vr(vBR + ub * 2 + p_), sr(sT2), vr(t0)))
    for r in range(180): I("v_accvgpr_write_b32 %s, 0" % ar(r))
    I("v_mov_b32 %s, 0x3f803f80" % vr(t0))
    for r in range(4): I("v_accvgpr_write_b32 %s, %s" % (ar(ONE + r), vr(t0)))
    I("s_mov_b32 %s, 0" % sr(sRETRY))
    for x in trace_pt(["s_mov_b32 s4, 52"]): I(x)
    for x in q_offs_imm(1): I(x)
    flat(stage_dma(1))
    for x in trace_pt(["s_mov_b32 s4, 53"]): I(x)
    stamp(1)
    I("s_waitcnt vmcnt(8)")
    for x in trace_pt(["s_mov_b32 s4, 54"]): I(x)
    I("s_barrier")
    stamp(2)
    for T in range(6):
        for s_ in a_reads(0, T): I(s_)
    for j in range(5): I(b_read(0, j))
    for x in q_offs_imm(2): I(x)
    I("s_mov_b32 %s, %s" % (sr(sKQ), sr(sWOFF)))
    flat(stage_dma(2))
    flat(x_dma(1))
    for x in trace_pt(["s_mov_b32 s4, 55"]): I(x)
    I("s_waitcnt lgkmcnt(0)")
    I("s_mov_b32 %s, 0" % sr(sKK))
    E("K1_QLOOP:")
    XMODE[0] = 'q'
    kvoff = []
    for m in range(4):
        kvoff += ["v_add_u32 %s, %d, %s" % (vr(t0), 4 * m, vr(vg)), "v_xor_b32 %s, %s, %s" % (vr(t0), vr(t0), vr(vi)),
                  "v_lshlrev_b32 %s, 4, %s" % (vr(t0), vr(t0)), "v_lshl_add_u32 %s, %s, 8, %s" % (vr(vKD + m), vr(vg), vr(t0))]
    for m in range(2):
        kvoff += ["v_add_u32 %s, %d, %s" % (vr(t0), 4 * m, vr(vg)), "v_lshlrev_b32 %s, 1, %s" % (vr(t0), vr(t0)), "v_xor_b32 %s, %s, %s" % (vr(t0), vr(t0), vr(vi)),
                  "v_lshlrev_b32 %s, 4, %s" % (vr(t0), vr(t0)), "v_lshl_add_u32 %s, %s, 8, %s" % (vr(vVD + m), vr(vg), vr(t0))]
    def q_step(v, kind="loop", shared=None):
        u = v % 3
        un = (u + 1) % 3
        last = (kind == "kv2")
        mf = []
        for p in range(4):
            for j in range(5):
                for T in (2 * p, 2 * p + 1):
                    mf.append(mfma(vr(qacc(T, j), 4), vr(WF + 4 * T, 4), vr(XF + 4 * j, 4), vr(qacc(T, j), 4)))
        F = Fill(40)
        F.put(-1, "s_waitcnt lgkmcnt(6)")
        F.put(1, "s_waitcnt lgkmcnt(3)"); F.put(3, "s_waitcnt lgkmcnt(2)"); F.put(5, "s_waitcnt lgkmcnt(1)"); F.put(7, "s_waitcnt lgkmcnt(0)")
        F.put(8, a_reads(u, 6)); F.put(9, a_reads(u, 7))
        steady = 8 + (5 if (v - 1) % 2 == 1 else 0)
        if kind == "kv1": steady = 3 if cfg.pf_wo else 0
        tr = trace_pt(["s_add_u32 s4, %s, %d" % (sr(sKK), v)])
        if not last:
            F.put(14, ["s_waitcnt vmcnt(%d) lgkmcnt(0)" % steady, "s_barrier"] + tr)
            F.put(15, a_reads(un, 0)); F.put(16, a_reads(un, 1))
            F.put(20, a_reads(un, 2)); F.put(21, a_reads(un, 3))
            F.put(30, a_reads(un, 4)); F.put(32, a_reads(un, 5))
            for j in range(5): F.put(31 + 2 * j, b_read(v + 1, j))
        else:
            F.put(14, tr)
        items = []
        if kind == "loop":
            offs = ["s_add_u32 %s, %s, 262144" % (sr(sKQ), sr(sKQ)), "s_cmp_eq_u32 %s, %d" % (sr(sKQ), 18 * 262144), "s_cselect_b32 %s, 0, %s" % (sr(sKQ), sr(sKQ)),
                    "s_lshr_b32 %s, %s, 12" % (sr(sXOFF), sr(sKQ)), "s_mov_b32 %s, %s" % (sr(sWOFF), sr(sKQ))]
            F.put(0, offs[0]); F.put(2, offs[1:3]); F.put(4, offs[3:5])
            if v % 2 == 1:
                for grp in x_dma(((v + 3) >> 1) % 3): items += [[x] for x in grp]
            for grp in stage_dma(u): items += [[x] for x in grp]
        elif kind == "k0":
            pf = []
            if cfg.pf_wo:
                for rep in range(3):
                    g = ["v_add_u32 %s, %d, v0" % (vr(t0), 64 * rep), "v_add_u32 %s, %s, %s" % (vr(t0), sr(sT0), vr(t0)),
                         "v_mul_u32_u24 %s, 7282, %s" % (vr(t1), vr(t0)), "v_lshrrev_b32 %s, 16, %s" % (vr(t1), vr(t1)),
                         "v_mul_u32_u24 %s, 9, %s" % (vr(t2), vr(t1)), "v_sub_u32 %s, %s, %s" % (vr(t2), vr(t0), vr(t2)),
                         "v_add_u32 %s, %s, %s" % (vr(t1), sr(sT1), vr(t1)), "v_mul_u32_u24 %s, 1152, %s" % (vr(t1), vr(t1)),
                         "v_lshl_add_u32 %s, %s, 7, %s" % (vr(t1), vr(t2), vr(t1))]
                    if rep == 2:
                        g += ["v_cmp_gt_u32 vcc, 16, v0", "v_mov_b32 %s, 0x40000000" % vr(t2), "s_nop 0", "v_cndmask_b32 %s, %s, %s, vcc" % (vr(t1), vr(t2), vr(t1))]
                    g += ["buffer_load_dword %s, %s, %s, 0 offen" % (vr(vPF), vr(t1), sr(S_O, 4))]
                    pf += g
                F.put(0, ["s_mul_i32 %s, %s, 144" % (sr(sT0), sr(sHI)), "s_and_b32 %s, %s, 7" % (sr(sT1), sr(sB))])
                F.put(2, ["s_lshl_b32 %s, %s, 5" % (sr(sT1), sr(sT1))])
            F.flow(kvoff + pf, 10, 39, budget=3)
        elif kind == "kv1":
            F.put(0, ["s_mov_b32 %s, %s" % (sr(sKOFF), sr(sROT)), "s_lshl_b32 %s, %s, 13" % (sr(sKOFF), sr(sKOFF))])
            for grp in kv_dma(True, 0, sKOFF, shared) + kv_dma(False, 0, sKOFF, shared): items += [[x] for x in grp]
        elif kind == "kv2":
            F.put(0, ["s_add_u32 %s, %s, 1" % (sr(sKOFF), sr(sROT)), "s_and_b32 %s, %s, 15" % (sr(sKOFF), sr(sKOFF))])
            F.put(1, ["s_lshl_b32 %s, %s, 13" % (sr(sKOFF), sr(sKOFF))])
            for grp in kv_dma(True, 1, sKOFF, shared): items += [[x] for x in grp]
        if items: F.flow(items, (cfg.q_lo + 2) if kind != "kv2" else 10, cfg.q_hi, budget=cfg.q_bud)
        interleave(mf, F.f)
    for v in range(6): q_step(v, "loop")
    XMODE[0] = False
    I("s_add_u32 %s, %s, 6" % (sr(sKK), sr(sKK)))
    I("s_cmp_lt_u32 %s, 12" % sr(sKK))
    I("s_cbranch_scc1 K1_QLOOP")
    XMODE[0] = 'q'
    for v in range(3): q_step(v, "loop")
    q_step(3, "k0")
    XMODE[0] = False
    I("s_cmp_eq_u32 %s, 0" % sr(sTYPE))
    I("s_cbranch_scc0 K1_B_PATH")
    for tag, shared in (("A", True), ("B", False)):
        if tag == "B": E("K1_B_PATH:")
        XMODE[0] = 'q'
        q_step(4, "kv1", shared)
        q_step(5, "kv2", shared)
        XMODE[0] = False
        stamp(3)
        I("s_nop 7"); I("s_nop 1")
        q_epilogue()
        ring_addrs()
        I("v_lshrrev_b32 %s, 3, v0" % vr(t0))
        I("s_lshl_b32 %s, %s, 7" % (sr(sT1), sr(sHI)))
        I("v_add_u32 %s, %s, %s" % (vr(t0), sr(sT1), vr(t0)))
        I("v_mul_u32_u24 %s, 1152, %s" % (vr(t0), vr(t0)))
        I("v_and_b32 %s, 1, %s" % (vr(t1), vr(vg)))
        I("v_lshlrev_b32 %s, 2, %s" % (vr(t1), vr(t1)))
        I("v_and_b32 %s, 7, v0" % vr(t2))
        I("v_xor_b32 %s, %s, %s" % (vr(t1), vr(t1), vr(t2)))
        I("v_lshl_add_u32 %s, %s, 4, %s" % (vr(vW3D), vr(t1), vr(t0)))
        for n in range(1, 4): I("v_add_u32 %s, %d, %s" % (vr(vW3D + n), n * (8 * 1152 - 1024), vr(vW3D)))
        I("s_lshl_b32 %s, %s, 16" % (sr(sBUF0), sr(sTYPE)))
        I("s_lshl_b32 %s, %s, 14" % (sr(sT1), sr(sHI)))
        I("s_add_u32 %s, %s, %s" % (sr(sBUF0), sr(sBUF0), sr(sT1)))
        I("s_add_u32 %s, %s, 65536" % (sr(sBUF0), sr(sBUF0)))
        I("s_mov_b32 %s, %s" % (sr(sVOFF), sr(sKOFF)))
        flat(kv_dma(False, 1, sVOFF, shared))
        I("s_waitcnt vmcnt(%d)" % (12 if shared else 24))
        I("s_barrier")
        for mt in range(2):
            for s_ in range(4): I(k_read(0, mt, s_))
        att_prologue_and_loop(shared, tag, True)
        if tag == "A": I("s_branch K1_LOOPS_DONE")
    E("K1_LOOPS_DONE:")
    I("s_lshl_b32 %s, %s, 7" % (sr(sPOFF), sr(sCOFF)))
    flat(w3_dma(sBUF0, sPOFF))
    I("s_waitcnt vmcnt(16)")
    I("s_barrier")
    E("K1_POST:")
    for m in pv_group(4): I(m)
    stamp(5)
    I("s_nop 7"); I("s_nop 1")
    lv = [SS + j for j in range(5)]
    for j in range(5): I("v_accvgpr_read_b32 %s, %s" % (vr(lv[j]), ar(LA + 4 * j)))
    I("s_cmp_lg_u32 %s, 0" % sr(sRETRY))
    I("s_cbranch_scc1 K1_NORM")
    I("v_add_f32 %s, %s, %s" % (vr(t1), vr(lv[0]), vr(lv[1])))
    I("v_add_f32 %s, %s, %s" % (vr(t1), vr(t1), vr(lv[2])))
    I("v_add_f32 %s, %s, %s" % (vr(t1), vr(t1), vr(lv[3])))
    I("v_add_f32 %s, %s, %s" % (vr(t1), vr(t1), vr(lv[4])))
    I("v_mov_b32 %s, 0x4e800000" % vr(t2))
    I("v_cmp_nlt_f32 vcc, %s, %s" % (vr(t1), vr(t2)))
    I("s_nop 4")
    I("s_cbranch_vccnz K1_FALLBACK")
    E("K1_NORM:")
    I("s_mul_i32 %s, %s, 20480" % (sr(sXOWN), sr(sWAVE)))
    I("s_cmp_eq_u32 %s, 3" % sr(sWAVE))
    I("s_cselect_b32 %s, 98304, %s" % (sr(sXOWN), sr(sXOWN)))
    I("s_lshl_b32 %s, %s, 15" % (sr(sT0), sr(sTYPE)))
    I("s_lshl_b32 %s, %s, 14" % (sr(sT1), sr(sHI)))
    I("s_add_u32 %s, %s, %s" % (sr(sBUF1), sr(sT0), sr(sT1)))
    rc = [PK + 2 * j for j in range(5)]
    for j in range(5): I("v_rcp_f32 %s, %s" % (vr(rc[j]), vr(lv[j])))
    I("s_nop 0")
    for j in range(5): I("v_mov_b32 %s, %s" % (vr(rc[j] + 1), vr(rc[j])))
    tmpsets = [KF, KF + 8, KF + 16, KF + 24]
    cnt = 0
    for p in range(4):
        for j in range(5):
            tb = tmpsets[cnt % 4]; cnt += 1
            for k in range(4):
                I("v_accvgpr_read_b32 %s, %s" % (vr(tb + k), ar(oacc(2 * p, j) + k)))
                I("v_accvgpr_read_b32 %s, %s" % (vr(tb + 4 + k), ar(oacc(2 * p + 1, j) + k)))
            for k in range(0, 8, 2): I("v_pk_mul_f32 %s, %s, %s" % (vr(tb + k, 2), vr(tb + k, 2), vr(rc[j], 2)))
            ob = OFO + (p * 5 + j) * 4
            for k in range(4): I("v_cvt_pk_bf16_f32 %s, %s, %s" % (vr(ob + k), vr(tb + 2 * k), vr(tb + 2 * k + 1)))
    I("s_waitcnt vmcnt(0)")
    I("s_barrier")
    I("v_add_u32 %s, %s, %s" % (vr(t0), sr(sXOWN), vr(vLANE16)))
    for q in range(20): I("ds_write_b128 %s, %s offset:%d" % (vr(t0), vr(OFO + 4 * q, 4), q * 1024))
    I("v_lshl_add_u32 %s, %s, 2, %s" % (vr(t1), vr(vg), vr(vrr)))
    I("v_lshlrev_b32 %s, 7, %s" % (vr(t1), vr(t1)))
    I("s_lshl_b32 %s, %s, 2" % (sr(sT0), sr(sHI)))
    I("v_add_u32 %s, %s, %s" % (vr(t2), sr(sT0), vr(vc)))
    I("v_lshrrev_b32 %s, 1, %s" % (vr(t0), vr(vrr)))
    I("v_and_b32 %s, 1, %s" % (vr(t0), vr(t0)))
    I("v_lshlrev_b32 %s, 2, %s" % (vr(t0), vr(t0)))
    I("v_xor_b32 %s, %s, %s" % (vr(t2), vr(t2), vr(t0)))
    I("v_lshl_add_u32 %s, %s, 4, %s" % (vr(t1), vr(t2), vr(t1)))
    for u, bufr in enumerate((sBUF0, sBUF1)):
        I("v_add_u32 %s, %s, %s" % (vr(vA3 + 2 * u), sr(bufr), vr(t1)))
        I("s_xor_b32 %s, %s, 16384" % (sr(sT0), sr(bufr)))
        I("v_add_u32 %s, %s, %s" % (vr(vA3 + 2 * u + 1), sr(sT0), vr(t1)))
    I("s_xor_b32 %s, %s, 1" % (sr(sT0), sr(sWAVE)))
    I("s_mul_i32 %s, %s, 20480" % (sr(sT1), sr(sT0)))
    I("s_cmp_eq_u32 %s, 3" % sr(sT0))
    I("s_cselect_b32 %s, 98304, %s" % (sr(sT1), sr(sT1)))
    I("v_add_u32 %s, %s, %s" % (vr(t0), sr(sT1), vr(vLANE16)))
    I("s_waitcnt lgkmcnt(0)")
    I("s_barrier")
    for q in range(10): I("ds_read_b128 %s, %s offset:%d" % (vr(OFP + 4 * q, 4), vr(t0), q * 1024))
    I("s_waitcnt lgkmcnt(5)")
    for q in range(10, 20): I("ds_read_b128 %s, %s offset:%d" % (vr(OFP + 4 * q, 4), vr(t0), q * 1024))
    def a3_reads(u, ct, kl):
        ad = vA3 + 2 * u + (kl >> 2)
        off = (kl & 3) * 4096 + ct * 8
        return ["ds_read_b64_tr_b16 %s, %s offset:%d" % (vr(A3 + 4 * kl, 2), vr(ad), off),
                "ds_read_b64_tr_b16 %s, %s offset:%d" % (vr(A3 + 4 * kl + 2, 2), vr(ad), off + 2048)]
    I("s_waitcnt vmcnt(0) lgkmcnt(0)")
    I("s_barrier")
    I("s_add_u32 %s, %s, 1" % (sr(sT2X), sr(sCOFF)))
    I("s_lshl_b32 %s, %s, 7" % (sr(sT2X), sr(sT2X)))
    flat(w3_dma(sBUF1, sT2X)[:cfg.p3_split])
    for kl in range(6):
        for s_ in a3_reads(0, 0, kl): I(s_)
    I("s_waitcnt lgkmcnt(0)")
    stamp(6)
    I("s_mov_b32 %s, 0" % sr(sKK))
    def bfrag(kl, j): return (OFO if kl < 4 else OFP) + ((kl & 3) * 5 + j) * 4
    def pk(up, j):
        tb = PK + (j & 1) * 12
        r = []
        for k in range(4): r.append("v_accvgpr_read_b32 %s, %s" % (vr(tb + k), ar(up * 40 + j * 4 + k)))
        for k in range(4): r.append("v_accvgpr_read_b32 %s, %s" % (vr(tb + 4 + k), ar(up * 40 + (5 + j) * 4 + k)))
        for k in range(4): r.append("v_cvt_pk_bf16_f32 %s, %s, %s" % (vr(tb + 8 + k), vr(tb + 2 * k), vr(tb + 2 * k + 1)))
        st = ["s_add_u32 %s, %s, %d" % (sr(sT2), sr(sPOFF), j * 1024),
              "buffer_store_dwordx4 %s, %s, %s, %s offen %s" % (vr(tb + 8, 4), vr(vLANE16), sr(S_P, 4), sr(sT2), cfg.st_flag)]
        return r, st
    E("K1_P3LOOP:")
    XMODE[0] = 'p'
    for u in range(2):
        un = 1 - u
        up = 1 - u
        for ct in range(2):
            mf = []
            for kp in range(4):
                for j in range(5):
                    for kl in (2 * kp, 2 * kp + 1):
                        d = ar(u * 40 + (ct * 5 + j) * 4, 4)
                        mf.append(mfma(d, vr(A3 + 4 * kl, 4), vr(bfrag(kl, j), 4), d if kl else "0"))
            F = Fill(40)
            if ct == 0: F.put(-1, trace_pt(["s_add_u32 s4, %s, %d" % (sr(sKK), 40 + u)]))
            for g in (-1, 9, 19, 29): F.put(g, "s_waitcnt lgkmcnt(8)")
            F.put(0, a3_reads(u, ct, 6)); F.put(1, a3_reads(u, ct, 7))
            nu, nct = (u, 1) if ct == 0 else (un, 0)
            F.put(10, a3_reads(nu, nct, 0)); F.put(11, a3_reads(nu, nct, 1))
            F.put(20, a3_reads(nu, nct, 2)); F.put(21, a3_reads(nu, nct, 3))
            F.put(30, a3_reads(nu, nct, 4)); F.put(31, a3_reads(nu, nct, 5))
            dm_cur = []
            for grp in w3_dma(sBUF0 if u == 0 else sBUF1, sT2X): dm_cur += [[x] for x in grp]
            dm_prev = []
            for grp in w3_dma(sBUF0 if up == 0 else sBUF1, sT2X): dm_prev += [[x] for x in grp]
            def split(lst, n):
                k = 0
                for i_, it in enumerate(lst):
                    if it[0].startswith("buffer_load"):
                        k += 1
                        if k == n: return lst[:i_ + 1], lst[i_ + 1:]
            NS = cfg.p3_split
            if ct == 0:
                items = ["s_add_u32 %s, %s, %d" % (sr(sPOFF), sr(sKK), u + 8)] + wrap9(sPOFF)
                items += ["s_sub_u32 %s, %s, 9" % (sr(sT1), sr(sPOFF)), "s_cmp_ge_u32 %s, 9" % sr(sPOFF), "s_cselect_b32 %s, %s, %s" % (sr(sPOFF), sr(sT1), sr(sPOFF)),
                          "s_lshl_b32 %s, %s, 1" % (sr(sPOFF), sr(sPOFF)), "s_add_u32 %s, %s, %s" % (sr(sPOFF), sr(sPOFF), sr(sHI)), "s_mulk_i32 %s, 5120" % sr(sPOFF)]
                if u == 0:
                    items += ["s_cmp_eq_u32 %s, 0" % sr(sKK), "s_cselect_b32 %s, 0x40000000, %s" % (sr(sPOFF), sr(sPOFF))]
                pre = items
                rest = split(dm_prev, NS)[1] if NS < 16 else []
                F.flow(rest, 2, 13)
                F.flow(atomize(pre), 2, 13, spread=False)
                items = []
                for j in range(4):
                    r, st = pk(up, j)
                    items += r + st
                F.flow(items, 14, 39, budget=3)
            else:
                F.put(8, ["s_waitcnt vmcnt(4) lgkmcnt(0)", "s_barrier"])
                pre = ["s_add_u32 %s, %s, %d" % (sr(sT0), sr(sKK), u + 2), "s_mov_b32 %s, %s" % (sr(sT2X), sr(sT0))] + wrap9(sT2X) + \
                      ["s_lshl_b32 %s, %s, 7" % (sr(sT2X), sr(sT2X)), "s_cmp_lt_u32 %s, 9" % sr(sT0), "s_cselect_b32 %s, %s, 0x40000000" % (sr(sT2X), sr(sT2X))]
                F.flow(atomize(pre), 2, 7, spread=False)
                r, st = pk(up, 4)
                F.flow(r + st, 2, 18)
                first = split(dm_cur, NS)[0] if NS < 16 else dm_cur
                F.flow(first, 12, 39)
            interleave(mf, F.f)
        if u == 0:
            I("s_cmp_eq_u32 %s, 8" % sr(sKK))
            I("s_cbranch_scc1 K1_P3DONE")
    XMODE[0] = False
    I("s_add_u32 %s, %s, 2" % (sr(sKK), sr(sKK)))
    I("s_branch K1_P3LOOP")
    E("K1_P3DONE:")
    I("s_nop 7"); I("s_nop 1")
    I("s_mov_b32 %s, 8" % sr(sPOFF))
    for x in wrap9(sPOFF): I(x)
    I("s_lshl_b32 %s, %s, 1" % (sr(sPOFF), sr(sPOFF)))
    I("s_add_u32 %s, %s, %s" % (sr(sPOFF), sr(sPOFF), sr(sHI)))
    I("s_mulk_i32 %s, 5120" % sr(sPOFF))
    for j in range(5):
        r, st = pk(0, j)
        for x in r + st: I(x)
    if cfg.stamps: I("s_waitcnt vmcnt(0)")
    if cfg.trace:
        I("s_memtime s[6:7]"); I("s_waitcnt lgkmcnt(0)"); I("v_writelane_b32 v7, s6, 60")
        I("s_lshl_b32 s4, %s, 8" % sr(sUID)); I("s_add_u32 s4, s4, 0x4100000")
        I("v_lshlrev_b32 v6, 2, v0"); I("v_add_u32 v6, s4, v6")
        I("global_store_dword v6, v7, s[28:29]")
    stamp(7)
    stamp_out(8, 28, sUID, STAMP_OFF)
    E("K1_END:")
    I("s_endpgm")
    E("K1_FALLBACK:")
    I("s_waitcnt vmcnt(0) lgkmcnt(0)")
    I("s_cmp_eq_u32 %s, 1" % sr(sWAVE))
    I("s_cselect_b32 %s, %d, %s" % (sr(sLW), FBW1, sr(sLW)))
    ring_addrs()
    mx = [VF + j for j in range(5)]
    for j in range(5): I("v_mov_b32 %s, 0xff800000" % vr(mx[j]))
    I("s_mov_b32 %s, 0" % sr(sKOFF))
    E("K1_FB_LOOP:")
    flat(kv_dma(True, 0, sKOFF))
    I("s_waitcnt vmcnt(0)")
    for mt in range(2):
        for s_ in range(4): I(k_read(0, mt, s_))
    I("s_waitcnt lgkmcnt(0)")
    for j in range(5):
        for m in qk_group(j, czero=True): I(m)
    I("s_nop 7"); I("s_nop 1")
    for j in range(5):
        b_ = SS + 8 * j
        for k in range(0, 8, 2): I("v_max3_f32 %s, %s, %s, %s" % (vr(mx[j]), vr(mx[j]), vr(b_ + k), vr(b_ + k + 1)))
    I("s_add_u32 %s, %s, 8192" % (sr(sKOFF), sr(sKOFF)))
    I("s_cmp_lt_u32 %s, 131072" % sr(sKOFF))
    I("s_cbranch_scc1 K1_FB_LOOP")
    for j in range(5):
        I("v_mov_b32 %s, %s" % (vr(t0), vr(mx[j])))
        xlane_max(t0, t1)
        for k in range(4): I("v_sub_f32 %s, 0, %s" % (vr(NM + 4 * j + k), vr(t0)))
    for r in range(180): I("v_accvgpr_write_b32 %s, 0" % ar(r))
    I("s_mov_b32 %s, 1" % sr(sRETRY))
    tile_off(sKOFF, 0); tile_off(sVOFF, 0)
    flat(kv_dma(True, 0, sKOFF)); flat(kv_dma(False, 0, sVOFF))
    tile_off(sKOFF, 1); tile_off(sVOFF, 1)
    flat(kv_dma(True, 1, sKOFF)); flat(kv_dma(False, 1, sVOFF))
    I("s_waitcnt vmcnt(24)")
    for mt in range(2):
        for s_ in range(4): I(k_read(0, mt, s_))
    att_prologue_and_loop(False, "R", False)
    I("s_cmp_eq_u32 %s, 1" % sr(sWAVE))
    I("s_cbranch_scc0 K1_POST")
    I("s_waitcnt vmcnt(0) lgkmcnt(0)")
    I("s_lshl_b32 %s, %s, 7" % (sr(sPOFF), sr(sCOFF)))
    flat(w3_dma(sBUF0, sPOFF))
    I("s_xor_b32 %s, %s, 16384" % (sr(sT0), sr(sBUF0)))
    for n in range(4): I("v_subrev_u32 %s, %d, %s" % (vr(vW3D + n), 128 * 1152, vr(vW3D + n)))
    flat(w3_dma(sT0, sPOFF))
    for n in range(4): I("v_add_u32 %s, %d, %s" % (vr(vW3D + n), 128 * 1152, vr(vW3D + n)))
    I("s_branch K1_POST")

def gen_k2():
    E(".globl reduce_kernel"); E(".p2align 8"); E(".type reduce_kernel,@function"); E("reduce_kernel:")
    I("s_cmp_ge_u32 s2, 720")
    I("s_cbranch_scc1 K2_END")
    I("s_load_dwordx2 s[8:9], s[0:1], 80")
    I("s_load_dwordx2 s[10:11], s[0:1], 96")
    stamp(0)
    I("v_lshrrev_b32 v1, 6, v0")
    I("v_and_b32 v0, 63, v0")
    I("v_readfirstlane_b32 s12, v1")
    I("s_lshl_b32 s13, s2, 2")
    I("v_lshlrev_b32 v2, 4, v0")
    I("s_add_u32 s13, s13, s12")
    I("s_mov_b32 s78, s13")
    I("s_mul_i32 s14, s13, 46604")
    I("s_lshr_b32 s14, s14, 22")
    for u in range(2880): assert (u * 46604) >> 22 == u // 90
    I("s_mul_i32 s15, s14, 90")
    I("s_sub_u32 s15, s13, s15")
    I("s_lshr_b32 s16, s14, 4")
    I("s_and_b32 s17, s14, 15")
    I("s_mul_i32 s18, s16, %d" % PSTR_TYPE)
    I("s_mul_i32 s19, s17, 92160")
    I("s_add_u32 s18, s18, s19")
    I("s_lshl_b32 s19, s15, 10")
    I("s_add_u32 s18, s18, s19")
    I("s_waitcnt lgkmcnt(0)")
    I("s_add_u32 s20, s10, s18")
    I("s_addc_u32 s21, s11, 0")
    I("s_and_b32 s21, s21, 0xffff")
    I("s_mov_b32 s22, %d" % (15 * PSTR_HP + 1024))
    I("s_mov_b32 s23, 0x20000")
    for hp in range(16):
        I("s_mov_b32 s24, %d" % (hp * PSTR_HP))
        I("buffer_load_dwordx4 %s, v2, s[20:23], s24 offen" % vr(16 + 4 * hp, 4))
    I("s_mul_i32 s25, s15, 13108")
    I("s_lshr_b32 s25, s25, 16")
    for q in range(90): assert (q * 13108) >> 16 == q // 5
    I("s_mul_i32 s26, s25, 5")
    I("s_sub_u32 s26, s15, s26")
    I("s_mul_i32 s29, s17, 80")
    I("s_lshl_b32 s30, s26, 4")
    I("s_add_u32 s29, s29, s30")
    I("v_and_b32 v3, 15, v0")
    I("v_add_u32 v3, s29, v3")
    I("v_mul_u32_u24 v3, 2304, v3")
    I("v_lshrrev_b32 v4, 4, v0")
    I("v_lshl_add_u32 v3, v4, 4, v3")
    I("s_mul_i32 s30, s16, 1152")
    I("s_lshl_b32 s31, s25, 6")
    I("s_add_u32 s30, s30, s31")
    I("s_mov_b32 s32, s8")
    I("s_and_b32 s33, s9, 0xffff")
    I("s_mov_b32 s34, %d" % (16 * 80 * 1152 * 2))
    I("s_mov_b32 s35, 0x20000")
    I("s_mov_b32 s36, 0xffff0000")
    for hp in range(16):
        I("s_waitcnt vmcnt(%d)" % (15 - hp))
        for k in range(4):
            src = 16 + 4 * hp + k
            if hp == 0:
                I("v_lshlrev_b32 %s, 16, %s" % (vr(8 + 2 * k), vr(src)))
                I("v_and_b32 %s, s36, %s" % (vr(9 + 2 * k), vr(src)))
            else:
                I("v_lshlrev_b32 v5, 16, %s" % vr(src))
                I("v_and_b32 v6, s36, %s" % vr(src))
                I("v_add_f32 %s, %s, v5" % (vr(8 + 2 * k), vr(8 + 2 * k)))
                I("v_add_f32 %s, %s, v6" % (vr(9 + 2 * k), vr(9 + 2 * k)))
    for k in range(4): I("v_cvt_pk_bf16_f32 %s, %s, %s" % (vr(16 + k), vr(8 + 2 * k), vr(9 + 2 * k)))
    I("buffer_store_dwordx4 v[16:19], v3, s[32:35], s30 offen")
    if cfg.stamps: I("s_waitcnt vmcnt(0)")
    stamp(1)
    stamp_out(2, 10, 78, STAMP_OFF + 0x10000)
    E("K2_END:")
    I("s_endpgm")

def kd(name, nv, ns, acc):
    E(".amdhsa_kernel %s" % name)
    E("  .amdhsa_next_free_vgpr %d" % nv)
    E("  .amdhsa_next_free_sgpr %d" % ns)
    E("  .amdhsa_accum_offset %d" % acc)
    E("  .amdhsa_group_segment_fixed_size 0")
    E("  .amdhsa_kernarg_size 104")
    E("  .amdhsa_user_sgpr_count 2")
    E("  .amdhsa_user_sgpr_kernarg_segment_ptr 1")
    E("  .amdhsa_system_sgpr_workgroup_id_x 1")
    E(".end_amdhsa_kernel")

E("; @launch kernel=attn_kernel grid=(256,1,1) block=(256,1,1) lds=%d" % K1_LDS)
E("; @launch kernel=reduce_kernel grid=(720,1,1) block=(256,1,1) lds=0")
E('.amdgcn_target "amdgcn-amd-amdhsa--gfx950"')
E(".text")
gen_k1()
gen_k2()
E('.section .rodata,"a"')
E(".p2align 6")
kd("attn_kernel", 512, 102, 256)
E(".p2align 6")
kd("reduce_kernel", 80, 102, 80)
print("\n".join(L))
```

```python
import sys, math, struct

class Cfg:
    nt_kv = 1
    stamps = 0
    pf_q = 0
    pf_d = 6
    pf_wo = 0
    st_flag = "sc1"
    wo_step = 14
    rot = 1
    capA = 0
    capB = 0
    idle_per = 3
    pf_b = 0
    warm_k = 11
    capI = 6
    mid = 0
    red_one = 1
    swapb = 0
    redst = 0
    fuse = 1
    red_sleep = 4
    red_max = 4000
    k2_flag = ""
    wo_early = 0
    stagger = 0
    sig_step = 15
    poll_max = 40
    poll_sleep = 0
    p3_split = 11
    q_lo = 15
    q_hi = 39
    q_bud = 2
    trace = 0
    krot = 1
    x_nodma = 0
    x_nocomp = 0
    q_nodma = 0
    q_now = 0
    q_nox = 0
    q_nocomp = 0
    q_nopf = 0
    p_nodma = 0
    p_nocomp = 0
    p_nost = 0
    x_nods = 0
cfg = Cfg()
for a in sys.argv[1:]:
    if "=" in a:
        k, v = a.split("=")
        setattr(cfg, k, int(v) if isinstance(getattr(cfg, k), int) else v)

L = []
def E(s=""): L.append(s)
def I(s):
    if s.endswith(":"): L.append(s)
    else: L.append("  " + s)
def vr(b, n=1): return "v%d" % b if n == 1 else "v[%d:%d]" % (b, b + n - 1)
def ar(b, n=1): return "a%d" % b if n == 1 else "a[%d:%d]" % (b, b + n - 1)
def sr(b, n=1): return "s%d" % b if n == 1 else "s[%d:%d]" % (b, b + n - 1)
MFMA = "v_mfma_f32_16x16x32_bf16"
def mfma(d, a, b, c): return "%s %s, %s, %s, %s" % (MFMA, d, a, b, c)
def f32bits(x): return struct.unpack("<I", struct.pack("<f", x))[0]

def stamp(k, force=False):
    import inspect
    if cfg.redst and k in (4, 5, 6) and inspect.stack()[1].function != "fused_reduce": return
    if cfg.stamps:
        I("%s s[%d:%d]" % ("s_memrealtime" if cfg.stamps == 1 else "s_memtime", 80 + 2 * k, 81 + 2 * k))
def stamp_out(n, wsreg, idreg, off):
    if cfg.stamps:
        I("s_waitcnt lgkmcnt(0)")
        I("s_lshl_b32 s98, %s, 5" % sr(idreg))
        I("s_add_u32 s98, s98, 0x%x" % off)
        for k in range(8):
            I("v_mov_b32 v%d, %s" % (8 + k, ("s%d" % (80 + 2 * k)) if k < n else "0"))
        I("v_mov_b32 v16, s98")
        I("global_store_dwordx4 v16, v[8:11], %s" % sr(wsreg, 2))
        I("global_store_dwordx4 v16, v[12:15], %s offset:16" % sr(wsreg, 2))

XMODE = [False]
def keep(s):
    m = XMODE[0]
    if not m: return True
    isdma = s.startswith("buffer_load_dwordx4") and s.endswith("lds")
    iscomp = s.startswith("v_mfma") or s.startswith("v_exp") or s.startswith("v_cvt") or s.startswith("ds_read") or s.startswith("v_accvgpr")
    if m == "x":
        if cfg.x_nodma and isdma: return False
        if cfg.x_nocomp and iscomp: return False
        if cfg.x_nods and s.startswith("ds_read"): return False
    if m == "q":
        if cfg.q_nodma and isdma: return False
        if cfg.q_now and isdma and "s[40:43]" in s: return False
        if cfg.q_nox and isdma and "s[44:47]" in s: return False
        if cfg.q_nocomp and iscomp: return False
        if cfg.q_nopf and s.startswith("buffer_load_dword "): return False
    if m == "p":
        if cfg.p_nodma and isdma: return False
        if cfg.p_nocomp and iscomp: return False
        if cfg.p_nost and s.startswith("buffer_store"): return False
    return True
def trace_pt(idx_lines):
    if not cfg.trace: return []
    return ["s_memtime s[6:7]", "s_waitcnt lgkmcnt(0)"] + idx_lines + ["v_mov_b32 v6, s6", "v_cmp_eq_u32 vcc, s4, v0", "s_nop 1", "v_cndmask_b32 v7, v7, v6, vcc"]
def interleave(mf, fills):
    for s in fills.get(-1, []):
        if keep(s): I(s)
    for i, m in enumerate(mf):
        if keep(m): I(m)
        for s in fills.get(i, []):
            if keep(s): I(s)
class Fill:
    def __init__(self, n):
        self.n = n; self.f = {}; self.load = {}
    @staticmethod
    def cost(ins):
        c = 0
        for x in ins:
            if x.endswith(":"): continue
            c += 2 if x.startswith("v_exp") or x.startswith("v_rcp") else 1
        return c
    def put(self, g, ins):
        ins = ins if isinstance(ins, list) else [ins]
        self.f.setdefault(g, []).extend(ins); self.load[g] = self.load.get(g, 0) + self.cost(ins)
    def flow(self, items, lo, hi, budget=2, spread=True):
        items = [x if isinstance(x, list) else [x] for x in items]
        n = len(items); g = lo
        for i, it in enumerate(items):
            tgt = lo + (i * (hi - lo + 1)) // n if spread else lo
            g = max(g, tgt)
            c = self.cost(it)
            while g <= hi and self.load.get(g, 0) + c > max(budget, c): g += 1
            if g > hi:
                g = hi
            self.put(g, it)
def atomize(lst):
    out = []
    for x in lst:
        if out and isinstance(out[-1], list) and out[-1][0].startswith("s_cmp") and x.startswith("s_cselect"):
            out[-1].append(x)
        elif x.startswith("s_cmp"):
            out.append([x])
        else:
            out.append(x)
    return out
def add_fill(f, gap, ins):
    f.setdefault(gap, []).extend(ins if isinstance(ins, list) else [ins])
def flat(groups):
    for g in groups:
        for s in g: I(s)

QSCALE = math.log2(math.e) / math.sqrt(128.0)
NTS = "nt " if cfg.nt_kv else ""
PSTR_HP = 16 * 2 * 46080
PSTR_TYPE = 16 * PSTR_HP
STAMP_OFF = 0x4000000

S_K, S_V, S_W, S_X, S_O, S_P = 32, 36, 40, 44, 48, 52
sWAVE, sTYPE, sHP, sHI, sB, sH = 56, 57, 58, 59, 60, 61
sLW = 62
sT0, sT1, sT2, sT3 = 64, 65, 66, 67
sKK = 68
sWOFF, sXOFF = 69, 70
sPW, sPX = 71, 72
sVOFF, sKOFF = 73, 74
sRETRY = 5
sHALF = 76
sM3 = 77
sUID = 78
sPOFF = 79
sROT = 96
sTI = 97
sKQ = 75
sGRP = 20
sXCD = 21
sQOFF = 3
sCOFF = 98
sMW = [99, 100, 101]
sMX = [30, 31, 63]
QF, SS, PP, KF, VF, NM = 16, 96, 136, 144, 176, 208
vKR, vVR, vKD, vVD = 228, 232, 246, 250
vWD, vXD = 246, 250
vK0 = 255
vAR = 228
vBR = 240
vLANE16 = 254
vPF = 8
vPW2 = 7
vg, vi, vrr, vc = 9, 10, 11, 12
t0, t1, t2 = 13, 14, 15
QACC, WF, XF = 16, 176, 208
OA, LA, ONE = 0, 160, 180
def oacc(T, j): return OA + (j * 8 + T) * 4
def qacc(T, j): return QACC + (j * 8 + T) * 4
WQB = [[(u * 2 + t) * 16384 for t in range(2)] for u in range(3)]
XB_ = [[98304 + (u * 2 + t) * 10240 for t in range(2)] for u in range(3)]
assert XB_[2][1] + 10240 <= 163840
K1_LDS = 163840
FBW1 = 65536
P3B = [[65536, 131072], [0, 32768]]
K0A = 184
OFO, OFP = 16, 96
A3 = 176
vA3 = 232
vW3D = 1
PK = 208

def dma(voff, srd, soff, imm, nt=""):
    assert 0 <= imm < 4096
    return "buffer_load_dwordx4 %s, %s, %s offen offset:%d %slds" % (vr(voff), sr(srd, 4), soff, imm, nt)

def stage_dma(u):
    r = []
    for n in range(8):
        pre = []
        if n == 0: pre = ["s_mov_b32 m0, %s" % sr(sMW[u]), "s_nop 0"]
        if n == 4: pre = ["s_add_u32 m0, %s, 4096" % sr(sMW[u]), "s_add_u32 %s, %s, 65536" % (sr(sT3), sr(sWOFF))]
        r.append(pre + [dma(vWD + (n & 3), S_W, sr(sWOFF) if n < 4 else sr(sT3), (n & 3) * 1024)])
    return r
def x_dma(ub):
    r = [["s_mov_b32 m0, %s" % sr(sMX[ub]), "s_nop 0", dma(vXD + 0, S_X, sr(sXOFF), 0)]]
    for n in range(1, 4): r.append([dma(vXD + n, S_X, sr(sXOFF), n * 1024)])
    r.append(["s_add_u32 m0, %s, 4096" % sr(sMX[ub]), "s_add_u32 %s, %s, %d" % (sr(sT3), sr(sXOFF), 32 * 1152), dma(vXD + 0, S_X, sr(sT3), 0)])
    return r
def q_offs_imm(t):
    return ["s_add_u32 %s, %s, %d" % (sr(sT2), sr(sQOFF), t), "s_sub_u32 %s, %s, 18" % (sr(sT3), sr(sT2)), "s_cmp_ge_u32 %s, 18" % sr(sT2),
            "s_cselect_b32 %s, %s, %s" % (sr(sT2), sr(sT3), sr(sT2)), "s_lshl_b32 %s, %s, 18" % (sr(sWOFF), sr(sT2)), "s_lshl_b32 %s, %s, 6" % (sr(sXOFF), sr(sT2))]
def pf_loads():
    return [["buffer_load_dword %s, %s, %s, %s offen" % (vr(vPF), vr(vPW), sr(S_W, 4), sr(sPW))],
            ["buffer_load_dword %s, %s, %s, %s offen" % (vr(vPF), vr(vPX), sr(S_X, 4), sr(sPX))]]

def kv_dma(is_k, slot_par, soff, shared=False, cap=0, lw=None, srdk=None, srdv=None, half=None):
    base = slot_par * 16384 + (0 if is_k else 8192)
    srd = (srdk or S_K) if is_k else (srdv or S_V)
    lw = lw if lw is not None else sr(sLW)
    half = half if half is not None else sr(sHALF)
    tmp = sT0 if is_k else sT1
    thr = ["s_waitcnt vmcnt(%d)" % (cap - 1)] if cap else []
    r = []
    if shared:
        for n in range(4):
            pre = []
            if n == 0:
                pre = ["s_add_u32 %s, %s, %s" % (sr(tmp), lw, half), "s_add_u32 m0, %s, %d" % (sr(tmp), base),
                       "s_add_u32 %s, %s, %s" % (sr(tmp), sr(soff), half)]
            vo = (vKD + n) if is_k else (vVD + (n & 1))
            r.append(pre + thr + [dma(vo, srd, sr(tmp), n * 1024, NTS)])
        return r
    for n in range(8):
        pre = []
        if n == 0: pre = ["s_add_u32 m0, %s, %d" % (lw, base), "s_nop 0"]
        if n == 4: pre = ["s_add_u32 m0, %s, %d" % (lw, base + 4096), "s_add_u32 %s, %s, 4096" % (sr(tmp), sr(soff))]
        vo = (vKD + (n & 3)) if is_k else (vVD + (n & 1))
        so = sr(soff) if n < 4 else sr(tmp)
        r.append(pre + thr + [dma(vo, srd, so, (n & 3) * 1024, NTS)])
    return r

def tile_off(dst, idx):
    I("s_add_u32 %s, %s, %d" % (sr(dst), sr(sROT), idx))
    I("s_and_b32 %s, %s, 15" % (sr(dst), sr(dst)))
    I("s_lshl_b32 %s, %s, 13" % (sr(dst), sr(dst)))
def next_offs():
    r = []
    r.append(["s_add_u32 %s, %s, 1" % (sr(sTI), sr(sTI)), "s_add_u32 %s, %s, %s" % (sr(sT2), sr(sTI), sr(sROT))])
    r.append(["s_add_u32 %s, %s, 2" % (sr(sVOFF), sr(sT2)), "s_and_b32 %s, %s, 15" % (sr(sVOFF), sr(sVOFF))])
    r.append(["s_lshl_b32 %s, %s, 13" % (sr(sVOFF), sr(sVOFF)), "s_cmp_lt_u32 %s, 14" % sr(sTI), "s_cselect_b32 %s, %s, 0x40000000" % (sr(sVOFF), sr(sVOFF))])
    r.append(["s_add_u32 %s, %s, 3" % (sr(sKOFF), sr(sT2)), "s_and_b32 %s, %s, 15" % (sr(sKOFF), sr(sKOFF))])
    r.append(["s_lshl_b32 %s, %s, 13" % (sr(sKOFF), sr(sKOFF)), "s_cmp_lt_u32 %s, 13" % sr(sTI), "s_cselect_b32 %s, %s, 0x40000000" % (sr(sKOFF), sr(sKOFF))])
    return r

def a_reads(u, T):
    ad, off = vAR + 4 * u + (T >> 1), (T & 1) * 8
    return ["ds_read_b64_tr_b16 %s, %s offset:%d" % (vr(WF + 4 * T, 2), vr(ad), off),
            "ds_read_b64_tr_b16 %s, %s offset:%d" % (vr(WF + 4 * T + 2, 2), vr(ad), off + 2048)]
def b_read(kk, j):
    return "ds_read_b128 %s, %s offset:%d" % (vr(XF + 4 * j, 4), vr(vBR + ((kk >> 1) % 3) * 2 + (kk & 1)), j * 2048)
def k_read(par, mt, s):
    return "ds_read_b128 %s, %s offset:%d" % (vr(KF + (mt * 4 + s) * 4, 4), vr(vKR + s), par * 16384 + mt * 4096)
def v_reads(par, T):
    off = 8192 + par * 16384
    return ["ds_read_b64_tr_b16 %s, %s offset:%d" % (vr(VF + 4 * T, 2), vr(vVR + T), off),
            "ds_read_b64_tr_b16 %s, %s offset:%d" % (vr(VF + 4 * T + 2, 2), vr(vVR + T), off + 4096)]
def qk_group(j, czero=False):
    r = []
    for mt in range(2):
        for s in range(4):
            d = vr(SS + 8 * j + 4 * mt, 4)
            c = d if s else ("0" if czero else vr(NM + 4 * j, 4))
            r.append(mfma(d, vr(KF + (mt * 4 + s) * 4, 4), vr(QF + (j * 4 + s) * 4, 4), c))
    return r
def pv_group(j):
    p = vr(PP + 4 * (j & 1), 4)
    r = [mfma(ar(oacc(T, j), 4), vr(VF + 4 * T, 4), p, ar(oacc(T, j), 4)) for T in range(8)]
    r.append(mfma(ar(LA + 4 * j, 4), ar(ONE, 4), p, ar(LA + 4 * j, 4)))
    return r
def exps(j): return ["v_exp_f32 %s, %s" % (vr(SS + 8 * j + k), vr(SS + 8 * j + k)) for k in range(8)]
def cvts(j): return ["v_cvt_pk_bf16_f32 %s, %s, %s" % (vr(PP + 4 * (j & 1) + k), vr(SS + 8 * j + 2 * k), vr(SS + 8 * j + 2 * k + 1)) for k in range(4)]

LBL = [0]
def barrier_seq(bar):
    if bar == "cond":
        LBL[0] += 1
        l = "K1_CB%d" % LBL[0]
        return ["s_cmp_lt_u32 %s, 8" % sr(sTI), "s_cbranch_scc0 %s" % l, "s_barrier", "%s:" % l]
    return ["s_barrier"] if bar else []

def att_step(e, shared, bar):
    mf = pv_group(4) + qk_group(3)
    f = {}
    if shared: add_fill(f, -1, ["s_waitcnt vmcnt(8)", "s_barrier"])
    else: add_fill(f, -1, ["s_waitcnt vmcnt(24)"] + barrier_seq(bar))
    add_fill(f, -1, trace_pt(["s_add_u32 s4, %s, 20" % sr(sTI)]))
    for T in range(8): add_fill(f, T, v_reads(e, T))
    ex, cv = exps(0), cvts(0)
    for k in range(8): add_fill(f, 8 + k, ex[k])
    add_fill(f, 11, cv[0]); add_fill(f, 13, cv[1]); add_fill(f, 15, cv[2]); add_fill(f, 16, ["s_nop 0", cv[3]])
    interleave(mf, f)
    mf = qk_group(4) + pv_group(0)
    f = {}
    if not shared: add_fill(f, -1, "s_waitcnt vmcnt(16)")
    for mt in range(2):
        for s in range(4): add_fill(f, mt * 4 + s, k_read(1 - e, mt, s))
    add_fill(f, 7, "s_waitcnt lgkmcnt(8)")
    ex, cv = exps(1), cvts(1)
    for k in range(4): add_fill(f, 2 * k, ex[k])
    for k in range(4): add_fill(f, 8 + 2 * k, ex[4 + k])
    add_fill(f, 5, cv[0]); add_fill(f, 9, cv[1]); add_fill(f, 13, cv[2]); add_fill(f, 16, cv[3])
    cap = cfg.capA if shared else cfg.capB
    vd = kv_dma(False, e, sVOFF, shared, cap)
    kd = kv_dma(True, 1 - e, sKOFF, shared, cap)
    if not shared:
        add_fill(f, 11, vd[0]); add_fill(f, 13, vd[1]); add_fill(f, 15, vd[2])
    interleave(mf, f)
    def plain_sb(j, dmas, pre=None):
        mf = qk_group((j - 2) % 5) + pv_group(j - 1)
        f = {}
        if pre: add_fill(f, -1, pre)
        ex, cv = exps(j), cvts(j)
        for k in range(8): add_fill(f, 2 * k, ex[k])
        add_fill(f, 3, cv[0]); add_fill(f, 7, cv[1]); add_fill(f, 11, cv[2]); add_fill(f, 15, cv[3])
        for g, d in zip([1, 5, 9, 13, 16], dmas): add_fill(f, g, d)
        interleave(mf, f)
    no = next_offs()
    if shared:
        plain_sb(2, vd[0:4], ["s_waitcnt lgkmcnt(0)", "s_barrier"])
        plain_sb(3, kd[0:4])
        plain_sb(4, no)
    else:
        plain_sb(2, vd[3:8], ["s_waitcnt lgkmcnt(0)"] + barrier_seq(bar))
        plain_sb(3, kd[0:4])
        plain_sb(4, kd[4:8] + [no[0] + no[1] + no[2] + no[3] + no[4]])

def xlane_max(x, y):
    I("v_mov_b32 %s, %s" % (vr(y), vr(x)))
    I("s_nop 1")
    I("v_permlane32_swap_b32 %s, %s" % (vr(x), vr(y)))
    I("s_nop 1")
    I("v_max_f32 %s, %s, %s" % (vr(x), vr(x), vr(y)))
    I("v_mov_b32 %s, %s" % (vr(y), vr(x)))
    I("s_nop 1")
    I("v_permlane16_swap_b32 %s, %s" % (vr(x), vr(y)))
    I("s_nop 1")
    I("v_max_f32 %s, %s, %s" % (vr(x), vr(x), vr(y)))

def srd(S, lo, hi, off_sreg, nrec):
    if off_sreg is not None:
        I("s_add_u32 %s, %s, %s" % (sr(S), sr(S), sr(off_sreg)))
        I("s_addc_u32 %s, %s, 0" % (sr(S + 1), sr(S + 1)))
    I("s_and_b32 %s, %s, 0xffff" % (sr(S + 1), sr(S + 1)))
    if nrec is not None:
        I("s_mov_b32 %s, %d" % (sr(S + 2), nrec))
    I("s_mov_b32 %s, 0x20000" % sr(S + 3))

def q_epilogue():
    I("s_mov_b32 %s, 0x%08x" % (sr(sT2), f32bits(QSCALE)))
    I("s_mov_b32 %s, %s" % (sr(sT3), sr(sT2)))
    for j in range(5):
        for s in range(4):
            src = qacc(2 * s, j)
            for k in range(0, 8, 2):
                I("v_pk_mul_f32 %s, %s, %s" % (vr(src + k, 2), vr(src + k, 2), sr(sT2, 2)))
            dst = QF + (j * 4 + s) * 4
            for k in range(4):
                I("v_cvt_pk_bf16_f32 %s, %s, %s" % (vr(dst + k), vr(src + 2 * k), vr(src + 2 * k + 1)))

def att_prologue_and_loop(shared, tag, bar):
    E("K1_ATT_COMMON_%s:" % tag)
    I("s_waitcnt lgkmcnt(0)")
    if bar: I("s_barrier")
    tile_off(sKOFF, 2)
    flat(kv_dma(True, 0, sKOFF, shared))
    tile_off(sVOFF, 2)
    tile_off(sKOFF, 3)
    I("s_mov_b32 %s, 0" % sr(sTI))
    for j in range(5):
        for m in qk_group(j, czero=True): I(m)
    I("s_nop 7"); I("s_nop 1")
    if not bar:
        I("s_cmp_lg_u32 %s, 0" % sr(sRETRY))
        I("s_cbranch_scc1 K1_HAVE_MAX_%s" % tag)
    for j in range(5):
        b = SS + 8 * j
        I("v_max3_f32 %s, %s, %s, %s" % (vr(t0), vr(b), vr(b + 1), vr(b + 2)))
        I("v_max3_f32 %s, %s, %s, %s" % (vr(t0), vr(t0), vr(b + 3), vr(b + 4)))
        I("v_max3_f32 %s, %s, %s, %s" % (vr(t0), vr(t0), vr(b + 5), vr(b + 6)))
        I("v_max_f32 %s, %s, %s" % (vr(t0), vr(t0), vr(b + 7)))
        xlane_max(t0, t1)
        for k in range(4): I("v_sub_f32 %s, 0, %s" % (vr(NM + 4 * j + k), vr(t0)))
    E("K1_HAVE_MAX_%s:" % tag)
    for j in range(3):
        for k in range(8):
            I("v_add_f32 %s, %s, %s" % (vr(SS + 8 * j + k), vr(SS + 8 * j + k), vr(NM + 4 * j)))
    for k in range(4): I("v_mov_b32 %s, 0" % vr(PP + k))
    for k in range(32): I("v_mov_b32 %s, 0" % vr(VF + k))
    I("s_mov_b32 %s, 0" % sr(sKK))
    stamp(4)
    E("K1_ALOOP_%s:" % tag)
    if cfg.mid and cfg.stamps:
        I("s_cmp_lg_u32 %s, 8" % sr(sKK))
        I("s_cbranch_scc1 K1_MID_%s" % tag)
        stamp(1)
        E("K1_MID_%s:" % tag)
    if bar and cfg.wo_early:
        I("s_cmp_lg_u32 %s, %d" % (sr(sKK), cfg.wo_step))
        I("s_cbranch_scc1 K1_NOPF_%s" % tag)
        I("s_lshl_b32 %s, %s, 7" % (sr(sPOFF), sr(sCOFF)))
        flat(w3_dma(sBUF0, sPOFF))
        E("K1_NOPF_%s:" % tag)
    XMODE[0] = 'x'
    att_step(0, shared, bar)
    att_step(1, shared, bar)
    XMODE[0] = False
    I("s_add_u32 %s, %s, 2" % (sr(sKK), sr(sKK)))
    I("s_cmp_lt_u32 %s, 16" % sr(sKK))
    I("s_cbranch_scc1 K1_ALOOP_%s" % tag)

def w3_dma(bufreg, soffreg):
    r = []
    for n in range(16):
        pre = []
        q = n >> 2
        if n & 3 == 0:
            pre = ["s_add_u32 m0, %s, %d" % (sr(bufreg), q * 4096)]
            if q: pre += ["s_add_u32 %s, %s, %d" % (sr(sT3), sr(soffreg), q * 32 * 1152)]
            else: pre += ["s_nop 0"]
        so = sr(soffreg) if q == 0 else sr(sT3)
        r.append(pre + [dma(vW3D + (n & 3), S_O, so, (n & 3) * 1024)])
    return r

def wrap9(reg):
    return ["s_add_u32 %s, %s, %s" % (sr(reg), sr(reg), sr(sCOFF)), "s_sub_u32 %s, %s, 9" % (sr(sT1), sr(reg)), "s_cmp_ge_u32 %s, 9" % sr(reg),
            "s_cselect_b32 %s, %s, %s" % (sr(reg), sr(sT1), sr(reg))]

def ring_addrs():
    for s_ in range(4):
        I("v_add_u32 %s, %d, %s" % (vr(t0), 4 * s_, vr(vg)))
        I("v_xor_b32 %s, %s, %s" % (vr(t0), vr(t0), vr(vi)))
        I("v_lshlrev_b32 %s, 4, %s" % (vr(t0), vr(t0)))
        I("v_lshl_add_u32 %s, %s, 8, %s" % (vr(t0), vr(vi), vr(t0)))
        I("v_add_u32 %s, %s, %s" % (vr(vKR + s_), sr(sLW), vr(t0)))
    I("v_lshl_add_u32 %s, %s, 2, %s" % (vr(t1), vr(vg), vr(vrr)))
    I("v_and_b32 %s, 7, %s" % (vr(t2), vr(t1)))
    I("v_lshlrev_b32 %s, 8, %s" % (vr(t1), vr(t1)))
    I("v_lshl_add_u32 %s, %s, 3, %s" % (vr(t1), vr(vc), vr(t1)))
    I("v_add_u32 %s, %s, %s" % (vr(t1), sr(sLW), vr(t1)))
    for T in range(8):
        I("v_xor_b32 %s, %d, %s" % (vr(t0), T, vr(t2)))
        I("v_lshl_add_u32 %s, %s, 5, %s" % (vr(vVR + T), vr(t0), vr(t1)))

sXOWN = 70
sT2X = 69
sBUF0, sBUF1 = 71, 72


def fused_reduce():
    S_R, S_OUT = 32, 36
    if cfg.redst: stamp(4)
    I("s_waitcnt vmcnt(0)")
    I("s_barrier")
    if cfg.redst: stamp(5)
    I("s_lshl_b32 %s, %s, 4" % (sr(sT0), sr(sB)))
    I("v_mov_b32 %s, %s" % (vr(t0), sr(sT0)))
    I("s_cmp_lg_u32 %s, 0" % sr(sWAVE))
    I("s_cbranch_scc1 K1_RED_NOPUB")
    I("s_lshl_b32 %s, 1, %s" % (sr(sT1), sr(sHP)))
    I("v_mov_b32 %s, %s" % (vr(t1), sr(sT1)))
    I("s_mov_b64 exec, 1")
    I("global_atomic_or %s, %s, s[26:27] sc1" % (vr(t0), vr(t1)))
    I("s_mov_b64 exec, -1")
    E("K1_RED_NOPUB:")
    A1, A2 = 208, 212
    I("v_cmp_eq_u32 vcc, %s, %s" % (vr(vg), vr(vrr)))
    I("v_and_b32 %s, 1, %s" % (vr(t1), vr(vc)))
    I("v_lshlrev_b32 %s, 4, %s" % (vr(t1), vr(t1)))
    I("v_mov_b32 %s, 0x3f80" % vr(t2))
    I("v_lshlrev_b32 %s, %s, %s" % (vr(t2), vr(t1), vr(t2)))
    I("v_cndmask_b32 %s, 0, %s, vcc" % (vr(t2), vr(t2)))
    I("v_cmp_gt_u32 vcc, 2, %s" % vr(vc))
    I("s_nop 1")
    I("v_cndmask_b32 %s, 0, %s, vcc" % (vr(A1), vr(t2)))
    I("v_cndmask_b32 %s, %s, 0, vcc" % (vr(A1 + 1), vr(t2)) if False else "v_sub_u32 %s, %s, %s" % (vr(A1 + 1), vr(t2), vr(A1)))
    I("v_mov_b32 %s, 0" % vr(A1 + 2)); I("v_mov_b32 %s, 0" % vr(A1 + 3))
    I("v_mov_b32 %s, 0" % vr(A2)); I("v_mov_b32 %s, 0" % vr(A2 + 1))
    I("v_mov_b32 %s, %s" % (vr(A2 + 2), vr(A1))); I("v_mov_b32 %s, %s" % (vr(A2 + 3), vr(A1 + 1)))
    I("s_mov_b32 %s, s28" % sr(S_R)); I("s_and_b32 %s, s29, 0xffff" % sr(S_R + 1))
    I("s_mov_b32 %s, %d" % (sr(S_R + 2), 2 * PSTR_TYPE)); I("s_mov_b32 %s, 0x20000" % sr(S_R + 3))
    I("s_mov_b32 %s, s24" % sr(S_OUT)); I("s_and_b32 %s, s25, 0xffff" % sr(S_OUT + 1))
    I("s_mov_b32 %s, %d" % (sr(S_OUT + 2), 16 * 80 * 1152 * 2)); I("s_mov_b32 %s, 0x20000" % sr(S_OUT + 3))
    sRO = [40, 41, 42]; sOO = [43, 44, 45]; vOO = [216, 217, 218]
    for k in range(3):
        I("s_add_u32 %s, %s, %d" % (sr(sT0), sr(sWAVE), 4 * k))
        I("s_lshl_b32 %s, %s, 4" % (sr(sT0), sr(sT0)))
        I("s_add_u32 %s, %s, %s" % (sr(sT0), sr(sT0), sr(sHP)))
        I("s_sub_u32 %s, %s, 90" % (sr(sT1), sr(sT0)))
        I("s_cmp_ge_u32 %s, 90" % sr(sT0))
        I("s_cselect_b32 %s, %s, %s" % (sr(sT1), sr(sT1), sr(sT0)))
        I("s_cselect_b32 %s, 1, 0" % sr(sT2))
        I("s_mul_i32 %s, %s, %d" % (sr(sRO[k]), sr(sT2), PSTR_TYPE))
        I("s_mul_i32 %s, %s, 92160" % (sr(sT3), sr(sB)))
        I("s_add_u32 %s, %s, %s" % (sr(sRO[k]), sr(sRO[k]), sr(sT3)))
        I("s_lshl_b32 %s, %s, 10" % (sr(sT3), sr(sT1)))
        I("s_add_u32 %s, %s, %s" % (sr(sRO[k]), sr(sRO[k]), sr(sT3)))
        I("s_mul_i32 %s, %s, 13108" % (sr(sT3), sr(sT1)))
        I("s_lshr_b32 %s, %s, 16" % (sr(sT3), sr(sT3)))
        I("s_mul_i32 %s, %s, 1152" % (sr(sOO[k]), sr(sT2)))
        I("s_lshl_b32 %s, %s, 6" % (sr(sT2), sr(sT3)))
        I("s_add_u32 %s, %s, %s" % (sr(sOO[k]), sr(sOO[k]), sr(sT2)))
        I("s_mul_i32 %s, %s, 5" % (sr(sT3), sr(sT3)))
        I("s_sub_u32 %s, %s, %s" % (sr(sT1), sr(sT1), sr(sT3)))
        I("s_lshl_b32 %s, %s, 4" % (sr(sT1), sr(sT1)))
        I("s_mul_i32 %s, %s, 80" % (sr(sT3), sr(sB)))
        I("s_add_u32 %s, %s, %s" % (sr(sT1), sr(sT1), sr(sT3)))
        I("v_add_u32 %s, %s, %s" % (vr(vOO[k]), sr(sT1), vr(vi)))
        I("v_mul_u32_u24 %s, 2304, %s" % (vr(vOO[k]), vr(vOO[k])))
        I("v_lshl_add_u32 %s, %s, 4, %s" % (vr(vOO[k]), vr(vg), vr(vOO[k])))
        I("s_cmp_lt_u32 %s, 180" % sr(sT0))
        I("s_cselect_b32 %s, %s, 0x40000000" % (sr(sRO[k]), sr(sRO[k])))
        I("s_cselect_b32 %s, %s, 0x40000000" % (sr(sOO[k]), sr(sOO[k])))
    I("s_mov_b32 %s, 0" % sr(sT0))
    if cfg.red_one:
        I("s_cmp_lg_u32 %s, 0" % sr(sWAVE))
        I("s_cbranch_scc1 K1_RED_GO")
    E("K1_RED_POLL:")
    I("global_load_dword %s, %s, s[26:27] sc1" % (vr(t1), vr(t0)))
    I("s_waitcnt vmcnt(0)")
    I("v_readfirstlane_b32 %s, %s" % (sr(sT1), vr(t1)))
    I("s_add_u32 %s, %s, 1" % (sr(sT0), sr(sT0)))
    I("s_nop 2")
    I("s_cmp_eq_u32 %s, 0xffff" % sr(sT1))
    I("s_cbranch_scc1 K1_RED_GO")
    if cfg.red_sleep: I("s_sleep %d" % cfg.red_sleep)
    I("s_cmp_lt_u32 %s, %d" % (sr(sT0), cfg.red_max))
    I("s_cbranch_scc1 K1_RED_POLL")
    E("K1_RED_GO:")
    if cfg.red_one: I("s_barrier")
    if cfg.redst: stamp(6)
    for hp in range(16):
        for k in range(3):
            I("s_add_u32 %s, %s, %d" % (sr(sT0), sr(sRO[k]), hp * PSTR_HP))
            I("buffer_load_dwordx4 %s, %s, %s, %s offen sc1" % (vr(16 + (hp * 3 + k) * 4, 4), vr(vLANE16), sr(S_R, 4), sr(sT0)))
    for hp in range(16):
        I("s_waitcnt vmcnt(%d)" % (45 - 3 * hp))
        for k in range(3):
            b = vr(16 + (hp * 3 + k) * 4, 4)
            for h in range(2):
                d = ar(k * 8 + h * 4, 4)
                I(mfma(d, vr(A1 if h == 0 else A2, 4), b, d if hp else "0"))
    I("s_nop 7"); I("s_nop 1")
    for k in range(3):
        tb = 220 + 12 * (k & 1)
        for r in range(8): I("v_accvgpr_read_b32 %s, %s" % (vr(tb + r), ar(k * 8 + r)))
        for r in range(4): I("v_cvt_pk_bf16_f32 %s, %s, %s" % (vr(tb + 8 + r), vr(tb + 2 * r), vr(tb + 2 * r + 1)))
        I("buffer_store_dwordx4 %s, %s, %s, %s offen" % (vr(tb + 8, 4), vr(vOO[k]), sr(S_OUT, 4), sr(sOO[k])))

def gen_k1():
    E(".globl %s" % KN); E(".p2align 8"); E(".type %s,@function" % KN); E("%s:" % KN)
    I("s_cmp_ge_u32 s2, 256")
    I("s_cbranch_scc1 K1_END")
    I("s_load_dwordx16 s[4:19], s[0:1], 0")
    I("s_load_dwordx8 s[20:27], s[0:1], 64")
    I("s_load_dwordx2 s[28:29], s[0:1], 96")
    stamp(0)
    I("v_lshrrev_b32 v1, 6, v0")
    I("v_and_b32 v0, 63, v0")
    I("v_readfirstlane_b32 %s, v1" % sr(sWAVE))
    if cfg.trace:
        I("s_memtime s[30:31]"); I("v_mov_b32 v7, 0"); I("s_waitcnt lgkmcnt(0)"); I("v_writelane_b32 v7, s30, 63")
    I("s_and_b32 %s, s2, 7" % sr(sT0))
    I("s_lshr_b32 %s, s2, 3" % sr(sT1))
    I("s_and_b32 %s, %s, 1" % (sr(sB), sr(sT0)))
    if cfg.swapb: I("s_xor_b32 %s, %s, 1" % (sr(sB), sr(sB)))
    I("s_lshl_b32 %s, %s, 3" % (sr(sB), sr(sB)))
    I("s_and_b32 %s, %s, 7" % (sr(sT2), sr(sT1)))
    I("s_add_u32 %s, %s, %s" % (sr(sB), sr(sB), sr(sT2)))
    I("s_lshr_b32 %s, %s, 1" % (sr(sHP), sr(sT0)))
    I("s_lshl_b32 %s, %s, 2" % (sr(sHP), sr(sHP)))
    I("s_lshr_b32 %s, %s, 3" % (sr(sT2), sr(sT1)))
    I("s_add_u32 %s, %s, %s" % (sr(sHP), sr(sHP), sr(sT2)))
    I("s_and_b32 %s, %s, 7" % (sr(sCOFF), sr(sB)))
    I("s_and_b32 %s, %s, 3" % (sr(sT2), sr(sHP)))
    I("s_mul_i32 %s, %s, 6" % (sr(sT2), sr(sT2)))
    I("s_lshl_b32 %s, %s, 1" % (sr(sQOFF), sr(sCOFF)))
    I("s_add_u32 %s, %s, %s" % (sr(sQOFF), sr(sQOFF), sr(sT2)))
    I("s_sub_u32 %s, %s, 18" % (sr(sT2), sr(sQOFF)))
    I("s_cmp_ge_u32 %s, 18" % sr(sQOFF))
    I("s_cselect_b32 %s, %s, %s" % (sr(sQOFF), sr(sT2), sr(sQOFF)))
    if not cfg.krot:
        I("s_mov_b32 %s, 0" % sr(sQOFF)); I("s_mov_b32 %s, 0" % sr(sCOFF))
    I("v_lshrrev_b32 %s, 4, v0" % vr(vg))
    I("v_and_b32 %s, 15, v0" % vr(vi))
    I("s_lshr_b32 %s, %s, 1" % (sr(sTYPE), sr(sWAVE)))
    I("s_and_b32 %s, %s, 1" % (sr(sHI), sr(sWAVE)))
    I("s_lshl_b32 %s, %s, 1" % (sr(sH), sr(sHP)))
    I("s_add_u32 %s, %s, %s" % (sr(sH), sr(sH), sr(sHI)))
    I("s_lshl_b32 %s, %s, 12" % (sr(sHALF), sr(sHI)))
    I("s_lshl_b32 %s, s2, 2" % sr(sUID))
    I("s_add_u32 %s, %s, %s" % (sr(sUID), sr(sUID), sr(sWAVE)))
    I("s_mov_b32 %s, 0" % sr(sLW))
    I("s_cmp_eq_u32 %s, 2" % sr(sWAVE))
    I("s_cselect_b32 %s, 98304, %s" % (sr(sLW), sr(sLW)))
    I("s_cmp_eq_u32 %s, 3" % sr(sWAVE))
    I("s_cselect_b32 %s, 32768, %s" % (sr(sLW), sr(sLW)))
    I("s_lshl_b32 %s, %s, 13" % (sr(sT0), sr(sHI)))
    I("s_mul_i32 %s, %s, 2560" % (sr(sT1), sr(sHI)))
    I("s_mul_i32 %s, %s, 5120" % (sr(sT1), sr(sHI)))
    I("s_lshl_b32 %s, %s, 14" % (sr(sT2), sr(sTYPE)))
    I("s_add_u32 %s, %s, %s" % (sr(sT0), sr(sT0), sr(sT2)))
    for u in range(3): I("s_add_u32 %s, %s, %d" % (sr(sMW[u]), sr(sT0), WQB[u][0]))
    I("s_mul_i32 %s, %s, 10240" % (sr(sT2), sr(sTYPE)))
    I("s_add_u32 %s, %s, %s" % (sr(sT1), sr(sT1), sr(sT2)))
    for u in range(3): I("s_add_u32 %s, %s, %d" % (sr(sMX[u]), sr(sT1), XB_[u][0]))
    I("v_lshrrev_b32 %s, 2, %s" % (vr(vrr), vr(vi)))
    I("v_and_b32 %s, 3, %s" % (vr(vc), vr(vi)))
    I("v_lshlrev_b32 %s, 4, v0" % vr(vLANE16))
    I("v_lshrrev_b32 %s, 5, v0" % vr(t1))
    I("v_and_b32 %s, 31, v0" % vr(t2))
    I("s_lshl_b32 %s, %s, 4" % (sr(sT0), sr(sHI)))
    for n in range(4):
        I("v_add_u32 %s, %d, %s" % (vr(t0), (2 * n) & 3, vr(t1)))
        I("v_lshlrev_b32 %s, 2, %s" % (vr(t0), vr(t0)))
        I("v_xor_b32 %s, %s, %s" % (vr(t0), vr(t0), vr(t2)))
        I("v_lshlrev_b32 %s, 4, %s" % (vr(t0), vr(t0)))
        I("v_add_u32 %s, %s, %s" % (vr(vWD + n), sr(sT0), vr(t1)))
        I("v_add_u32 %s, %d, %s" % (vr(vWD + n), 2 * n, vr(vWD + n)))
        I("v_lshl_add_u32 %s, %s, 13, %s" % (vr(vWD + n), vr(vWD + n), vr(t0)))
        if n: I("v_subrev_u32 %s, %d, %s" % (vr(vWD + n), n * 1024, vr(vWD + n)))
    I("v_lshrrev_b32 %s, 3, v0" % vr(t1))
    I("s_mul_i32 %s, %s, 40" % (sr(sT0), sr(sHI)))
    I("v_add_u32 %s, %s, %s" % (vr(t1), sr(sT0), vr(t1)))
    I("v_mul_u32_u24 %s, 1152, %s" % (vr(t1), vr(t1)))
    I("s_lshl_b32 %s, %s, 2" % (sr(sT0), sr(sHI)))
    for n in range(4):
        I("v_add_u32 %s, %s, %s" % (vr(t0), sr(sT0), vr(vg)))
        if n: I("v_add_u32 %s, %d, %s" % (vr(t0), 4 * n, vr(t0)))
        I("v_and_b32 %s, 7, %s" % (vr(t0), vr(t0)))
        I("v_and_b32 %s, 7, v0" % vr(t2))
        I("v_xor_b32 %s, %s, %s" % (vr(t0), vr(t0), vr(t2)))
        I("v_lshl_add_u32 %s, %s, 4, %s" % (vr(vXD + n), vr(t0), vr(t1)))
        if n: I("v_add_u32 %s, %d, %s" % (vr(vXD + n), n * (8 * 1152 - 1024), vr(vXD + n)))
    I("s_waitcnt lgkmcnt(0)")
    I("s_cmp_eq_u32 %s, 0" % sr(sTYPE))
    for S, a_, b_ in ((S_X, 4, 14), (S_K, 6, 16), (S_V, 8, 18), (S_W, 10, 20), (S_O, 12, 22)):
        I("s_cselect_b32 %s, s%d, s%d" % (sr(S), a_, b_))
        I("s_cselect_b32 %s, s%d, s%d" % (sr(S + 1), a_ + 1, b_ + 1))
    for x in trace_pt(["s_mov_b32 s4, 50"]): I(x)
    I("s_lshl_b32 %s, %s, 9" % (sr(sT0), sr(sHP)))
    I("s_sub_u32 %s, %d, %s" % (sr(S_W + 2), 576 * 8192, sr(sT0)))
    srd(S_W, None, None, sT0, None)
    I("s_mul_i32 %s, %s, %d" % (sr(sT0), sr(sB), 80 * 1152))
    I("s_sub_u32 %s, %d, %s" % (sr(S_X + 2), 1280 * 1152, sr(sT0)))
    srd(S_X, None, None, sT0, None)
    def q_start():
        pass
    npf = 0; npro = 0
    if cfg.pf_q:
        I("s_and_b32 %s, %s, 7" % (sr(sT0), sr(sB)))
        I("s_lshl_b32 %s, %s, 2" % (sr(sT0), sr(sT0)))
        I("s_lshl_b32 %s, %s, 1" % (sr(sT1), sr(sHI)))
        I("s_add_u32 %s, %s, %s" % (sr(sT0), sr(sT0), sr(sT1)))
        I("v_lshrrev_b32 %s, 3, v0" % vr(t0))
        I("v_lshlrev_b32 %s, 5, %s" % (vr(t0), vr(t0)))
        I("v_bfe_u32 %s, v0, 2, 1" % vr(t1))
        I("v_add_u32 %s, %s, %s" % (vr(t0), vr(t0), vr(t1)))
        I("v_add_u32 %s, %s, %s" % (vr(t0), sr(sT0), vr(t0)))
        I("v_lshlrev_b32 %s, 13, %s" % (vr(t0), vr(t0)))
        I("v_lshl_add_u32 %s, %s, 7, %s" % (vr(t0), vr(vc), vr(t0)))
        for n in range(3):
            I("s_mov_b32 %s, %d" % (sr(sT1), n * 8 * 262144))
            I("buffer_load_dword %s, %s, %s, %s offen" % (vr(vPF), vr(t0), sr(S_W, 4), sr(sT1)))
        I("s_and_b32 %s, %s, 3" % (sr(sT0), sr(sHP)))
        I("s_mul_i32 %s, %s, 20" % (sr(sT0), sr(sT0)))
        I("s_mul_i32 %s, %s, 10" % (sr(sT1), sr(sHI)))
        I("s_add_u32 %s, %s, %s" % (sr(sT0), sr(sT0), sr(sT1)))
        for n in range(2):
            I("v_add_u32 %s, %d, v0" % (vr(t0), 64 * n))
            I("v_mul_u32_u24 %s, 7282, %s" % (vr(t1), vr(t0)))
            I("v_lshrrev_b32 %s, 16, %s" % (vr(t1), vr(t1)))
            I("v_mul_u32_u24 %s, 9, %s" % (vr(t2), vr(t1)))
            I("v_sub_u32 %s, %s, %s" % (vr(t2), vr(t0), vr(t2)))
            I("v_add_u32 %s, %s, %s" % (vr(t1), sr(sT0), vr(t1)))
            I("v_mul_u32_u24 %s, 1152, %s" % (vr(t1), vr(t1)))
            I("v_lshl_add_u32 %s, %s, 7, %s" % (vr(t1), vr(t2), vr(t1)))
            if n:
                I("v_cmp_gt_u32 vcc, 26, v0")
                I("v_mov_b32 %s, 0x40000000" % vr(t2))
                I("s_nop 0")
                I("v_cndmask_b32 %s, %s, %s, vcc" % (vr(t1), vr(t2), vr(t1)))
            I("buffer_load_dword %s, %s, %s, 0 offen" % (vr(vPF), vr(t1), sr(S_X, 4)))
    I("s_and_b32 %s, %s, %d" % (sr(sGRP), sr(sB), 1 if cfg.stagger else 0))
    I("s_and_b32 %s, s2, 7" % sr(sXCD))
    I("s_lshl_b32 %s, %s, 4" % (sr(sXCD), sr(sXCD)))
    I("s_cmp_lg_u32 %s, 0" % sr(sGRP))
    I("s_cbranch_scc1 K1_NO_S0")
    for x in q_offs_imm(0): I(x)
    flat(stage_dma(0)); flat(x_dma(0))
    E("K1_NO_S0:")
    for x in trace_pt(["s_mov_b32 s4, 51"]): I(x)
    I("s_lshl_b32 %s, %s, 4" % (sr(sT0), sr(sB)))
    I("s_add_u32 %s, %s, %s" % (sr(sT0), sr(sT0), sr(sHP)))
    I("s_lshl_b32 %s, %s, 5" % (sr(sT1), sr(sB)))
    I("s_add_u32 %s, %s, %s" % (sr(sT1), sr(sT1), sr(sH)))
    I("s_cmp_eq_u32 %s, 0" % sr(sTYPE))
    I("s_cselect_b32 %s, %s, %s" % (sr(sT0), sr(sT0), sr(sT1)))
    I("s_lshl_b32 %s, %s, 17" % (sr(sT2), sr(sT0)))
    srd(S_K, None, None, sT2, 0x20000)
    srd(S_V, None, None, sT2, 0x20000)
    I("s_cmp_eq_u32 %s, 0" % sr(sTYPE))
    I("s_cselect_b32 %s, 0, %s" % (sr(sT0), sr(sWAVE)))
    I("s_mul_i32 %s, %s, 5" % (sr(sT0), sr(sT0)))
    I("s_lshr_b32 %s, s2, 1" % sr(sT1))
    I("s_add_u32 %s, %s, %s" % (sr(sROT), sr(sT0), sr(sT1)))
    I("s_and_b32 %s, %s, %d" % (sr(sROT), sr(sROT), 15 if cfg.rot else 0))
    for r in range(160): I("v_mov_b32 %s, 0" % vr(QACC + r))
    I("s_mul_i32 %s, %s, %d" % (sr(sT0), sr(sHP), 256 * 1152))
    srd(S_O, None, None, sT0, 256 * 1152)
    I("s_mul_i32 %s, %s, %d" % (sr(sT0), sr(sTYPE), PSTR_TYPE))
    I("s_mul_i32 %s, %s, %d" % (sr(sT1), sr(sHP), PSTR_HP))
    I("s_add_u32 %s, %s, %s" % (sr(sT0), sr(sT0), sr(sT1)))
    I("s_mul_i32 %s, %s, 92160" % (sr(sT1), sr(sB)))
    I("s_add_u32 %s, %s, %s" % (sr(sT0), sr(sT0), sr(sT1)))
    I("s_mov_b32 %s, s28" % sr(S_P)); I("s_mov_b32 %s, s29" % sr(S_P + 1))
    srd(S_P, None, None, sT0, 92160)
    I("v_lshl_add_u32 %s, %s, 3, %s" % (vr(t1), vr(vg), vr(vrr)))
    I("v_lshlrev_b32 %s, 9, %s" % (vr(t1), vr(t1)))
    I("v_lshl_add_u32 %s, %s, 4, %s" % (vr(t1), vr(vc), vr(t1)))
    I("s_lshl_b32 %s, %s, 8" % (sr(sT0), sr(sHI)))
    I("s_lshl_b32 %s, %s, 13" % (sr(sT1), sr(sHI)))
    for u in range(3):
        I("s_sub_u32 %s, %s, %s" % (sr(sT2), sr(sMW[u]), sr(sT1)))
        I("s_add_u32 %s, %s, %s" % (sr(sT2), sr(sT2), sr(sT0)))
        for s_ in range(4):
            I("v_xor_b32 %s, %d, %s" % (vr(t0), s_, vr(vrr)))
            I("v_lshl_add_u32 %s, %s, 6, %s" % (vr(t0), vr(t0), vr(t1)))
            I("v_add_u32 %s, %s, %s" % (vr(vAR + 4 * u + s_), sr(sT2), vr(t0)))
    I("v_lshrrev_b32 %s, 1, %s" % (vr(t1), vr(vi)))
    I("s_mul_i32 %s, %s, 5120" % (sr(sT1), sr(sHI)))
    for ub in range(3):
        I("s_sub_u32 %s, %s, %s" % (sr(sT2), sr(sMX[ub]), sr(sT1)))
        for p_ in range(2):
            I("v_add_u32 %s, %d, %s" % (vr(t0), 4 * p_, vr(vg)))
            I("v_xor_b32 %s, %s, %s" % (vr(t0), vr(t0), vr(t1)))
            I("v_lshlrev_b32 %s, 4, %s" % (vr(t0), vr(t0)))
            I("v_lshl_add_u32 %s, %s, 7, %s" % (vr(t0), vr(vi), vr(t0)))
            I("v_add_u32 %s, %s, %s" % (vr(vBR + ub * 2 + p_), sr(sT2), vr(t0)))
    for r in range(180): I("v_accvgpr_write_b32 %s, 0" % ar(r))
    I("v_mov_b32 %s, 0x3f803f80" % vr(t0))
    for r in range(4): I("v_accvgpr_write_b32 %s, %s" % (ar(ONE + r), vr(t0)))
    I("s_mov_b32 %s, 0" % sr(sRETRY))
    I("s_cmp_eq_u32 %s, 0" % sr(sGRP))
    I("s_cbranch_scc1 K1_G1_GO")
    I("s_cmp_lg_u32 %s, 0" % sr(sWAVE))
    I("s_cbranch_scc1 K1_G2_WAIT")
    I("v_mov_b32 %s, %s" % (vr(t0), sr(sXCD)))
    I("s_mov_b32 %s, 0" % sr(sT0))
    E("K1_POLL:")
    if cfg.poll_sleep: I("s_sleep %d" % cfg.poll_sleep)
    I("global_load_dword %s, %s, s[26:27] sc1" % (vr(t1), vr(t0)))
    I("s_waitcnt vmcnt(0)")
    I("v_readfirstlane_b32 %s, %s" % (sr(sT1), vr(t1)))
    I("s_add_u32 %s, %s, 1" % (sr(sT0), sr(sT0)))
    I("s_nop 2")
    I("s_cmp_ge_u32 %s, 16" % sr(sT1))
    I("s_cbranch_scc1 K1_G2_WAIT")
    I("s_cmp_lt_u32 %s, %d" % (sr(sT0), cfg.poll_max))
    I("s_cbranch_scc1 K1_POLL")
    E("K1_G2_WAIT:")
    I("s_barrier")
    for x in q_offs_imm(0): I(x)
    flat(stage_dma(0)); flat(x_dma(0))
    E("K1_G1_GO:")
    for x in trace_pt(["s_mov_b32 s4, 52"]): I(x)
    for x in q_offs_imm(1): I(x)
    flat(stage_dma(1))
    for x in trace_pt(["s_mov_b32 s4, 53"]): I(x)
    stamp(1)
    I("s_waitcnt vmcnt(8)")
    for x in trace_pt(["s_mov_b32 s4, 54"]): I(x)
    I("s_barrier")
    stamp(2)
    for T in range(6):
        for s_ in a_reads(0, T): I(s_)
    for j in range(5): I(b_read(0, j))
    for x in q_offs_imm(2): I(x)
    I("s_mov_b32 %s, %s" % (sr(sKQ), sr(sWOFF)))
    flat(stage_dma(2))
    flat(x_dma(1))
    for x in trace_pt(["s_mov_b32 s4, 55"]): I(x)
    I("s_waitcnt lgkmcnt(0)")
    I("s_mov_b32 %s, 0" % sr(sKK))
    E("K1_QLOOP:")
    XMODE[0] = 'q'
    kvoff = []
    for m in range(4):
        kvoff += ["v_add_u32 %s, %d, %s" % (vr(t0), 4 * m, vr(vg)), "v_xor_b32 %s, %s, %s" % (vr(t0), vr(t0), vr(vi)),
                  "v_lshlrev_b32 %s, 4, %s" % (vr(t0), vr(t0)), "v_lshl_add_u32 %s, %s, 8, %s" % (vr(vKD + m), vr(vg), vr(t0))]
    for m in range(2):
        kvoff += ["v_add_u32 %s, %d, %s" % (vr(t0), 4 * m, vr(vg)), "v_lshlrev_b32 %s, 1, %s" % (vr(t0), vr(t0)), "v_xor_b32 %s, %s, %s" % (vr(t0), vr(t0), vr(vi)),
                  "v_lshlrev_b32 %s, 4, %s" % (vr(t0), vr(t0)), "v_lshl_add_u32 %s, %s, 8, %s" % (vr(vVD + m), vr(vg), vr(t0))]
    def q_step(v, kind="loop", shared=None):
        u = v % 3
        un = (u + 1) % 3
        last = (kind == "kv2")
        mf = []
        for p in range(4):
            for j in range(5):
                for T in (2 * p, 2 * p + 1):
                    mf.append(mfma(vr(qacc(T, j), 4), vr(WF + 4 * T, 4), vr(XF + 4 * j, 4), vr(qacc(T, j), 4)))
        F = Fill(40)
        F.put(-1, "s_waitcnt lgkmcnt(6)")
        F.put(1, "s_waitcnt lgkmcnt(3)"); F.put(3, "s_waitcnt lgkmcnt(2)"); F.put(5, "s_waitcnt lgkmcnt(1)"); F.put(7, "s_waitcnt lgkmcnt(0)")
        F.put(8, a_reads(u, 6)); F.put(9, a_reads(u, 7))
        steady = 8 + (5 if (v - 1) % 2 == 1 else 0)
        if kind == "kv1": steady = 3 if cfg.pf_wo else 0
        tr = trace_pt(["s_add_u32 s4, %s, %d" % (sr(sKK), v)])
        if not last:
            F.put(14, ["s_waitcnt vmcnt(%d) lgkmcnt(0)" % steady, "s_barrier"] + tr)
            F.put(15, a_reads(un, 0)); F.put(16, a_reads(un, 1))
            F.put(20, a_reads(un, 2)); F.put(21, a_reads(un, 3))
            F.put(30, a_reads(un, 4)); F.put(32, a_reads(un, 5))
            for j in range(5): F.put(31 + 2 * j, b_read(v + 1, j))
        else:
            F.put(14, tr)
        items = []
        if kind == "loop":
            offs = ["s_add_u32 %s, %s, 262144" % (sr(sKQ), sr(sKQ)), "s_cmp_eq_u32 %s, %d" % (sr(sKQ), 18 * 262144), "s_cselect_b32 %s, 0, %s" % (sr(sKQ), sr(sKQ)),
                    "s_lshr_b32 %s, %s, 12" % (sr(sXOFF), sr(sKQ)), "s_mov_b32 %s, %s" % (sr(sWOFF), sr(sKQ))]
            F.put(0, offs[0]); F.put(2, offs[1:3]); F.put(4, offs[3:5])
            if v % 2 == 1:
                for grp in x_dma(((v + 3) >> 1) % 3): items += [[x] for x in grp]
            for grp in stage_dma(u): items += [[x] for x in grp]
        elif kind == "k0":
            pf = []
            if cfg.pf_wo:
                for rep in range(3):
                    g = ["v_add_u32 %s, %d, v0" % (vr(t0), 64 * rep), "v_add_u32 %s, %s, %s" % (vr(t0), sr(sT0), vr(t0)),
                         "v_mul_u32_u24 %s, 7282, %s" % (vr(t1), vr(t0)), "v_lshrrev_b32 %s, 16, %s" % (vr(t1), vr(t1)),
                         "v_mul_u32_u24 %s, 9, %s" % (vr(t2), vr(t1)), "v_sub_u32 %s, %s, %s" % (vr(t2), vr(t0), vr(t2)),
                         "v_add_u32 %s, %s, %s" % (vr(t1), sr(sT1), vr(t1)), "v_mul_u32_u24 %s, 1152, %s" % (vr(t1), vr(t1)),
                         "v_lshl_add_u32 %s, %s, 7, %s" % (vr(t1), vr(t2), vr(t1))]
                    if rep == 2:
                        g += ["v_cmp_gt_u32 vcc, 16, v0", "v_mov_b32 %s, 0x40000000" % vr(t2), "s_nop 0", "v_cndmask_b32 %s, %s, %s, vcc" % (vr(t1), vr(t2), vr(t1))]
                    g += ["buffer_load_dword %s, %s, %s, 0 offen" % (vr(vPF), vr(t1), sr(S_O, 4))]
                    pf += g
                F.put(0, ["s_mul_i32 %s, %s, 144" % (sr(sT0), sr(sHI)), "s_and_b32 %s, %s, 7" % (sr(sT1), sr(sB))])
                F.put(2, ["s_lshl_b32 %s, %s, 5" % (sr(sT1), sr(sT1))])
            F.flow(kvoff + pf, 10, 39, budget=3)
        elif kind == "kv1":
            F.put(0, ["s_mov_b32 %s, %s" % (sr(sKOFF), sr(sROT)), "s_lshl_b32 %s, %s, 13" % (sr(sKOFF), sr(sKOFF))])
            for grp in kv_dma(True, 0, sKOFF, shared) + kv_dma(False, 0, sKOFF, shared): items += [[x] for x in grp]
        elif kind == "kv2":
            F.put(0, ["s_add_u32 %s, %s, 1" % (sr(sKOFF), sr(sROT)), "s_and_b32 %s, %s, 15" % (sr(sKOFF), sr(sKOFF))])
            F.put(1, ["s_lshl_b32 %s, %s, 13" % (sr(sKOFF), sr(sKOFF))])
            for grp in kv_dma(True, 1, sKOFF, shared): items += [[x] for x in grp]
        if items: F.flow(items, (cfg.q_lo + 2) if kind != "kv2" else 10, cfg.q_hi, budget=cfg.q_bud)
        interleave(mf, F.f)
    def signal():
        I("s_or_b32 %s, %s, %s" % (sr(sT0), sr(sWAVE), sr(sGRP)))
        I("s_cmp_lg_u32 %s, 0" % sr(sT0))
        I("s_cbranch_scc1 K1_NOSIG")
        I("v_mov_b32 %s, %s" % (vr(t0), sr(sXCD)))
        I("v_mov_b32 %s, 1" % vr(t1))
        I("s_mov_b64 exec, 1")
        I("global_atomic_add %s, %s, s[26:27]" % (vr(t0), vr(t1)))
        I("s_mov_b64 exec, -1")
        E("K1_NOSIG:")
    for v in range(6): q_step(v, "loop")
    XMODE[0] = False
    I("s_add_u32 %s, %s, 6" % (sr(sKK), sr(sKK)))
    if cfg.stagger and cfg.sig_step == 6:
        I("s_cmp_lg_u32 %s, 6" % sr(sKK))
        I("s_cbranch_scc1 K1_NOSIG")
        signal()
    I("s_cmp_lt_u32 %s, 12" % sr(sKK))
    I("s_cbranch_scc1 K1_QLOOP")
    XMODE[0] = 'q'
    for v in range(3):
        if cfg.stagger and cfg.sig_step == 12 + v: signal()
        q_step(v, "loop")
    if cfg.stagger and cfg.sig_step == 15: signal()
    q_step(3, "k0")
    XMODE[0] = False
    I("s_cmp_eq_u32 %s, 0" % sr(sTYPE))
    I("s_cbranch_scc0 K1_B_PATH")
    for tag, shared in (("A", True), ("B", False)):
        if tag == "B": E("K1_B_PATH:")
        XMODE[0] = 'q'
        q_step(4, "kv1", shared)
        q_step(5, "kv2", shared)
        XMODE[0] = False
        stamp(3)
        I("s_nop 7"); I("s_nop 1")
        q_epilogue()
        ring_addrs()
        I("v_lshrrev_b32 %s, 3, v0" % vr(t0))
        I("s_lshl_b32 %s, %s, 7" % (sr(sT1), sr(sHI)))
        I("v_add_u32 %s, %s, %s" % (vr(t0), sr(sT1), vr(t0)))
        I("v_mul_u32_u24 %s, 1152, %s" % (vr(t0), vr(t0)))
        I("v_and_b32 %s, 1, %s" % (vr(t1), vr(vg)))
        I("v_lshlrev_b32 %s, 2, %s" % (vr(t1), vr(t1)))
        I("v_and_b32 %s, 7, v0" % vr(t2))
        I("v_xor_b32 %s, %s, %s" % (vr(t1), vr(t1), vr(t2)))
        I("v_lshl_add_u32 %s, %s, 4, %s" % (vr(vW3D), vr(t1), vr(t0)))
        for n in range(1, 4): I("v_add_u32 %s, %d, %s" % (vr(vW3D + n), n * (8 * 1152 - 1024), vr(vW3D)))
        I("s_lshl_b32 %s, %s, 16" % (sr(sBUF0), sr(sTYPE)))
        I("s_lshl_b32 %s, %s, 14" % (sr(sT1), sr(sHI)))
        I("s_add_u32 %s, %s, %s" % (sr(sBUF0), sr(sBUF0), sr(sT1)))
        I("s_add_u32 %s, %s, 65536" % (sr(sBUF0), sr(sBUF0)))
        I("s_mov_b32 %s, %s" % (sr(sVOFF), sr(sKOFF)))
        flat(kv_dma(False, 1, sVOFF, shared))
        I("s_waitcnt vmcnt(%d)" % (12 if shared else 24))
        I("s_barrier")
        for mt in range(2):
            for s_ in range(4): I(k_read(0, mt, s_))
        att_prologue_and_loop(shared, tag, True)
        if tag == "A": I("s_branch K1_LOOPS_DONE")
    E("K1_LOOPS_DONE:")
    if not cfg.wo_early:
        I("s_lshl_b32 %s, %s, 7" % (sr(sPOFF), sr(sCOFF)))
        flat(w3_dma(sBUF0, sPOFF))
        I("s_waitcnt vmcnt(16)")
    else:
        I("s_waitcnt vmcnt(0)")
    I("s_barrier")
    E("K1_POST:")
    for m in pv_group(4): I(m)
    stamp(5)
    I("s_nop 7"); I("s_nop 1")
    lv = [SS + j for j in range(5)]
    for j in range(5): I("v_accvgpr_read_b32 %s, %s" % (vr(lv[j]), ar(LA + 4 * j)))
    I("s_cmp_lg_u32 %s, 0" % sr(sRETRY))
    I("s_cbranch_scc1 K1_NORM")
    I("v_add_f32 %s, %s, %s" % (vr(t1), vr(lv[0]), vr(lv[1])))
    I("v_add_f32 %s, %s, %s" % (vr(t1), vr(t1), vr(lv[2])))
    I("v_add_f32 %s, %s, %s" % (vr(t1), vr(t1), vr(lv[3])))
    I("v_add_f32 %s, %s, %s" % (vr(t1), vr(t1), vr(lv[4])))
    I("v_mov_b32 %s, 0x4e800000" % vr(t2))
    I("v_cmp_nlt_f32 vcc, %s, %s" % (vr(t1), vr(t2)))
    I("s_nop 4")
    I("s_cbranch_vccnz K1_FALLBACK")
    E("K1_NORM:")
    I("s_mul_i32 %s, %s, 20480" % (sr(sXOWN), sr(sWAVE)))
    I("s_cmp_eq_u32 %s, 3" % sr(sWAVE))
    I("s_cselect_b32 %s, 98304, %s" % (sr(sXOWN), sr(sXOWN)))
    I("s_lshl_b32 %s, %s, 15" % (sr(sT0), sr(sTYPE)))
    I("s_lshl_b32 %s, %s, 14" % (sr(sT1), sr(sHI)))
    I("s_add_u32 %s, %s, %s" % (sr(sBUF1), sr(sT0), sr(sT1)))
    rc = [PK + 2 * j for j in range(5)]
    for j in range(5): I("v_rcp_f32 %s, %s" % (vr(rc[j]), vr(lv[j])))
    I("s_nop 0")
    for j in range(5): I("v_mov_b32 %s, %s" % (vr(rc[j] + 1), vr(rc[j])))
    tmpsets = [KF, KF + 8, KF + 16, KF + 24]
    cnt = 0
    for p in range(4):
        for j in range(5):
            tb = tmpsets[cnt % 4]; cnt += 1
            for k in range(4):
                I("v_accvgpr_read_b32 %s, %s" % (vr(tb + k), ar(oacc(2 * p, j) + k)))
                I("v_accvgpr_read_b32 %s, %s" % (vr(tb + 4 + k), ar(oacc(2 * p + 1, j) + k)))
            for k in range(0, 8, 2): I("v_pk_mul_f32 %s, %s, %s" % (vr(tb + k, 2), vr(tb + k, 2), vr(rc[j], 2)))
            ob = OFO + (p * 5 + j) * 4
            for k in range(4): I("v_cvt_pk_bf16_f32 %s, %s, %s" % (vr(ob + k), vr(tb + 2 * k), vr(tb + 2 * k + 1)))
    I("s_waitcnt vmcnt(0)")
    I("s_barrier")
    I("v_add_u32 %s, %s, %s" % (vr(t0), sr(sXOWN), vr(vLANE16)))
    for q in range(20): I("ds_write_b128 %s, %s offset:%d" % (vr(t0), vr(OFO + 4 * q, 4), q * 1024))
    I("v_lshl_add_u32 %s, %s, 2, %s" % (vr(t1), vr(vg), vr(vrr)))
    I("v_lshlrev_b32 %s, 7, %s" % (vr(t1), vr(t1)))
    I("s_lshl_b32 %s, %s, 2" % (sr(sT0), sr(sHI)))
    I("v_add_u32 %s, %s, %s" % (vr(t2), sr(sT0), vr(vc)))
    I("v_lshrrev_b32 %s, 1, %s" % (vr(t0), vr(vrr)))
    I("v_and_b32 %s, 1, %s" % (vr(t0), vr(t0)))
    I("v_lshlrev_b32 %s, 2, %s" % (vr(t0), vr(t0)))
    I("v_xor_b32 %s, %s, %s" % (vr(t2), vr(t2), vr(t0)))
    I("v_lshl_add_u32 %s, %s, 4, %s" % (vr(t1), vr(t2), vr(t1)))
    for u, bufr in enumerate((sBUF0, sBUF1)):
        I("v_add_u32 %s, %s, %s" % (vr(vA3 + 2 * u), sr(bufr), vr(t1)))
        I("s_xor_b32 %s, %s, 16384" % (sr(sT0), sr(bufr)))
        I("v_add_u32 %s, %s, %s" % (vr(vA3 + 2 * u + 1), sr(sT0), vr(t1)))
    I("s_xor_b32 %s, %s, 1" % (sr(sT0), sr(sWAVE)))
    I("s_mul_i32 %s, %s, 20480" % (sr(sT1), sr(sT0)))
    I("s_cmp_eq_u32 %s, 3" % sr(sT0))
    I("s_cselect_b32 %s, 98304, %s" % (sr(sT1), sr(sT1)))
    I("v_add_u32 %s, %s, %s" % (vr(t0), sr(sT1), vr(vLANE16)))
    I("s_waitcnt lgkmcnt(0)")
    I("s_barrier")
    for q in range(10): I("ds_read_b128 %s, %s offset:%d" % (vr(OFP + 4 * q, 4), vr(t0), q * 1024))
    I("s_waitcnt lgkmcnt(5)")
    for q in range(10, 20): I("ds_read_b128 %s, %s offset:%d" % (vr(OFP + 4 * q, 4), vr(t0), q * 1024))
    def a3_reads(u, ct, kl):
        ad = vA3 + 2 * u + (kl >> 2)
        off = (kl & 3) * 4096 + ct * 8
        return ["ds_read_b64_tr_b16 %s, %s offset:%d" % (vr(A3 + 4 * kl, 2), vr(ad), off),
                "ds_read_b64_tr_b16 %s, %s offset:%d" % (vr(A3 + 4 * kl + 2, 2), vr(ad), off + 2048)]
    I("s_waitcnt vmcnt(0) lgkmcnt(0)")
    I("s_barrier")
    I("s_add_u32 %s, %s, 1" % (sr(sT2X), sr(sCOFF)))
    I("s_lshl_b32 %s, %s, 7" % (sr(sT2X), sr(sT2X)))
    flat(w3_dma(sBUF1, sT2X)[:cfg.p3_split])
    for kl in range(6):
        for s_ in a3_reads(0, 0, kl): I(s_)
    I("s_waitcnt lgkmcnt(0)")
    stamp(6)
    I("s_mov_b32 %s, 0" % sr(sKK))
    def bfrag(kl, j): return (OFO if kl < 4 else OFP) + ((kl & 3) * 5 + j) * 4
    def pk(up, j):
        tb = PK + (j & 1) * 12
        r = []
        for k in range(4): r.append("v_accvgpr_read_b32 %s, %s" % (vr(tb + k), ar(up * 40 + j * 4 + k)))
        for k in range(4): r.append("v_accvgpr_read_b32 %s, %s" % (vr(tb + 4 + k), ar(up * 40 + (5 + j) * 4 + k)))
        for k in range(4): r.append("v_cvt_pk_bf16_f32 %s, %s, %s" % (vr(tb + 8 + k), vr(tb + 2 * k), vr(tb + 2 * k + 1)))
        st = ["s_add_u32 %s, %s, %d" % (sr(sT2), sr(sPOFF), j * 1024),
              "buffer_store_dwordx4 %s, %s, %s, %s offen %s" % (vr(tb + 8, 4), vr(vLANE16), sr(S_P, 4), sr(sT2), cfg.st_flag)]
        return r, st
    E("K1_P3LOOP:")
    XMODE[0] = 'p'
    for u in range(2):
        un = 1 - u
        up = 1 - u
        for ct in range(2):
            mf = []
            for kp in range(4):
                for j in range(5):
                    for kl in (2 * kp, 2 * kp + 1):
                        d = ar(u * 40 + (ct * 5 + j) * 4, 4)
                        mf.append(mfma(d, vr(A3 + 4 * kl, 4), vr(bfrag(kl, j), 4), d if kl else "0"))
            F = Fill(40)
            if ct == 0: F.put(-1, trace_pt(["s_add_u32 s4, %s, %d" % (sr(sKK), 40 + u)]))
            for g in (-1, 9, 19, 29): F.put(g, "s_waitcnt lgkmcnt(8)")
            F.put(0, a3_reads(u, ct, 6)); F.put(1, a3_reads(u, ct, 7))
            nu, nct = (u, 1) if ct == 0 else (un, 0)
            F.put(10, a3_reads(nu, nct, 0)); F.put(11, a3_reads(nu, nct, 1))
            F.put(20, a3_reads(nu, nct, 2)); F.put(21, a3_reads(nu, nct, 3))
            F.put(30, a3_reads(nu, nct, 4)); F.put(31, a3_reads(nu, nct, 5))
            dm_cur = []
            for grp in w3_dma(sBUF0 if u == 0 else sBUF1, sT2X): dm_cur += [[x] for x in grp]
            dm_prev = []
            for grp in w3_dma(sBUF0 if up == 0 else sBUF1, sT2X): dm_prev += [[x] for x in grp]
            def split(lst, n):
                k = 0
                for i_, it in enumerate(lst):
                    if it[0].startswith("buffer_load"):
                        k += 1
                        if k == n: return lst[:i_ + 1], lst[i_ + 1:]
            NS = cfg.p3_split
            if ct == 0:
                items = ["s_add_u32 %s, %s, %d" % (sr(sPOFF), sr(sKK), u + 8)] + wrap9(sPOFF)
                items += ["s_sub_u32 %s, %s, 9" % (sr(sT1), sr(sPOFF)), "s_cmp_ge_u32 %s, 9" % sr(sPOFF), "s_cselect_b32 %s, %s, %s" % (sr(sPOFF), sr(sT1), sr(sPOFF)),
                          "s_lshl_b32 %s, %s, 1" % (sr(sPOFF), sr(sPOFF)), "s_add_u32 %s, %s, %s" % (sr(sPOFF), sr(sPOFF), sr(sHI)), "s_mulk_i32 %s, 5120" % sr(sPOFF)]
                if u == 0:
                    items += ["s_cmp_eq_u32 %s, 0" % sr(sKK), "s_cselect_b32 %s, 0x40000000, %s" % (sr(sPOFF), sr(sPOFF))]
                pre = items
                rest = split(dm_prev, NS)[1] if NS < 16 else []
                F.flow(rest, 2, 13)
                F.flow(atomize(pre), 2, 13, spread=False)
                items = []
                for j in range(4):
                    r, st = pk(up, j)
                    items += r + st
                F.flow(items, 14, 39, budget=3)
            else:
                F.put(8, ["s_waitcnt vmcnt(4) lgkmcnt(0)", "s_barrier"])
                pre = ["s_add_u32 %s, %s, %d" % (sr(sT0), sr(sKK), u + 2), "s_mov_b32 %s, %s" % (sr(sT2X), sr(sT0))] + wrap9(sT2X) + \
                      ["s_lshl_b32 %s, %s, 7" % (sr(sT2X), sr(sT2X)), "s_cmp_lt_u32 %s, 9" % sr(sT0), "s_cselect_b32 %s, %s, 0x40000000" % (sr(sT2X), sr(sT2X))]
                F.flow(atomize(pre), 2, 7, spread=False)
                r, st = pk(up, 4)
                F.flow(r + st, 2, 18)
                first = split(dm_cur, NS)[0] if NS < 16 else dm_cur
                F.flow(first, 12, 39)
            interleave(mf, F.f)
        if u == 0:
            I("s_cmp_eq_u32 %s, 8" % sr(sKK))
            I("s_cbranch_scc1 K1_P3DONE")
    XMODE[0] = False
    I("s_add_u32 %s, %s, 2" % (sr(sKK), sr(sKK)))
    I("s_branch K1_P3LOOP")
    E("K1_P3DONE:")
    I("s_nop 7"); I("s_nop 1")
    I("s_mov_b32 %s, 8" % sr(sPOFF))
    for x in wrap9(sPOFF): I(x)
    I("s_lshl_b32 %s, %s, 1" % (sr(sPOFF), sr(sPOFF)))
    I("s_add_u32 %s, %s, %s" % (sr(sPOFF), sr(sPOFF), sr(sHI)))
    I("s_mulk_i32 %s, 5120" % sr(sPOFF))
    for j in range(5):
        r, st = pk(0, j)
        for x in r + st: I(x)
    if cfg.stamps: I("s_waitcnt vmcnt(0)")
    if cfg.fuse: fused_reduce()
    if cfg.trace:
        I("s_memtime s[6:7]"); I("s_waitcnt lgkmcnt(0)"); I("v_writelane_b32 v7, s6, 60")
        I("s_lshl_b32 s4, %s, 8" % sr(sUID)); I("s_add_u32 s4, s4, 0x4100000")
        I("v_lshlrev_b32 v6, 2, v0"); I("v_add_u32 v6, s4, v6")
        I("global_store_dword v6, v7, s[28:29]")
    stamp(7)
    stamp_out(8, 28, sUID, STAMP_OFF)
    E("K1_END:")
    I("s_endpgm")
    E("K1_FALLBACK:")
    I("s_waitcnt vmcnt(0) lgkmcnt(0)")
    I("s_cmp_eq_u32 %s, 1" % sr(sWAVE))
    I("s_cselect_b32 %s, %d, %s" % (sr(sLW), FBW1, sr(sLW)))
    ring_addrs()
    mx = [VF + j for j in range(5)]
    for j in range(5): I("v_mov_b32 %s, 0xff800000" % vr(mx[j]))
    I("s_mov_b32 %s, 0" % sr(sKOFF))
    E("K1_FB_LOOP:")
    flat(kv_dma(True, 0, sKOFF))
    I("s_waitcnt vmcnt(0)")
    for mt in range(2):
        for s_ in range(4): I(k_read(0, mt, s_))
    I("s_waitcnt lgkmcnt(0)")
    for j in range(5):
        for m in qk_group(j, czero=True): I(m)
    I("s_nop 7"); I("s_nop 1")
    for j in range(5):
        b_ = SS + 8 * j
        for k in range(0, 8, 2): I("v_max3_f32 %s, %s, %s, %s" % (vr(mx[j]), vr(mx[j]), vr(b_ + k), vr(b_ + k + 1)))
    I("s_add_u32 %s, %s, 8192" % (sr(sKOFF), sr(sKOFF)))
    I("s_cmp_lt_u32 %s, 131072" % sr(sKOFF))
    I("s_cbranch_scc1 K1_FB_LOOP")
    for j in range(5):
        I("v_mov_b32 %s, %s" % (vr(t0), vr(mx[j])))
        xlane_max(t0, t1)
        for k in range(4): I("v_sub_f32 %s, 0, %s" % (vr(NM + 4 * j + k), vr(t0)))
    for r in range(180): I("v_accvgpr_write_b32 %s, 0" % ar(r))
    I("s_mov_b32 %s, 1" % sr(sRETRY))
    tile_off(sKOFF, 0); tile_off(sVOFF, 0)
    flat(kv_dma(True, 0, sKOFF)); flat(kv_dma(False, 0, sVOFF))
    tile_off(sKOFF, 1); tile_off(sVOFF, 1)
    flat(kv_dma(True, 1, sKOFF)); flat(kv_dma(False, 1, sVOFF))
    I("s_waitcnt vmcnt(24)")
    for mt in range(2):
        for s_ in range(4): I(k_read(0, mt, s_))
    att_prologue_and_loop(False, "R", False)
    I("s_cmp_eq_u32 %s, 1" % sr(sWAVE))
    I("s_cbranch_scc0 K1_POST")
    I("s_waitcnt vmcnt(0) lgkmcnt(0)")
    I("s_lshl_b32 %s, %s, 7" % (sr(sPOFF), sr(sCOFF)))
    flat(w3_dma(sBUF0, sPOFF))
    I("s_xor_b32 %s, %s, 16384" % (sr(sT0), sr(sBUF0)))
    for n in range(4): I("v_subrev_u32 %s, %d, %s" % (vr(vW3D + n), 128 * 1152, vr(vW3D + n)))
    flat(w3_dma(sT0, sPOFF))
    for n in range(4): I("v_add_u32 %s, %d, %s" % (vr(vW3D + n), 128 * 1152, vr(vW3D + n)))
    I("s_branch K1_POST")

def gen_k2():
    E(".globl reduce_kernel"); E(".p2align 8"); E(".type reduce_kernel,@function"); E("reduce_kernel:")
    I("s_cmp_ge_u32 s2, 720")
    I("s_cbranch_scc1 K2_END")
    I("s_load_dwordx2 s[8:9], s[0:1], 80")
    I("s_load_dwordx2 s[10:11], s[0:1], 96")
    stamp(0)
    I("v_lshrrev_b32 v1, 6, v0")
    I("v_and_b32 v0, 63, v0")
    I("v_readfirstlane_b32 s12, v1")
    I("s_lshl_b32 s13, s2, 2")
    I("v_lshlrev_b32 v2, 4, v0")
    I("s_add_u32 s13, s13, s12")
    I("s_mov_b32 s78, s13")
    I("s_mul_i32 s14, s13, 46604")
    I("s_lshr_b32 s14, s14, 22")
    for u in range(2880): assert (u * 46604) >> 22 == u // 90
    I("s_mul_i32 s15, s14, 90")
    I("s_sub_u32 s15, s13, s15")
    I("s_lshr_b32 s16, s14, 4")
    I("s_and_b32 s17, s14, 15")
    I("s_mul_i32 s18, s16, %d" % PSTR_TYPE)
    I("s_mul_i32 s19, s17, 92160")
    I("s_add_u32 s18, s18, s19")
    I("s_lshl_b32 s19, s15, 10")
    I("s_add_u32 s18, s18, s19")
    I("s_waitcnt lgkmcnt(0)")
    I("s_add_u32 s20, s10, s18")
    I("s_addc_u32 s21, s11, 0")
    I("s_and_b32 s21, s21, 0xffff")
    I("s_mov_b32 s22, %d" % (15 * PSTR_HP + 1024))
    I("s_mov_b32 s23, 0x20000")
    for hp in range(16):
        I("s_mov_b32 s24, %d" % (hp * PSTR_HP))
        I("buffer_load_dwordx4 %s, v2, s[20:23], s24 offen %s" % (vr(16 + 4 * hp, 4), cfg.k2_flag))
    I("s_mul_i32 s25, s15, 13108")
    I("s_lshr_b32 s25, s25, 16")
    for q in range(90): assert (q * 13108) >> 16 == q // 5
    I("s_mul_i32 s26, s25, 5")
    I("s_sub_u32 s26, s15, s26")
    I("s_mul_i32 s29, s17, 80")
    I("s_lshl_b32 s30, s26, 4")
    I("s_add_u32 s29, s29, s30")
    I("v_and_b32 v3, 15, v0")
    I("v_add_u32 v3, s29, v3")
    I("v_mul_u32_u24 v3, 2304, v3")
    I("v_lshrrev_b32 v4, 4, v0")
    I("v_lshl_add_u32 v3, v4, 4, v3")
    I("s_mul_i32 s30, s16, 1152")
    I("s_lshl_b32 s31, s25, 6")
    I("s_add_u32 s30, s30, s31")
    I("s_mov_b32 s32, s8")
    I("s_and_b32 s33, s9, 0xffff")
    I("s_mov_b32 s34, %d" % (16 * 80 * 1152 * 2))
    I("s_mov_b32 s35, 0x20000")
    I("s_mov_b32 s36, 0xffff0000")
    for hp in range(16):
        I("s_waitcnt vmcnt(%d)" % (15 - hp))
        for k in range(4):
            src = 16 + 4 * hp + k
            if hp == 0:
                I("v_lshlrev_b32 %s, 16, %s" % (vr(8 + 2 * k), vr(src)))
                I("v_and_b32 %s, s36, %s" % (vr(9 + 2 * k), vr(src)))
            else:
                I("v_lshlrev_b32 v5, 16, %s" % vr(src))
                I("v_and_b32 v6, s36, %s" % vr(src))
                I("v_add_f32 %s, %s, v5" % (vr(8 + 2 * k), vr(8 + 2 * k)))
                I("v_add_f32 %s, %s, v6" % (vr(9 + 2 * k), vr(9 + 2 * k)))
    for k in range(4): I("v_cvt_pk_bf16_f32 %s, %s, %s" % (vr(16 + k), vr(8 + 2 * k), vr(9 + 2 * k)))
    I("buffer_store_dwordx4 v[16:19], v3, s[32:35], s30 offen")
    if cfg.stamps: I("s_waitcnt vmcnt(0)")
    stamp(1)
    stamp_out(2, 10, 78, STAMP_OFF + 0x10000)
    E("K2_END:")
    I("s_endpgm")

def kd(name, nv, ns, acc):
    E(".amdhsa_kernel %s" % name)
    E("  .amdhsa_next_free_vgpr %d" % nv)
    E("  .amdhsa_next_free_sgpr %d" % ns)
    E("  .amdhsa_accum_offset %d" % acc)
    E("  .amdhsa_group_segment_fixed_size 0")
    E("  .amdhsa_kernarg_size 104")
    E("  .amdhsa_user_sgpr_count 2")
    E("  .amdhsa_user_sgpr_kernarg_segment_ptr 1")
    E("  .amdhsa_system_sgpr_workgroup_id_x 1")
    E(".end_amdhsa_kernel")

KN = "concat_heads__gqa_block_cached__mha_block_cached__near_ridge_kernel" if cfg.fuse else "attn_kernel"
if cfg.fuse:
    E("; @launch grid=(256,1,1) block=(256,1,1) lds=%d" % K1_LDS)
else:
    E("; @launch kernel=attn_kernel grid=(256,1,1) block=(256,1,1) lds=%d" % K1_LDS)
    E("; @launch kernel=reduce_kernel grid=(720,1,1) block=(256,1,1) lds=0")
E('.amdgcn_target "amdgcn-amd-amdhsa--gfx950"')
E(".text")
gen_k1()
if not cfg.fuse: gen_k2()
E('.section .rodata,"a"')
E(".p2align 6")
kd(KN, 512, 102, 256)
if not cfg.fuse:
    E(".p2align 6")
    kd("reduce_kernel", 80, 102, 80)
print("\n".join(L))
```

```python
import sys, math, struct

class Cfg:
    nt_kv = 1
    stamps = 0
    trace = 0
    st_flag = "sc1"
    rot = 1
    krot = 1
    capA = 5
    capB = 0
    q_lo = 17
    q_hi = 39
    wo_pf = 0
    wo_step = 14
    wo_n = 1
    p3_first = 10
cfg = Cfg()
for a in sys.argv[1:]:
    if "=" in a:
        k, v = a.split("=")
        setattr(cfg, k, int(v) if isinstance(getattr(cfg, k), int) else v)

L = []
def E(s=""): L.append(s)
def I(s):
    if s.endswith(":"): L.append(s)
    else: L.append("  " + s)
def vr(b, n=1): return "v%d" % b if n == 1 else "v[%d:%d]" % (b, b + n - 1)
def ar(b, n=1): return "a%d" % b if n == 1 else "a[%d:%d]" % (b, b + n - 1)
def sr(b, n=1): return "s%d" % b if n == 1 else "s[%d:%d]" % (b, b + n - 1)
MFMA = "v_mfma_f32_16x16x32_bf16"
def mfma(d, a, b, c): return "%s %s, %s, %s, %s" % (MFMA, d, a, b, c)
def f32bits(x): return struct.unpack("<I", struct.pack("<f", x))[0]

def stamp(k):
    if cfg.stamps: I("s_memrealtime s[%d:%d]" % (80 + 2 * k, 81 + 2 * k))
def stamp_out(n, wsreg, idreg, off):
    if cfg.stamps:
        I("s_waitcnt lgkmcnt(0)")
        I("s_lshl_b32 s98, %s, 5" % sr(idreg))
        I("s_add_u32 s98, s98, 0x%x" % off)
        for k in range(8): I("v_mov_b32 v%d, %s" % (8 + k, ("s%d" % (80 + 2 * k)) if k < n else "0"))
        I("v_mov_b32 v16, s98")
        I("global_store_dwordx4 v16, v[8:11], %s" % sr(wsreg, 2))
        I("global_store_dwordx4 v16, v[12:15], %s offset:16" % sr(wsreg, 2))
def trace_pt(idx_lines):
    if not cfg.trace: return []
    return ["s_memtime s[6:7]", "s_waitcnt lgkmcnt(0)"] + idx_lines + ["v_mov_b32 v6, s6", "v_cmp_eq_u32 vcc, s4, v0", "s_nop 1", "v_cndmask_b32 v7, v7, v6, vcc"]

def interleave(mf, fills):
    for s in fills.get(-1, []): I(s)
    for i, m in enumerate(mf):
        I(m)
        for s in fills.get(i, []): I(s)
class Fill:
    def __init__(self, n): self.n = n; self.f = {}; self.load = {}
    @staticmethod
    def cost(ins):
        c = 0
        for x in ins:
            if x.endswith(":"): continue
            c += 2 if x.startswith("v_exp") or x.startswith("v_rcp") else 1
        return c
    def put(self, g, ins):
        ins = ins if isinstance(ins, list) else [ins]
        self.f.setdefault(g, []).extend(ins); self.load[g] = self.load.get(g, 0) + self.cost(ins)
    def flow(self, items, lo, hi, budget=2, spread=True):
        items = [x if isinstance(x, list) else [x] for x in items]
        n = len(items); g = lo
        for i, it in enumerate(items):
            tgt = lo + (i * (hi - lo + 1)) // n if spread else lo
            g = max(g, tgt)
            c = self.cost(it)
            while g <= hi and self.load.get(g, 0) + c > max(budget, c): g += 1
            if g > hi: g = hi
            self.put(g, it)
def atomize(lst):
    out = []
    for x in lst:
        if out and isinstance(out[-1], list) and out[-1][0].startswith("s_cmp") and x.startswith("s_cselect"): out[-1].append(x)
        elif x.startswith("s_cmp"): out.append([x])
        else: out.append(x)
    return out
def add_fill(f, gap, ins): f.setdefault(gap, []).extend(ins if isinstance(ins, list) else [ins])
def flat(groups):
    for g in groups:
        for s in g: I(s)
def singles(groups):
    r = []
    for g in groups:
        if any(x.startswith("s_mov_b32 exec") for x in g): r.append(g)
        else: r += [[x] for x in g]
    return r

QSCALE = math.log2(math.e) / math.sqrt(128.0)
NTS = "nt " if cfg.nt_kv else ""
PSTR_HQ = 16 * 92160
PSTR_TYPE = 8 * PSTR_HQ
STAMP_OFF = 0x4000000

S_K, S_V, S_W, S_X, S_O, S_P = 32, 36, 40, 44, 48, 52
sWAVE, sTYPE, sHQ, sHI, sB, sH = 56, 57, 58, 59, 60, 61
sLW = 62
sT0, sT1, sT2, sT3 = 64, 65, 66, 67
sKK = 68
sWOFF, sXOFF = 69, 70
sBUF0, sBUF1 = 71, 72
sVOFF, sKOFF = 73, 74
sKQ = 75
sHALF = 76
sUID = 78
sPOFF = 79
sROT, sTI = 96, 97
sCOFF = 98
sMW = [99, 100, 101]
sMX = [30, 31, 63]
sQOFF = 3
sRETRY = 5
sT2X = 69
sXOWN = 70
QF, SS, PP, KF, VF, NM = 16, 96, 136, 144, 176, 208
vKR, vVR, vKD, vVD = 228, 232, 246, 250
vWD, vXD = 246, 250
vAR = 228
vBR = 240
vLANE16 = 254
vg, vi, vrr, vc = 9, 10, 11, 12
t0, t1, t2 = 13, 14, 15
QACC, WF, XF = 16, 176, 208
OA, LA, ONE = 0, 160, 180
def oacc(T, j): return OA + (j * 8 + T) * 4
def qacc(T, j): return QACC + (j * 8 + T) * 4
WQB = [u * 32768 for u in range(3)]
XB_ = [98304 + u * 10240 for u in range(3)]
K1_LDS = 163840
OFO = 16
A3 = 176
vA3 = 232
vW3D = 1
vL8 = 5
PK = 208
P3B = [98304, 0]

def dma(voff, srd, soff, imm, nt=""):
    assert 0 <= imm < 4096
    return "buffer_load_dwordx4 %s, %s, %s offen offset:%d %slds" % (vr(voff), sr(srd, 4), soff, imm, nt)

def stage_dma(u):
    r = []
    for n in range(8):
        pre = []
        if n == 0: pre = ["s_mov_b32 m0, %s" % sr(sMW[u]), "s_nop 0"]
        if n == 4: pre = ["s_add_u32 m0, %s, 4096" % sr(sMW[u]), "s_add_u32 %s, %s, 32768" % (sr(sT3), sr(sWOFF))]
        r.append(pre + [dma(vWD + (n & 3), S_W, sr(sWOFF) if n < 4 else sr(sT3), (n & 3) * 1024)])
    return r
def x_dma(ub):
    r = [["s_mov_b32 m0, %s" % sr(sMX[ub]), "s_nop 0", dma(vXD + 0, S_X, sr(sXOFF), 0)]]
    r.append([dma(vXD + 1, S_X, sr(sXOFF), 1024)])
    r.append(["s_mov_b32 exec_hi, 0", dma(vXD + 2, S_X, sr(sXOFF), 2048), "s_mov_b32 exec_hi, -1"])
    return r
def q_offs_imm(t):
    return ["s_add_u32 %s, %s, %d" % (sr(sT2), sr(sQOFF), t), "s_sub_u32 %s, %s, 18" % (sr(sT3), sr(sT2)), "s_cmp_ge_u32 %s, 18" % sr(sT2),
            "s_cselect_b32 %s, %s, %s" % (sr(sT2), sr(sT3), sr(sT2)), "s_lshl_b32 %s, %s, 18" % (sr(sWOFF), sr(sT2)), "s_lshl_b32 %s, %s, 6" % (sr(sXOFF), sr(sT2))]

def kv_dma(is_k, slot_par, soff, shared=False, cap=0):
    base = slot_par * 16384 + (0 if is_k else 8192)
    srd = S_K if is_k else S_V
    tmp = sT0 if is_k else sT1
    thr = ["s_waitcnt vmcnt(%d)" % (cap - 1)] if cap else []
    r = []
    if shared:
        for n in range(4):
            pre = []
            if n == 0:
                pre = ["s_add_u32 %s, %s, %s" % (sr(tmp), sr(sLW), sr(sHALF)), "s_add_u32 m0, %s, %d" % (sr(tmp), base),
                       "s_add_u32 %s, %s, %s" % (sr(tmp), sr(soff), sr(sHALF))]
            vo = (vKD + n) if is_k else (vVD + (n & 1))
            r.append(pre + thr + [dma(vo, srd, sr(tmp), n * 1024, NTS)])
        return r
    for n in range(8):
        pre = []
        if n == 0: pre = ["s_add_u32 m0, %s, %d" % (sr(sLW), base), "s_nop 0"]
        if n == 4: pre = ["s_add_u32 m0, %s, %d" % (sr(sLW), base + 4096), "s_add_u32 %s, %s, 4096" % (sr(tmp), sr(soff))]
        vo = (vKD + (n & 3)) if is_k else (vVD + (n & 1))
        so = sr(soff) if n < 4 else sr(tmp)
        r.append(pre + thr + [dma(vo, srd, so, (n & 3) * 1024, NTS)])
    return r
def tile_off(dst, idx):
    I("s_add_u32 %s, %s, %d" % (sr(dst), sr(sROT), idx))
    I("s_and_b32 %s, %s, 15" % (sr(dst), sr(dst)))
    I("s_lshl_b32 %s, %s, 13" % (sr(dst), sr(dst)))
def next_offs():
    r = []
    r.append(["s_add_u32 %s, %s, 1" % (sr(sTI), sr(sTI)), "s_add_u32 %s, %s, %s" % (sr(sT2), sr(sTI), sr(sROT))])
    r.append(["s_add_u32 %s, %s, 2" % (sr(sVOFF), sr(sT2)), "s_and_b32 %s, %s, 15" % (sr(sVOFF), sr(sVOFF))])
    r.append(["s_lshl_b32 %s, %s, 13" % (sr(sVOFF), sr(sVOFF)), "s_cmp_lt_u32 %s, 14" % sr(sTI), "s_cselect_b32 %s, %s, 0x40000000" % (sr(sVOFF), sr(sVOFF))])
    r.append(["s_add_u32 %s, %s, 3" % (sr(sKOFF), sr(sT2)), "s_and_b32 %s, %s, 15" % (sr(sKOFF), sr(sKOFF))])
    r.append(["s_lshl_b32 %s, %s, 13" % (sr(sKOFF), sr(sKOFF)), "s_cmp_lt_u32 %s, 13" % sr(sTI), "s_cselect_b32 %s, %s, 0x40000000" % (sr(sKOFF), sr(sKOFF))])
    return r
def a_reads(u, T):
    ad, off = vAR + 4 * u + (T >> 1), (T & 1) * 8
    return ["ds_read_b64_tr_b16 %s, %s offset:%d" % (vr(WF + 4 * T, 2), vr(ad), off),
            "ds_read_b64_tr_b16 %s, %s offset:%d" % (vr(WF + 4 * T + 2, 2), vr(ad), off + 4096)]
def b_read(kk, j):
    return "ds_read_b128 %s, %s offset:%d" % (vr(XF + 4 * j, 4), vr(vBR + ((kk >> 1) % 3) * 2 + (kk & 1)), j * 2048)
def k_read(par, mt, s):
    return "ds_read_b128 %s, %s offset:%d" % (vr(KF + (mt * 4 + s) * 4, 4), vr(vKR + s), par * 16384 + mt * 4096)
def v_reads(par, T):
    off = 8192 + par * 16384
    return ["ds_read_b64_tr_b16 %s, %s offset:%d" % (vr(VF + 4 * T, 2), vr(vVR + T), off),
            "ds_read_b64_tr_b16 %s, %s offset:%d" % (vr(VF + 4 * T + 2, 2), vr(vVR + T), off + 4096)]
def qk_group(j, czero=False):
    r = []
    for mt in range(2):
        for s in range(4):
            d = vr(SS + 8 * j + 4 * mt, 4)
            c = d if s else ("0" if czero else vr(NM + 4 * j, 4))
            r.append(mfma(d, vr(KF + (mt * 4 + s) * 4, 4), vr(QF + (j * 4 + s) * 4, 4), c))
    return r
def pv_group(j):
    p = vr(PP + 4 * (j & 1), 4)
    r = [mfma(ar(oacc(T, j), 4), vr(VF + 4 * T, 4), p, ar(oacc(T, j), 4)) for T in range(8)]
    r.append(mfma(ar(LA + 4 * j, 4), ar(ONE, 4), p, ar(LA + 4 * j, 4)))
    return r
def exps(j): return ["v_exp_f32 %s, %s" % (vr(SS + 8 * j + k), vr(SS + 8 * j + k)) for k in range(8)]
def cvts(j): return ["v_cvt_pk_bf16_f32 %s, %s, %s" % (vr(PP + 4 * (j & 1) + k), vr(SS + 8 * j + 2 * k), vr(SS + 8 * j + 2 * k + 1)) for k in range(4)]

def att_step(e, shared):
    mf = pv_group(4) + qk_group(3)
    f = {}
    if shared: add_fill(f, -1, ["s_waitcnt vmcnt(8)", "s_barrier"])
    else: add_fill(f, -1, "s_waitcnt vmcnt(24)")
    add_fill(f, -1, trace_pt(["s_add_u32 s4, %s, 20" % sr(sTI)]))
    for T in range(8): add_fill(f, T, v_reads(e, T))
    ex, cv = exps(0), cvts(0)
    for k in range(8): add_fill(f, 8 + k, ex[k])
    add_fill(f, 11, cv[0]); add_fill(f, 13, cv[1]); add_fill(f, 15, cv[2]); add_fill(f, 16, ["s_nop 0", cv[3]])
    interleave(mf, f)
    mf = qk_group(4) + pv_group(0)
    f = {}
    if not shared: add_fill(f, -1, "s_waitcnt vmcnt(16)")
    for mt in range(2):
        for s in range(4): add_fill(f, mt * 4 + s, k_read(1 - e, mt, s))
    add_fill(f, 7, "s_waitcnt lgkmcnt(8)")
    ex, cv = exps(1), cvts(1)
    for k in range(4): add_fill(f, 2 * k, ex[k])
    for k in range(4): add_fill(f, 8 + 2 * k, ex[4 + k])
    add_fill(f, 5, cv[0]); add_fill(f, 9, cv[1]); add_fill(f, 13, cv[2]); add_fill(f, 16, cv[3])
    cap = cfg.capA if shared else cfg.capB
    vd = kv_dma(False, e, sVOFF, shared, cap)
    kd = kv_dma(True, 1 - e, sKOFF, shared, cap)
    if not shared:
        add_fill(f, 11, vd[0]); add_fill(f, 13, vd[1]); add_fill(f, 15, vd[2])
    interleave(mf, f)
    def plain_sb(j, dmas, pre=None):
        mf = qk_group((j - 2) % 5) + pv_group(j - 1)
        f = {}
        if pre: add_fill(f, -1, pre)
        ex, cv = exps(j), cvts(j)
        for k in range(8): add_fill(f, 2 * k, ex[k])
        add_fill(f, 3, cv[0]); add_fill(f, 7, cv[1]); add_fill(f, 11, cv[2]); add_fill(f, 15, cv[3])
        for g, d in zip([1, 5, 9, 13, 16], dmas): add_fill(f, g, d)
        interleave(mf, f)
    no = next_offs()
    if shared:
        plain_sb(2, vd[0:4], ["s_waitcnt lgkmcnt(0)", "s_barrier"])
        plain_sb(3, kd[0:4])
        plain_sb(4, no)
    else:
        plain_sb(2, vd[3:8], "s_waitcnt lgkmcnt(0)")
        plain_sb(3, kd[0:4])
        plain_sb(4, kd[4:8] + [no[0] + no[1] + no[2] + no[3] + no[4]])

def xlane_max(x, y):
    I("v_mov_b32 %s, %s" % (vr(y), vr(x))); I("s_nop 1")
    I("v_permlane32_swap_b32 %s, %s" % (vr(x), vr(y))); I("s_nop 1")
    I("v_max_f32 %s, %s, %s" % (vr(x), vr(x), vr(y)))
    I("v_mov_b32 %s, %s" % (vr(y), vr(x))); I("s_nop 1")
    I("v_permlane16_swap_b32 %s, %s" % (vr(x), vr(y))); I("s_nop 1")
    I("v_max_f32 %s, %s, %s" % (vr(x), vr(x), vr(y)))
def srd(S, off_sreg, nrec):
    if off_sreg is not None:
        I("s_add_u32 %s, %s, %s" % (sr(S), sr(S), sr(off_sreg)))
        I("s_addc_u32 %s, %s, 0" % (sr(S + 1), sr(S + 1)))
    I("s_and_b32 %s, %s, 0xffff" % (sr(S + 1), sr(S + 1)))
    if nrec is not None: I("s_mov_b32 %s, %d" % (sr(S + 2), nrec))
    I("s_mov_b32 %s, 0x20000" % sr(S + 3))
def q_epilogue():
    I("s_mov_b32 %s, 0x%08x" % (sr(sT2), f32bits(QSCALE)))
    I("s_mov_b32 %s, %s" % (sr(sT3), sr(sT2)))
    for j in range(5):
        for s in range(4):
            src = qacc(2 * s, j)
            for k in range(0, 8, 2): I("v_pk_mul_f32 %s, %s, %s" % (vr(src + k, 2), vr(src + k, 2), sr(sT2, 2)))
            dst = QF + (j * 4 + s) * 4
            for k in range(4): I("v_cvt_pk_bf16_f32 %s, %s, %s" % (vr(dst + k), vr(src + 2 * k), vr(src + 2 * k + 1)))
def att_prologue_and_loop(shared, tag, retry=False):
    E("K1_ATT_COMMON_%s:" % tag)
    I("s_waitcnt lgkmcnt(0)")
    if shared: I("s_barrier")
    tile_off(sKOFF, 2)
    flat(kv_dma(True, 0, sKOFF, shared))
    tile_off(sVOFF, 2)
    tile_off(sKOFF, 3)
    I("s_mov_b32 %s, 0" % sr(sTI))
    for j in range(5):
        for m in qk_group(j, czero=True): I(m)
    I("s_nop 7"); I("s_nop 1")
    if not retry:
        for j in range(5):
            b = SS + 8 * j
            I("v_max3_f32 %s, %s, %s, %s" % (vr(t0), vr(b), vr(b + 1), vr(b + 2)))
            I("v_max3_f32 %s, %s, %s, %s" % (vr(t0), vr(t0), vr(b + 3), vr(b + 4)))
            I("v_max3_f32 %s, %s, %s, %s" % (vr(t0), vr(t0), vr(b + 5), vr(b + 6)))
            I("v_max_f32 %s, %s, %s" % (vr(t0), vr(t0), vr(b + 7)))
            xlane_max(t0, t1)
            for k in range(4): I("v_sub_f32 %s, 0, %s" % (vr(NM + 4 * j + k), vr(t0)))
    for j in range(3):
        for k in range(8): I("v_add_f32 %s, %s, %s" % (vr(SS + 8 * j + k), vr(SS + 8 * j + k), vr(NM + 4 * j)))
    for k in range(4): I("v_mov_b32 %s, 0" % vr(PP + k))
    for k in range(32): I("v_mov_b32 %s, 0" % vr(VF + k))
    I("s_mov_b32 %s, 0" % sr(sKK))
    stamp(4)
    E("K1_ALOOP_%s:" % tag)
    if cfg.wo_pf and not retry:
        I("s_cmp_lg_u32 %s, %d" % (sr(sKK), cfg.wo_step))
        I("s_cbranch_scc1 K1_NOPF_%s" % tag)
        I("s_lshl_b32 %s, %s, 7" % (sr(sT2), sr(sWAVE)))
        I("v_add_u32 %s, %s, v0" % (vr(t0), sr(sT2)))
        I("v_mul_u32_u24 %s, 1152, %s" % (vr(t0), vr(t0)))
        for c in range(cfg.wo_n):
            I("s_add_u32 %s, %s, %d" % (sr(sT2), sr(sCOFF), c))
            I("s_lshl_b32 %s, %s, 7" % (sr(sT2), sr(sT2)))
            I("buffer_load_dword v8, %s, %s, %s offen" % (vr(t0), sr(S_O, 4), sr(sT2)))
            I("s_add_u32 %s, %s, %d" % (sr(sT2), sr(sT2), 64 * 1152))
            I("buffer_load_dword v8, %s, %s, %s offen" % (vr(t0), sr(S_O, 4), sr(sT2)))
        E("K1_NOPF_%s:" % tag)
    att_step(0, shared)
    att_step(1, shared)
    I("s_add_u32 %s, %s, 2" % (sr(sKK), sr(sKK)))
    I("s_cmp_lt_u32 %s, 16" % sr(sKK))
    I("s_cbranch_scc1 K1_ALOOP_%s" % tag)

def w3_dma(bufreg, soffreg):
    r = []
    for n in range(16):
        pre = []
        q = n >> 2
        if n & 3 == 0:
            pre = ["s_add_u32 m0, %s, %d" % (sr(bufreg), q * 4096)]
            if q: pre += ["s_add_u32 %s, %s, %d" % (sr(sT3), sr(soffreg), q * 32 * 1152)]
            else: pre += ["s_nop 0"]
        so = sr(soffreg) if q == 0 else sr(sT3)
        r.append(pre + [dma(vW3D + (n & 3), S_O, so, (n & 3) * 1024)])
    return r
def wrap9(reg):
    return ["s_add_u32 %s, %s, %s" % (sr(reg), sr(reg), sr(sCOFF)), "s_sub_u32 %s, %s, 9" % (sr(sT1), sr(reg)), "s_cmp_ge_u32 %s, 9" % sr(reg),
            "s_cselect_b32 %s, %s, %s" % (sr(reg), sr(sT1), sr(reg))]
def ring_addrs():
    for s_ in range(4):
        I("v_add_u32 %s, %d, %s" % (vr(t0), 4 * s_, vr(vg)))
        I("v_xor_b32 %s, %s, %s" % (vr(t0), vr(t0), vr(vi)))
        I("v_lshlrev_b32 %s, 4, %s" % (vr(t0), vr(t0)))
        I("v_lshl_add_u32 %s, %s, 8, %s" % (vr(t0), vr(vi), vr(t0)))
        I("v_add_u32 %s, %s, %s" % (vr(vKR + s_), sr(sLW), vr(t0)))
    I("v_lshl_add_u32 %s, %s, 2, %s" % (vr(t1), vr(vg), vr(vrr)))
    I("v_and_b32 %s, 7, %s" % (vr(t2), vr(t1)))
    I("v_lshlrev_b32 %s, 8, %s" % (vr(t1), vr(t1)))
    I("v_lshl_add_u32 %s, %s, 3, %s" % (vr(t1), vr(vc), vr(t1)))
    I("v_add_u32 %s, %s, %s" % (vr(t1), sr(sLW), vr(t1)))
    for T in range(8):
        I("v_xor_b32 %s, %d, %s" % (vr(t0), T, vr(t2)))
        I("v_lshl_add_u32 %s, %s, 5, %s" % (vr(vVR + T), vr(t0), vr(t1)))

def gen_k1():
    E(".globl attn_kernel"); E(".p2align 8"); E(".type attn_kernel,@function"); E("attn_kernel:")
    I("s_cmp_ge_u32 s2, 256")
    I("s_cbranch_scc1 K1_END")
    I("s_load_dwordx16 s[4:19], s[0:1], 0")
    I("s_load_dwordx8 s[20:27], s[0:1], 64")
    I("s_load_dwordx2 s[28:29], s[0:1], 96")
    stamp(0)
    I("v_lshrrev_b32 v1, 6, v0")
    I("v_and_b32 v0, 63, v0")
    I("v_readfirstlane_b32 %s, v1" % sr(sWAVE))
    if cfg.trace:
        I("s_memtime s[30:31]"); I("v_mov_b32 v7, 0"); I("s_waitcnt lgkmcnt(0)"); I("v_writelane_b32 v7, s30, 63")
    I("s_and_b32 %s, s2, 7" % sr(sT0))
    I("s_lshr_b32 %s, s2, 3" % sr(sT1))
    I("s_and_b32 %s, %s, 1" % (sr(sTYPE), sr(sT1)))
    I("s_lshr_b32 %s, %s, 1" % (sr(sCOFF), sr(sT1)))
    I("s_and_b32 %s, %s, 7" % (sr(sCOFF), sr(sCOFF)))
    I("s_and_b32 %s, %s, 1" % (sr(sB), sr(sT0)))
    I("s_lshl_b32 %s, %s, 3" % (sr(sB), sr(sB)))
    I("s_add_u32 %s, %s, %s" % (sr(sB), sr(sB), sr(sCOFF)))
    I("s_lshr_b32 %s, %s, 4" % (sr(sT2), sr(sT1)))
    I("s_lshr_b32 %s, %s, 1" % (sr(sHQ), sr(sT0)))
    I("s_lshl_b32 %s, %s, 1" % (sr(sHQ), sr(sHQ)))
    I("s_add_u32 %s, %s, %s" % (sr(sHQ), sr(sHQ), sr(sT2)))
    I("s_mul_i32 %s, %s, 10" % (sr(sT2), sr(sT2)))
    I("s_lshl_b32 %s, %s, 1" % (sr(sQOFF), sr(sCOFF)))
    I("s_add_u32 %s, %s, %s" % (sr(sQOFF), sr(sQOFF), sr(sT2)))
    I("s_sub_u32 %s, %s, 18" % (sr(sT2), sr(sQOFF)))
    I("s_cmp_ge_u32 %s, 18" % sr(sQOFF))
    I("s_cselect_b32 %s, %s, %s" % (sr(sQOFF), sr(sT2), sr(sQOFF)))
    if not cfg.krot:
        I("s_mov_b32 %s, 0" % sr(sQOFF)); I("s_mov_b32 %s, 0" % sr(sCOFF))
    I("v_lshrrev_b32 %s, 4, v0" % vr(vg))
    I("v_and_b32 %s, 15, v0" % vr(vi))
    I("s_and_b32 %s, %s, 1" % (sr(sHI), sr(sWAVE)))
    I("s_lshl_b32 %s, %s, 2" % (sr(sH), sr(sHQ)))
    I("s_add_u32 %s, %s, %s" % (sr(sH), sr(sH), sr(sWAVE)))
    I("s_lshl_b32 %s, %s, 12" % (sr(sHALF), sr(sHI)))
    I("s_lshl_b32 %s, s2, 2" % sr(sUID))
    I("s_add_u32 %s, %s, %s" % (sr(sUID), sr(sUID), sr(sWAVE)))
    I("s_lshl_b32 %s, %s, 15" % (sr(sLW), sr(sWAVE)))
    I("s_cmp_ge_u32 %s, 2" % sr(sWAVE))
    I("s_cselect_b32 %s, 32768, 0" % sr(sT0))
    I("s_add_u32 %s, %s, %s" % (sr(sLW), sr(sLW), sr(sT0)))
    I("s_cmp_eq_u32 %s, 0" % sr(sTYPE))
    I("s_cselect_b32 %s, %s, %s" % (sr(sLW), sr(sT0), sr(sLW)))
    I("s_lshl_b32 %s, %s, 13" % (sr(sT0), sr(sWAVE)))
    I("s_mul_i32 %s, %s, 2560" % (sr(sT1), sr(sWAVE)))
    for u in range(3):
        I("s_add_u32 %s, %s, %d" % (sr(sMW[u]), sr(sT0), WQB[u]))
        I("s_add_u32 %s, %s, %d" % (sr(sMX[u]), sr(sT1), XB_[u]))
    I("v_lshrrev_b32 %s, 2, %s" % (vr(vrr), vr(vi)))
    I("v_and_b32 %s, 3, %s" % (vr(vc), vr(vi)))
    I("v_lshlrev_b32 %s, 4, v0" % vr(vLANE16))
    I("s_lshl_b32 %s, %s, 16" % (sr(sT0), sr(sWAVE)))
    for m in range(4):
        I("v_xor_b32 %s, %d, v0" % (vr(t0), m << 2))
        I("v_lshlrev_b32 %s, 4, %s" % (vr(t0), vr(t0)))
        I("v_add_u32 %s, %s, %s" % (vr(t0), sr(sT0), vr(t0)))
        if m: I("v_add_u32 %s, %d, %s" % (vr(vWD + m), m * (8192 - 1024), vr(t0)))
        else: I("v_mov_b32 %s, %s" % (vr(vWD), vr(t0)))
    I("v_lshrrev_b32 %s, 3, v0" % vr(t1))
    I("s_mul_i32 %s, %s, 20" % (sr(sT0), sr(sWAVE)))
    I("v_add_u32 %s, %s, %s" % (vr(t1), sr(sT0), vr(t1)))
    I("v_mul_u32_u24 %s, 1152, %s" % (vr(t1), vr(t1)))
    I("s_mul_i32 %s, %s, 10" % (sr(sT0), sr(sWAVE)))
    for n in range(3):
        I("v_add_u32 %s, %s, %s" % (vr(t0), sr(sT0), vr(vg)))
        if n: I("v_add_u32 %s, %d, %s" % (vr(t0), 4 * n, vr(t0)))
        I("v_and_b32 %s, 7, %s" % (vr(t0), vr(t0)))
        I("v_and_b32 %s, 7, v0" % vr(t2))
        I("v_xor_b32 %s, %s, %s" % (vr(t0), vr(t0), vr(t2)))
        I("v_lshl_add_u32 %s, %s, 4, %s" % (vr(vXD + n), vr(t0), vr(t1)))
        if n: I("v_add_u32 %s, %d, %s" % (vr(vXD + n), n * (8 * 1152 - 1024), vr(vXD + n)))
    I("s_waitcnt lgkmcnt(0)")
    I("s_cmp_eq_u32 %s, 0" % sr(sTYPE))
    for S, a_, b_ in ((S_X, 4, 14), (S_K, 6, 16), (S_V, 8, 18), (S_W, 10, 20), (S_O, 12, 22)):
        I("s_cselect_b32 %s, s%d, s%d" % (sr(S), a_, b_))
        I("s_cselect_b32 %s, s%d, s%d" % (sr(S + 1), a_ + 1, b_ + 1))
    I("s_lshl_b32 %s, %s, 10" % (sr(sT0), sr(sHQ)))
    I("s_sub_u32 %s, %d, %s" % (sr(S_W + 2), 576 * 8192, sr(sT0)))
    srd(S_W, sT0, None)
    I("s_mul_i32 %s, %s, %d" % (sr(sT0), sr(sB), 80 * 1152))
    I("s_mov_b32 %s, %d" % (sr(S_X + 2), 80 * 1152))
    srd(S_X, sT0, None)
    for x in q_offs_imm(0): I(x)
    flat(stage_dma(0)); flat(x_dma(0))
    I("s_lshl_b32 %s, %s, 4" % (sr(sT0), sr(sB)))
    I("s_lshr_b32 %s, %s, 1" % (sr(sT1), sr(sH)))
    I("s_add_u32 %s, %s, %s" % (sr(sT0), sr(sT0), sr(sT1)))
    I("s_lshl_b32 %s, %s, 5" % (sr(sT1), sr(sB)))
    I("s_add_u32 %s, %s, %s" % (sr(sT1), sr(sT1), sr(sH)))
    I("s_cmp_eq_u32 %s, 0" % sr(sTYPE))
    I("s_cselect_b32 %s, %s, %s" % (sr(sT0), sr(sT0), sr(sT1)))
    I("s_lshl_b32 %s, %s, 17" % (sr(sT2), sr(sT0)))
    srd(S_K, sT2, 0x20000)
    srd(S_V, sT2, 0x20000)
    I("s_lshr_b32 %s, %s, 1" % (sr(sT0), sr(sWAVE)))
    I("s_cmp_eq_u32 %s, 0" % sr(sTYPE))
    I("s_cselect_b32 %s, %s, %s" % (sr(sT0), sr(sT0), sr(sWAVE)))
    I("s_mul_i32 %s, %s, 5" % (sr(sT0), sr(sT0)))
    I("s_lshr_b32 %s, s2, 1" % sr(sT1))
    I("s_add_u32 %s, %s, %s" % (sr(sROT), sr(sT0), sr(sT1)))
    I("s_and_b32 %s, %s, %d" % (sr(sROT), sr(sROT), 15 if cfg.rot else 0))
    for r in range(160): I("v_mov_b32 %s, 0" % vr(QACC + r))
    I("s_mul_i32 %s, %s, %d" % (sr(sT0), sr(sHQ), 512 * 1152))
    srd(S_O, sT0, 512 * 1152)
    I("s_mul_i32 %s, %s, %d" % (sr(sT0), sr(sTYPE), PSTR_TYPE))
    I("s_mul_i32 %s, %s, %d" % (sr(sT1), sr(sHQ), PSTR_HQ))
    I("s_add_u32 %s, %s, %s" % (sr(sT0), sr(sT0), sr(sT1)))
    I("s_mul_i32 %s, %s, 92160" % (sr(sT1), sr(sB)))
    I("s_add_u32 %s, %s, %s" % (sr(sT0), sr(sT0), sr(sT1)))
    I("s_mov_b32 %s, s28" % sr(S_P)); I("s_mov_b32 %s, s29" % sr(S_P + 1))
    srd(S_P, sT0, 92160)
    I("v_lshl_add_u32 %s, %s, 3, %s" % (vr(t1), vr(vg), vr(vrr)))
    I("v_lshlrev_b32 %s, 10, %s" % (vr(t1), vr(t1)))
    I("v_lshl_add_u32 %s, %s, 4, %s" % (vr(t1), vr(vc), vr(t1)))
    I("s_lshl_b32 %s, %s, 8" % (sr(sT0), sr(sWAVE)))
    for u in range(3):
        I("s_add_u32 %s, %s, %d" % (sr(sT2), sr(sT0), WQB[u]))
        for s_ in range(4):
            I("v_xor_b32 %s, %d, %s" % (vr(t0), s_, vr(vrr)))
            I("v_lshl_add_u32 %s, %s, 6, %s" % (vr(t0), vr(t0), vr(t1)))
            I("v_add_u32 %s, %s, %s" % (vr(vAR + 4 * u + s_), sr(sT2), vr(t0)))
    I("v_lshrrev_b32 %s, 1, %s" % (vr(t1), vr(vi)))
    for ub in range(3):
        for p_ in range(2):
            I("v_add_u32 %s, %d, %s" % (vr(t0), 4 * p_, vr(vg)))
            I("v_xor_b32 %s, %s, %s" % (vr(t0), vr(t0), vr(t1)))
            I("v_lshlrev_b32 %s, 4, %s" % (vr(t0), vr(t0)))
            I("v_lshl_add_u32 %s, %s, 7, %s" % (vr(t0), vr(vi), vr(t0)))
            I("v_add_u32 %s, %d, %s" % (vr(vBR + ub * 2 + p_), XB_[ub], vr(t0)))
    for r in range(180): I("v_accvgpr_write_b32 %s, 0" % ar(r))
    I("v_mov_b32 %s, 0x3f803f80" % vr(t0))
    for r in range(4): I("v_accvgpr_write_b32 %s, %s" % (ar(ONE + r), vr(t0)))
    I("s_mov_b32 %s, 0" % sr(sRETRY))
    for x in q_offs_imm(1): I(x)
    flat(stage_dma(1))
    stamp(1)
    I("s_waitcnt vmcnt(8)")
    I("s_barrier")
    stamp(2)
    for T in range(6):
        for s_ in a_reads(0, T): I(s_)
    for j in range(5): I(b_read(0, j))
    for x in q_offs_imm(2): I(x)
    I("s_mov_b32 %s, %s" % (sr(sKQ), sr(sWOFF)))
    flat(stage_dma(2))
    flat(x_dma(1))
    I("s_waitcnt lgkmcnt(0)")
    I("s_mov_b32 %s, 0" % sr(sKK))
    kvoff = []
    for m in range(4):
        kvoff += ["v_add_u32 %s, %d, %s" % (vr(t0), 4 * m, vr(vg)), "v_xor_b32 %s, %s, %s" % (vr(t0), vr(t0), vr(vi)),
                  "v_lshlrev_b32 %s, 4, %s" % (vr(t0), vr(t0)), "v_lshl_add_u32 %s, %s, 8, %s" % (vr(vKD + m), vr(vg), vr(t0))]
    for m in range(2):
        kvoff += ["v_add_u32 %s, %d, %s" % (vr(t0), 4 * m, vr(vg)), "v_lshlrev_b32 %s, 1, %s" % (vr(t0), vr(t0)), "v_xor_b32 %s, %s, %s" % (vr(t0), vr(t0), vr(vi)),
                  "v_lshlrev_b32 %s, 4, %s" % (vr(t0), vr(t0)), "v_lshl_add_u32 %s, %s, 8, %s" % (vr(vVD + m), vr(vg), vr(t0))]
    def q_step(v, kind="loop", shared=None):
        u = v % 3
        un = (u + 1) % 3
        last = (kind == "kv2")
        mf = []
        for p in range(4):
            for j in range(5):
                for T in (2 * p, 2 * p + 1):
                    mf.append(mfma(vr(qacc(T, j), 4), vr(WF + 4 * T, 4), vr(XF + 4 * j, 4), vr(qacc(T, j), 4)))
        F = Fill(40)
        F.put(-1, "s_waitcnt lgkmcnt(6)")
        F.put(1, "s_waitcnt lgkmcnt(3)"); F.put(3, "s_waitcnt lgkmcnt(2)"); F.put(5, "s_waitcnt lgkmcnt(1)"); F.put(7, "s_waitcnt lgkmcnt(0)")
        F.put(8, a_reads(u, 6)); F.put(9, a_reads(u, 7))
        steady = 8 + (3 if (v - 1) % 2 == 1 else 0)
        if kind == "kv1": steady = 0
        tr = trace_pt(["s_add_u32 s4, %s, %d" % (sr(sKK), v)])
        if not last:
            F.put(14, ["s_waitcnt vmcnt(%d) lgkmcnt(0)" % steady, "s_barrier"] + tr)
            F.put(15, a_reads(un, 0)); F.put(16, a_reads(un, 1))
            F.put(20, a_reads(un, 2)); F.put(21, a_reads(un, 3))
            F.put(30, a_reads(un, 4)); F.put(32, a_reads(un, 5))
            for j in range(5): F.put(31 + 2 * j, b_read(v + 1, j))
        else:
            F.put(14, ["s_waitcnt lgkmcnt(0)", "s_barrier"] + tr)
        items = []
        if kind == "loop":
            offs = ["s_add_u32 %s, %s, 262144" % (sr(sKQ), sr(sKQ)), "s_cmp_eq_u32 %s, %d" % (sr(sKQ), 18 * 262144), "s_cselect_b32 %s, 0, %s" % (sr(sKQ), sr(sKQ)),
                    "s_lshr_b32 %s, %s, 12" % (sr(sXOFF), sr(sKQ)), "s_mov_b32 %s, %s" % (sr(sWOFF), sr(sKQ))]
            F.put(0, offs[0]); F.put(2, offs[1:3]); F.put(4, offs[3:5])
            if v % 2 == 1: items += singles(x_dma(((v + 3) >> 1) % 3))
            items += singles(stage_dma(u))
        elif kind == "k0":
            F.flow(kvoff, 10, 39)
        elif kind == "kv1":
            F.put(0, ["s_mov_b32 %s, %s" % (sr(sKOFF), sr(sROT)), "s_lshl_b32 %s, %s, 13" % (sr(sKOFF), sr(sKOFF))])
            items += singles(kv_dma(True, 0, sKOFF, shared) + kv_dma(False, 0, sKOFF, shared))
        elif kind == "kv2":
            F.put(0, ["s_add_u32 %s, %s, 1" % (sr(sKOFF), sr(sROT)), "s_and_b32 %s, %s, 15" % (sr(sKOFF), sr(sKOFF))])
            F.put(1, ["s_lshl_b32 %s, %s, 13" % (sr(sKOFF), sr(sKOFF))])
            items += singles(kv_dma(True, 1, sKOFF, shared))
        if items: F.flow(items, cfg.q_lo, cfg.q_hi)
        interleave(mf, F.f)
    E("K1_QLOOP:")
    for v in range(6): q_step(v, "loop")
    I("s_add_u32 %s, %s, 6" % (sr(sKK), sr(sKK)))
    I("s_cmp_lt_u32 %s, 12" % sr(sKK))
    I("s_cbranch_scc1 K1_QLOOP")
    for v in range(3): q_step(v, "loop")
    q_step(3, "k0")
    I("s_cmp_eq_u32 %s, 0" % sr(sTYPE))
    I("s_cbranch_scc0 K1_B_PATH")
    for tag, shared in (("A", True), ("B", False)):
        if tag == "B": E("K1_B_PATH:")
        q_step(4, "kv1", shared)
        q_step(5, "kv2", shared)
        stamp(3)
        I("s_nop 7"); I("s_nop 1")
        q_epilogue()
        ring_addrs()
        I("s_mov_b32 %s, %s" % (sr(sVOFF), sr(sKOFF)))
        flat(kv_dma(False, 1, sVOFF, shared))
        I("s_waitcnt vmcnt(%d)" % (12 if shared else 24))
        if shared: I("s_barrier")
        for mt in range(2):
            for s_ in range(4): I(k_read(0, mt, s_))
        att_prologue_and_loop(shared, tag)
        if tag == "A":
            I("s_waitcnt vmcnt(0)")
            I("s_barrier")
            I("s_branch K1_POST")
    E("K1_POST:")
    for m in pv_group(4): I(m)
    stamp(5)
    I("s_nop 7"); I("s_nop 1")
    lv = [SS + j for j in range(5)]
    for j in range(5): I("v_accvgpr_read_b32 %s, %s" % (vr(lv[j]), ar(LA + 4 * j)))
    I("s_cmp_lg_u32 %s, 0" % sr(sRETRY))
    I("s_cbranch_scc1 K1_NORM")
    I("v_add_f32 %s, %s, %s" % (vr(t1), vr(lv[0]), vr(lv[1])))
    I("v_add_f32 %s, %s, %s" % (vr(t1), vr(t1), vr(lv[2])))
    I("v_add_f32 %s, %s, %s" % (vr(t1), vr(t1), vr(lv[3])))
    I("v_add_f32 %s, %s, %s" % (vr(t1), vr(t1), vr(lv[4])))
    I("v_mov_b32 %s, 0x4e800000" % vr(t2))
    I("v_cmp_nlt_f32 vcc, %s, %s" % (vr(t1), vr(t2)))
    I("s_nop 4")
    I("s_cbranch_vccnz K1_FALLBACK")
    E("K1_NORM:")
    I("v_lshrrev_b32 %s, 3, v0" % vr(t0))
    I("s_lshl_b32 %s, %s, 7" % (sr(sT1), sr(sWAVE)))
    I("v_add_u32 %s, %s, %s" % (vr(t0), sr(sT1), vr(t0)))
    I("v_mul_u32_u24 %s, 1152, %s" % (vr(t0), vr(t0)))
    I("v_lshlrev_b32 %s, 1, %s" % (vr(t1), vr(vg)))
    I("v_and_b32 %s, 7, v0" % vr(t2))
    I("v_xor_b32 %s, %s, %s" % (vr(t1), vr(t1), vr(t2)))
    I("v_lshl_add_u32 %s, %s, 4, %s" % (vr(vW3D), vr(t1), vr(t0)))
    for n in range(1, 4): I("v_add_u32 %s, %d, %s" % (vr(vW3D + n), n * (8 * 1152 - 1024), vr(vW3D)))
    I("v_lshlrev_b32 %s, 3, v0" % vr(vL8))
    I("s_lshl_b32 %s, %s, 14" % (sr(sBUF1), sr(sWAVE)))
    I("s_add_u32 %s, %s, %d" % (sr(sBUF0), sr(sBUF1), P3B[0]))
    I("s_mul_i32 %s, %s, 20480" % (sr(sXOWN), sr(sWAVE)))
    rc = [PK + 2 * j for j in range(5)]
    for j in range(5): I("v_rcp_f32 %s, %s" % (vr(rc[j]), vr(lv[j])))
    I("s_nop 0")
    for j in range(5): I("v_mov_b32 %s, %s" % (vr(rc[j] + 1), vr(rc[j])))
    tmpsets = [KF, KF + 8, KF + 16, KF + 24]
    cnt = 0
    for p in range(4):
        for j in range(5):
            tb = tmpsets[cnt % 4]; cnt += 1
            for k in range(4):
                I("v_accvgpr_read_b32 %s, %s" % (vr(tb + k), ar(oacc(2 * p, j) + k)))
                I("v_accvgpr_read_b32 %s, %s" % (vr(tb + 4 + k), ar(oacc(2 * p + 1, j) + k)))
            for k in range(0, 8, 2): I("v_pk_mul_f32 %s, %s, %s" % (vr(tb + k, 2), vr(tb + k, 2), vr(rc[j], 2)))
            ob = OFO + (p * 5 + j) * 4
            for k in range(4): I("v_cvt_pk_bf16_f32 %s, %s, %s" % (vr(ob + k), vr(tb + 2 * k), vr(tb + 2 * k + 1)))
    I("s_waitcnt vmcnt(0)")
    I("s_barrier")
    I("s_lshl_b32 %s, %s, 7" % (sr(sPOFF), sr(sCOFF)))
    flat(w3_dma(sBUF0, sPOFF))
    I("v_add_u32 %s, %s, %s" % (vr(t0), sr(sXOWN), vr(vLANE16)))
    for q in range(20): I("ds_write_b128 %s, %s offset:%d" % (vr(t0), vr(OFO + 4 * q, 4), q * 1024))
    I("v_lshl_add_u32 %s, %s, 2, %s" % (vr(t1), vr(vg), vr(vrr)))
    I("v_lshlrev_b32 %s, 7, %s" % (vr(t1), vr(t1)))
    I("v_lshrrev_b32 %s, 1, %s" % (vr(t2), vr(vrr)))
    I("v_lshl_add_u32 %s, %s, 1, %s" % (vr(t2), vr(vg), vr(t2)))
    I("v_and_b32 %s, 3, %s" % (vr(t2), vr(t2)))
    I("v_lshlrev_b32 %s, 1, %s" % (vr(t2), vr(t2)))
    I("v_lshrrev_b32 %s, 1, %s" % (vr(t0), vr(vc)))
    I("s_lshl_b32 %s, %s, 1" % (sr(sT0), sr(sWAVE)))
    I("v_add_u32 %s, %s, %s" % (vr(t0), sr(sT0), vr(t0)))
    I("v_xor_b32 %s, %s, %s" % (vr(t0), vr(t0), vr(t2)))
    I("v_lshl_add_u32 %s, %s, 4, %s" % (vr(t1), vr(t0), vr(t1)))
    I("v_and_b32 %s, 1, %s" % (vr(t0), vr(vc)))
    I("v_lshl_add_u32 %s, %s, 3, %s" % (vr(t1), vr(t0), vr(t1)))
    for q in range(4):
        I("s_add_u32 %s, %s, %d" % (sr(sT0), sr(sWAVE), q))
        I("s_and_b32 %s, %s, 3" % (sr(sT0), sr(sT0)))
        I("s_lshl_b32 %s, %s, 14" % (sr(sT0), sr(sT0)))
        I("v_add_u32 %s, %s, %s" % (vr(vA3 + 4 + q), sr(sT0), vr(t1)))
        I("v_add_u32 %s, %d, %s" % (vr(vA3 + q), P3B[0], vr(vA3 + 4 + q)))
    I("s_waitcnt lgkmcnt(0)")
    I("s_barrier")
    for q in range(1, 4):
        I("s_add_u32 %s, %s, %d" % (sr(sT0), sr(sWAVE), q))
        I("s_and_b32 %s, %s, 3" % (sr(sT0), sr(sT0)))
        I("s_mul_i32 %s, %s, 20480" % (sr(sT0), sr(sT0)))
        I("v_add_u32 %s, %s, %s" % (vr(t0), sr(sT0), vr(vLANE16)))
        for k in range(20):
            dst = vr(96 + 4 * k, 4) if q == 1 else ar(96 + (q - 2) * 80 + 4 * k, 4)
            I("ds_read_b128 %s, %s offset:%d" % (dst, vr(t0), k * 1024))
            if k % 10 == 9: I("s_waitcnt lgkmcnt(4)")
    def bfrag(kl, j):
        q, p = kl >> 2, kl & 3
        idx = (p * 5 + j) * 4
        if q == 0: return vr(OFO + idx, 4)
        if q == 1: return vr(96 + idx, 4)
        return ar(96 + (q - 2) * 80 + idx, 4)
    def a3_reads(u, kl):
        ad = vA3 + 4 * u + (kl >> 2)
        off = (kl & 3) * 4096
        sl = A3 + 4 * (kl % 8)
        return ["ds_read_b64_tr_b16 %s, %s offset:%d" % (vr(sl, 2), vr(ad), off),
                "ds_read_b64_tr_b16 %s, %s offset:%d" % (vr(sl + 2, 2), vr(ad), off + 2048)]
    I("s_waitcnt vmcnt(0) lgkmcnt(0)")
    I("s_barrier")
    I("s_add_u32 %s, %s, 1" % (sr(sT2X), sr(sCOFF)))
    I("s_lshl_b32 %s, %s, 7" % (sr(sT2X), sr(sT2X)))
    NS = cfg.p3_first
    flat(w3_dma(sBUF1, sT2X)[:NS])
    for kl in range(8):
        for s_ in a3_reads(0, kl): I(s_)
        if kl == 3: I("s_waitcnt lgkmcnt(0)")
    I("s_waitcnt lgkmcnt(0)")
    stamp(6)
    I("s_mov_b32 %s, 0" % sr(sKK))
    def pk(up, j):
        tb = PK + (j & 1) * 8
        r = ["v_accvgpr_read_b32 %s, %s" % (vr(tb + k), ar(up * 20 + j * 4 + k)) for k in range(4)]
        r += ["v_cvt_pk_bf16_f32 %s, %s, %s" % (vr(tb + 4 + k), vr(tb + 2 * k), vr(tb + 2 * k + 1)) for k in range(2)]
        st = ["s_add_u32 %s, %s, %d" % (sr(sT2), sr(sPOFF), j * 512),
              "buffer_store_dwordx2 %s, %s, %s, %s offen %s" % (vr(tb + 4, 2), vr(vL8), sr(S_P, 4), sr(sT2), cfg.st_flag)]
        return r, st
    def split(lst, n):
        k = 0
        for i_, it in enumerate(lst):
            if it[0].startswith("buffer_load"):
                k += 1
                if k == n: return lst[:i_ + 1], lst[i_ + 1:]
    E("K1_P3LOOP:")
    for u in range(2):
        un = 1 - u
        mf = []
        for kp in range(8):
            for j in range(5):
                for kl in (2 * kp, 2 * kp + 1):
                    d = ar(u * 20 + j * 4, 4)
                    mf.append(mfma(d, vr(A3 + 4 * (kl % 8), 4), bfrag(kl, j), d if kl else "0"))
        F = Fill(80)
        F.put(-1, trace_pt(["s_add_u32 s4, %s, %d" % (sr(sKK), 40 + u)]))
        for kp in range(8):
            g = 10 * kp + 10
            nb, nkl = (u, 2 * kp + 8) if kp < 4 else (un, 2 * kp - 8)
            if kp < 7:
                F.put(g, a3_reads(nb, nkl)); F.put(g + 1, a3_reads(nb, nkl + 1))
            else:
                F.put(79, a3_reads(nb, nkl) + a3_reads(nb, nkl + 1))
        for kp in range(8): F.put(10 * kp - 1, "s_waitcnt lgkmcnt(8)")
        F.put(49, ["s_waitcnt vmcnt(5) lgkmcnt(0)", "s_barrier"])
        dm_prev = singles(w3_dma(sBUF0 if un == 0 else sBUF1, sT2X))
        F.flow(split(dm_prev, NS)[1], 2, 24)
        pre = ["s_add_u32 %s, %s, %d" % (sr(sPOFF), sr(sKK), u + 8)] + wrap9(sPOFF) + \
              ["s_sub_u32 %s, %s, 9" % (sr(sT1), sr(sPOFF)), "s_cmp_ge_u32 %s, 9" % sr(sPOFF), "s_cselect_b32 %s, %s, %s" % (sr(sPOFF), sr(sT1), sr(sPOFF)),
               "s_lshl_b32 %s, %s, 2" % (sr(sPOFF), sr(sPOFF)), "s_add_u32 %s, %s, %s" % (sr(sPOFF), sr(sPOFF), sr(sWAVE)), "s_mulk_i32 %s, 2560" % sr(sPOFF)]
        if u == 0: pre += ["s_cmp_eq_u32 %s, 0" % sr(sKK), "s_cselect_b32 %s, 0x40000000, %s" % (sr(sPOFF), sr(sPOFF))]
        F.flow(atomize(pre), 2, 24, spread=False)
        items = []
        for j in range(5):
            r, st = pk(un, j)
            items += r + st
        F.flow(items, 25, 48)
        pre = ["s_add_u32 %s, %s, %d" % (sr(sT0), sr(sKK), u + 2), "s_mov_b32 %s, %s" % (sr(sT2X), sr(sT0))] + wrap9(sT2X) + \
              ["s_lshl_b32 %s, %s, 7" % (sr(sT2X), sr(sT2X)), "s_cmp_lt_u32 %s, 9" % sr(sT0), "s_cselect_b32 %s, %s, 0x40000000" % (sr(sT2X), sr(sT2X))]
        F.flow(atomize(pre), 52, 58, spread=False)
        dm_cur = singles(w3_dma(sBUF0 if u == 0 else sBUF1, sT2X))
        F.flow(split(dm_cur, NS)[0], 59, 79)
        interleave(mf, F.f)
        if u == 0:
            I("s_cmp_eq_u32 %s, 8" % sr(sKK))
            I("s_cbranch_scc1 K1_P3DONE")
    I("s_add_u32 %s, %s, 2" % (sr(sKK), sr(sKK)))
    I("s_branch K1_P3LOOP")
    E("K1_P3DONE:")
    I("s_nop 7"); I("s_nop 1")
    I("s_mov_b32 %s, 8" % sr(sPOFF))
    for x in wrap9(sPOFF): I(x)
    I("s_lshl_b32 %s, %s, 2" % (sr(sPOFF), sr(sPOFF)))
    I("s_add_u32 %s, %s, %s" % (sr(sPOFF), sr(sPOFF), sr(sWAVE)))
    I("s_mulk_i32 %s, 2560" % sr(sPOFF))
    for j in range(5):
        r, st = pk(0, j)
        for x in r + st: I(x)
    if cfg.trace:
        I("s_memtime s[6:7]"); I("s_waitcnt lgkmcnt(0)"); I("v_writelane_b32 v7, s6, 60")
        I("s_lshl_b32 s4, %s, 8" % sr(sUID)); I("s_add_u32 s4, s4, 0x4100000")
        I("v_lshlrev_b32 v6, 2, v0"); I("v_add_u32 v6, s4, v6")
        I("global_store_dword v6, v7, s[28:29]")
    if cfg.stamps: I("s_waitcnt vmcnt(0)")
    stamp(7)
    stamp_out(8, 28, sUID, STAMP_OFF)
    E("K1_END:")
    I("s_endpgm")
    E("K1_FALLBACK:")
    I("s_waitcnt vmcnt(0) lgkmcnt(0)")
    I("s_cmp_lg_u32 %s, 0" % sr(sTYPE))
    I("s_cbranch_scc1 K1_FB_RING")
    I("s_lshr_b32 %s, %s, 1" % (sr(sT0), sr(sWAVE)))
    I("s_lshl_b32 %s, %s, 15" % (sr(sT0), sr(sT0)))
    I("s_mul_i32 %s, %s, 98304" % (sr(sT1), sr(sHI)))
    I("s_add_u32 %s, %s, %s" % (sr(sLW), sr(sT0), sr(sT1)))
    E("K1_FB_RING:")
    ring_addrs()
    mx = [VF + j for j in range(5)]
    for j in range(5): I("v_mov_b32 %s, 0xff800000" % vr(mx[j]))
    I("s_mov_b32 %s, 0" % sr(sKOFF))
    E("K1_FB_LOOP:")
    flat(kv_dma(True, 0, sKOFF))
    I("s_waitcnt vmcnt(0)")
    for mt in range(2):
        for s_ in range(4): I(k_read(0, mt, s_))
    I("s_waitcnt lgkmcnt(0)")
    for j in range(5):
        for m in qk_group(j, czero=True): I(m)
    I("s_nop 7"); I("s_nop 1")
    for j in range(5):
        b_ = SS + 8 * j
        for k in range(0, 8, 2): I("v_max3_f32 %s, %s, %s, %s" % (vr(mx[j]), vr(mx[j]), vr(b_ + k), vr(b_ + k + 1)))
    I("s_add_u32 %s, %s, 8192" % (sr(sKOFF), sr(sKOFF)))
    I("s_cmp_lt_u32 %s, 131072" % sr(sKOFF))
    I("s_cbranch_scc1 K1_FB_LOOP")
    for j in range(5):
        I("v_mov_b32 %s, %s" % (vr(t0), vr(mx[j])))
        xlane_max(t0, t1)
        for k in range(4): I("v_sub_f32 %s, 0, %s" % (vr(NM + 4 * j + k), vr(t0)))
    for r in range(180): I("v_accvgpr_write_b32 %s, 0" % ar(r))
    I("s_mov_b32 %s, 1" % sr(sRETRY))
    tile_off(sKOFF, 0); tile_off(sVOFF, 0)
    flat(kv_dma(True, 0, sKOFF)); flat(kv_dma(False, 0, sVOFF))
    tile_off(sKOFF, 1); tile_off(sVOFF, 1)
    flat(kv_dma(True, 1, sKOFF)); flat(kv_dma(False, 1, sVOFF))
    I("s_waitcnt vmcnt(24)")
    for mt in range(2):
        for s_ in range(4): I(k_read(0, mt, s_))
    att_prologue_and_loop(False, "R", retry=True)
    I("s_branch K1_POST")

def gen_k2():
    E(".globl reduce_kernel"); E(".p2align 8"); E(".type reduce_kernel,@function"); E("reduce_kernel:")
    I("s_cmp_ge_u32 s2, 720")
    I("s_cbranch_scc1 K2_END")
    I("s_load_dwordx2 s[8:9], s[0:1], 80")
    I("s_load_dwordx2 s[10:11], s[0:1], 96")
    stamp(0)
    I("v_lshrrev_b32 v1, 6, v0")
    I("v_and_b32 v0, 63, v0")
    I("v_readfirstlane_b32 s12, v1")
    I("s_lshl_b32 s13, s2, 2")
    I("v_lshlrev_b32 v2, 4, v0")
    I("s_add_u32 s13, s13, s12")
    I("s_mov_b32 s78, s13")
    I("s_mul_i32 s14, s13, 46604")
    I("s_lshr_b32 s14, s14, 22")
    for u in range(2880): assert (u * 46604) >> 22 == u // 90
    I("s_mul_i32 s15, s14, 90")
    I("s_sub_u32 s15, s13, s15")
    I("s_lshr_b32 s16, s14, 4")
    I("s_and_b32 s17, s14, 15")
    I("s_mul_i32 s18, s16, %d" % PSTR_TYPE)
    I("s_mul_i32 s19, s17, 92160")
    I("s_add_u32 s18, s18, s19")
    I("s_lshl_b32 s19, s15, 10")
    I("s_add_u32 s18, s18, s19")
    I("s_waitcnt lgkmcnt(0)")
    I("s_add_u32 s20, s10, s18")
    I("s_addc_u32 s21, s11, 0")
    I("s_and_b32 s21, s21, 0xffff")
    I("s_mov_b32 s22, %d" % (7 * PSTR_HQ + 1024))
    I("s_mov_b32 s23, 0x20000")
    for hq in range(8):
        I("s_mov_b32 s24, %d" % (hq * PSTR_HQ))
        I("buffer_load_dwordx4 %s, v2, s[20:23], s24 offen" % vr(16 + 4 * hq, 4))
    I("v_lshrrev_b32 v3, 5, v0")
    I("s_lshl_b32 s25, s15, 1")
    I("v_add_u32 v3, s25, v3")
    I("v_mul_u32_u24 v4, 13108, v3")
    I("v_lshrrev_b32 v4, 16, v4")
    for q in range(180): assert (q * 13108) >> 16 == q // 5
    I("v_mul_u32_u24 v5, 5, v4")
    I("v_sub_u32 v5, v3, v5")
    I("v_and_b32 v6, 31, v0")
    I("v_lshlrev_b32 v6, 1, v6")
    I("v_and_b32 v7, 15, v6")
    I("v_lshrrev_b32 v6, 4, v6")
    I("v_lshl_add_u32 v5, v5, 4, v7")
    I("s_mul_i32 s29, s17, 80")
    I("v_add_u32 v5, s29, v5")
    I("v_mul_u32_u24 v5, 2304, v5")
    I("v_lshl_add_u32 v5, v4, 5, v5")
    I("v_lshl_add_u32 v5, v6, 3, v5")
    I("s_mul_i32 s30, s16, 1152")
    I("s_mov_b32 s32, s8")
    I("s_and_b32 s33, s9, 0xffff")
    I("s_mov_b32 s34, %d" % (16 * 80 * 1152 * 2))
    I("s_mov_b32 s35, 0x20000")
    I("s_mov_b32 s36, 0xffff0000")
    for hq in range(8):
        I("s_waitcnt vmcnt(%d)" % (7 - hq))
        for k in range(4):
            src = 16 + 4 * hq + k
            if hq == 0:
                I("v_lshlrev_b32 %s, 16, %s" % (vr(8 + 2 * k), vr(src)))
                I("v_and_b32 %s, s36, %s" % (vr(9 + 2 * k), vr(src)))
            else:
                I("v_lshlrev_b32 v3, 16, %s" % vr(src))
                I("v_and_b32 v4, s36, %s" % vr(src))
                I("v_add_f32 %s, %s, v3" % (vr(8 + 2 * k), vr(8 + 2 * k)))
                I("v_add_f32 %s, %s, v4" % (vr(9 + 2 * k), vr(9 + 2 * k)))
    for k in range(4): I("v_cvt_pk_bf16_f32 %s, %s, %s" % (vr(16 + k), vr(8 + 2 * k), vr(9 + 2 * k)))
    I("buffer_store_dwordx2 v[16:17], v5, s[32:35], s30 offen")
    I("buffer_store_dwordx2 v[18:19], v5, s[32:35], s30 offen offset:2304")
    if cfg.stamps: I("s_waitcnt vmcnt(0)")
    stamp(1)
    stamp_out(2, 10, 78, STAMP_OFF + 0x10000)
    E("K2_END:")
    I("s_endpgm")

def kd(name, nv, ns, acc):
    E(".amdhsa_kernel %s" % name)
    E("  .amdhsa_next_free_vgpr %d" % nv)
    E("  .amdhsa_next_free_sgpr %d" % ns)
    E("  .amdhsa_accum_offset %d" % acc)
    E("  .amdhsa_group_segment_fixed_size 0")
    E("  .amdhsa_kernarg_size 104")
    E("  .amdhsa_user_sgpr_count 2")
    E("  .amdhsa_user_sgpr_kernarg_segment_ptr 1")
    E("  .amdhsa_system_sgpr_workgroup_id_x 1")
    E(".end_amdhsa_kernel")

E("; @launch kernel=attn_kernel grid=(256,1,1) block=(256,1,1) lds=%d" % K1_LDS)
E("; @launch kernel=reduce_kernel grid=(720,1,1) block=(256,1,1) lds=0")
E('.amdgcn_target "amdgcn-amd-amdhsa--gfx950"')
E(".text")
gen_k1()
gen_k2()
E('.section .rodata,"a"')
E(".p2align 6")
kd("attn_kernel", 512, 102, 256)
E(".p2align 6")
kd("reduce_kernel", 48, 102, 48)
print("\n".join(L))
```

```python
import sys, math, struct

class Cfg:
    nt_kv = 1
    stamps = 0
    trace = 0
    st_flag = "sc1"
    rot = 1
    krot = 1
    capA = 4
    capB = 0
    q_lo = 17
    q_hi = 39
    fuse = 0
    red_sleep = 8
    red_max = 4000
    k2_rep = 2
    a_pfwo = 1
    a_late = 1
    adelay = 0
    sig_step = 12
    poll_max = 60
    poll_sleep = 16
    wo_pf = 0
    wo_step = 14
    wo_n = 1
    p3_first = 10
cfg = Cfg()
for a in sys.argv[1:]:
    if "=" in a:
        k, v = a.split("=")
        setattr(cfg, k, int(v) if isinstance(getattr(cfg, k), int) else v)

L = []
def E(s=""): L.append(s)
def I(s):
    if s.endswith(":"): L.append(s)
    else: L.append("  " + s)
def vr(b, n=1): return "v%d" % b if n == 1 else "v[%d:%d]" % (b, b + n - 1)
def ar(b, n=1): return "a%d" % b if n == 1 else "a[%d:%d]" % (b, b + n - 1)
def sr(b, n=1): return "s%d" % b if n == 1 else "s[%d:%d]" % (b, b + n - 1)
MFMA = "v_mfma_f32_16x16x32_bf16"
def mfma(d, a, b, c): return "%s %s, %s, %s, %s" % (MFMA, d, a, b, c)
def f32bits(x): return struct.unpack("<I", struct.pack("<f", x))[0]

def stamp(k):
    if cfg.stamps: I("s_memrealtime s[%d:%d]" % (80 + 2 * k, 81 + 2 * k))
def stamp_out(n, wsreg, idreg, off):
    if cfg.stamps:
        I("s_waitcnt lgkmcnt(0)")
        I("s_lshl_b32 s98, %s, 5" % sr(idreg))
        I("s_add_u32 s98, s98, 0x%x" % off)
        for k in range(8): I("v_mov_b32 v%d, %s" % (8 + k, ("s%d" % (80 + 2 * k)) if k < n else "0"))
        I("v_mov_b32 v16, s98")
        I("global_store_dwordx4 v16, v[8:11], %s" % sr(wsreg, 2))
        I("global_store_dwordx4 v16, v[12:15], %s offset:16" % sr(wsreg, 2))
def trace_pt(idx_lines):
    if not cfg.trace: return []
    return ["s_memtime s[6:7]", "s_waitcnt lgkmcnt(0)"] + idx_lines + ["v_mov_b32 v6, s6", "v_cmp_eq_u32 vcc, s4, v0", "s_nop 1", "v_cndmask_b32 v7, v7, v6, vcc"]

def interleave(mf, fills):
    for s in fills.get(-1, []): I(s)
    for i, m in enumerate(mf):
        I(m)
        for s in fills.get(i, []): I(s)
class Fill:
    def __init__(self, n): self.n = n; self.f = {}; self.load = {}
    @staticmethod
    def cost(ins):
        c = 0
        for x in ins:
            if x.endswith(":"): continue
            c += 2 if x.startswith("v_exp") or x.startswith("v_rcp") else 1
        return c
    def put(self, g, ins):
        ins = ins if isinstance(ins, list) else [ins]
        self.f.setdefault(g, []).extend(ins); self.load[g] = self.load.get(g, 0) + self.cost(ins)
    def flow(self, items, lo, hi, budget=2, spread=True):
        items = [x if isinstance(x, list) else [x] for x in items]
        n = len(items); g = lo
        for i, it in enumerate(items):
            tgt = lo + (i * (hi - lo + 1)) // n if spread else lo
            g = max(g, tgt)
            c = self.cost(it)
            while g <= hi and self.load.get(g, 0) + c > max(budget, c): g += 1
            if g > hi: g = hi
            self.put(g, it)
def atomize(lst):
    out = []
    for x in lst:
        if out and isinstance(out[-1], list) and out[-1][0].startswith("s_cmp") and x.startswith("s_cselect"): out[-1].append(x)
        elif x.startswith("s_cmp"): out.append([x])
        else: out.append(x)
    return out
def add_fill(f, gap, ins): f.setdefault(gap, []).extend(ins if isinstance(ins, list) else [ins])
def flat(groups):
    for g in groups:
        for s in g: I(s)
def singles(groups):
    r = []
    for g in groups:
        if any(x.startswith("s_mov_b32 exec") for x in g): r.append(g)
        else: r += [[x] for x in g]
    return r

QSCALE = math.log2(math.e) / math.sqrt(128.0)
NTS = "nt " if cfg.nt_kv else ""
PSTR_HQ = 16 * 92160
PSTR_TYPE = 8 * PSTR_HQ
STAMP_OFF = 0x4000000

S_K, S_V, S_W, S_X, S_O, S_P = 32, 36, 40, 44, 48, 52
sWAVE, sTYPE, sHQ, sHI, sB, sH = 56, 57, 58, 59, 60, 61
sLW = 62
sT0, sT1, sT2, sT3 = 64, 65, 66, 67
sKK = 68
sWOFF, sXOFF = 69, 70
sBUF0, sBUF1 = 71, 72
sVOFF, sKOFF = 73, 74
sKQ = 75
sHALF = 76
sUID = 78
sPOFF = 79
sROT, sTI = 96, 97
sCOFF = 98
sMW = [99, 100, 101]
sMX = [30, 31, 63]
sQOFF = 3
sRETRY = 5
sT2X = 69
sXOWN = 70
QF, SS, PP, KF, VF, NM = 16, 96, 136, 144, 176, 208
vKR, vVR, vKD, vVD = 228, 232, 246, 250
vWD, vXD = 246, 250
vAR = 228
vBR = 240
vLANE16 = 254
vg, vi, vrr, vc = 9, 10, 11, 12
t0, t1, t2 = 13, 14, 15
QACC, WF, XF = 16, 176, 208
OA, LA, ONE = 0, 160, 180
def oacc(T, j): return OA + (j * 8 + T) * 4
def qacc(T, j): return QACC + (j * 8 + T) * 4
WQB = [u * 32768 for u in range(3)]
XB_ = [98304 + u * 10240 for u in range(3)]
K1_LDS = 163840
OFO = 16
A3 = 176
vA3 = 232
vW3D = 1
vL8 = 5
PK = 208
P3B = [98304, 0]

def dma(voff, srd, soff, imm, nt=""):
    assert 0 <= imm < 4096
    return "buffer_load_dwordx4 %s, %s, %s offen offset:%d %slds" % (vr(voff), sr(srd, 4), soff, imm, nt)

def stage_dma(u):
    r = []
    for n in range(8):
        pre = []
        if n == 0: pre = ["s_mov_b32 m0, %s" % sr(sMW[u]), "s_nop 0"]
        if n == 4: pre = ["s_add_u32 m0, %s, 4096" % sr(sMW[u]), "s_add_u32 %s, %s, 32768" % (sr(sT3), sr(sWOFF))]
        r.append(pre + [dma(vWD + (n & 3), S_W, sr(sWOFF) if n < 4 else sr(sT3), (n & 3) * 1024)])
    return r
def x_dma(ub):
    r = [["s_mov_b32 m0, %s" % sr(sMX[ub]), "s_nop 0", dma(vXD + 0, S_X, sr(sXOFF), 0)]]
    r.append([dma(vXD + 1, S_X, sr(sXOFF), 1024)])
    r.append(["s_mov_b32 exec_hi, 0", dma(vXD + 2, S_X, sr(sXOFF), 2048), "s_mov_b32 exec_hi, -1"])
    return r
def q_offs_imm(t):
    return ["s_add_u32 %s, %s, %d" % (sr(sT2), sr(sQOFF), t), "s_sub_u32 %s, %s, 18" % (sr(sT3), sr(sT2)), "s_cmp_ge_u32 %s, 18" % sr(sT2),
            "s_cselect_b32 %s, %s, %s" % (sr(sT2), sr(sT3), sr(sT2)), "s_lshl_b32 %s, %s, 18" % (sr(sWOFF), sr(sT2)), "s_lshl_b32 %s, %s, 6" % (sr(sXOFF), sr(sT2))]

def kv_dma(is_k, slot_par, soff, shared=False, cap=0):
    base = slot_par * 16384 + (0 if is_k else 8192)
    srd = S_K if is_k else S_V
    tmp = sT0 if is_k else sT1
    thr = ["s_waitcnt vmcnt(%d)" % (cap - 1)] if cap else []
    r = []
    if shared:
        for n in range(4):
            pre = []
            if n == 0:
                pre = ["s_add_u32 %s, %s, %s" % (sr(tmp), sr(sLW), sr(sHALF)), "s_add_u32 m0, %s, %d" % (sr(tmp), base),
                       "s_add_u32 %s, %s, %s" % (sr(tmp), sr(soff), sr(sHALF))]
            vo = (vKD + n) if is_k else (vVD + (n & 1))
            r.append(pre + thr + [dma(vo, srd, sr(tmp), n * 1024, NTS)])
        return r
    for n in range(8):
        pre = []
        if n == 0: pre = ["s_add_u32 m0, %s, %d" % (sr(sLW), base), "s_nop 0"]
        if n == 4: pre = ["s_add_u32 m0, %s, %d" % (sr(sLW), base + 4096), "s_add_u32 %s, %s, 4096" % (sr(tmp), sr(soff))]
        vo = (vKD + (n & 3)) if is_k else (vVD + (n & 1))
        so = sr(soff) if n < 4 else sr(tmp)
        r.append(pre + thr + [dma(vo, srd, so, (n & 3) * 1024, NTS)])
    return r
def tile_off(dst, idx):
    I("s_add_u32 %s, %s, %d" % (sr(dst), sr(sROT), idx))
    I("s_and_b32 %s, %s, 15" % (sr(dst), sr(dst)))
    I("s_lshl_b32 %s, %s, 13" % (sr(dst), sr(dst)))
def next_offs():
    r = []
    r.append(["s_add_u32 %s, %s, 1" % (sr(sTI), sr(sTI)), "s_add_u32 %s, %s, %s" % (sr(sT2), sr(sTI), sr(sROT))])
    r.append(["s_add_u32 %s, %s, 2" % (sr(sVOFF), sr(sT2)), "s_and_b32 %s, %s, 15" % (sr(sVOFF), sr(sVOFF))])
    r.append(["s_lshl_b32 %s, %s, 13" % (sr(sVOFF), sr(sVOFF)), "s_cmp_lt_u32 %s, 14" % sr(sTI), "s_cselect_b32 %s, %s, 0x40000000" % (sr(sVOFF), sr(sVOFF))])
    r.append(["s_add_u32 %s, %s, 3" % (sr(sKOFF), sr(sT2)), "s_and_b32 %s, %s, 15" % (sr(sKOFF), sr(sKOFF))])
    r.append(["s_lshl_b32 %s, %s, 13" % (sr(sKOFF), sr(sKOFF)), "s_cmp_lt_u32 %s, 13" % sr(sTI), "s_cselect_b32 %s, %s, 0x40000000" % (sr(sKOFF), sr(sKOFF))])
    return r
def a_reads(u, T):
    ad, off = vAR + 4 * u + (T >> 1), (T & 1) * 8
    return ["ds_read_b64_tr_b16 %s, %s offset:%d" % (vr(WF + 4 * T, 2), vr(ad), off),
            "ds_read_b64_tr_b16 %s, %s offset:%d" % (vr(WF + 4 * T + 2, 2), vr(ad), off + 4096)]
def b_read(kk, j):
    return "ds_read_b128 %s, %s offset:%d" % (vr(XF + 4 * j, 4), vr(vBR + ((kk >> 1) % 3) * 2 + (kk & 1)), j * 2048)
def k_read(par, mt, s):
    return "ds_read_b128 %s, %s offset:%d" % (vr(KF + (mt * 4 + s) * 4, 4), vr(vKR + s), par * 16384 + mt * 4096)
def v_reads(par, T):
    off = 8192 + par * 16384
    return ["ds_read_b64_tr_b16 %s, %s offset:%d" % (vr(VF + 4 * T, 2), vr(vVR + T), off),
            "ds_read_b64_tr_b16 %s, %s offset:%d" % (vr(VF + 4 * T + 2, 2), vr(vVR + T), off + 4096)]
def qk_group(j, czero=False):
    r = []
    for mt in range(2):
        for s in range(4):
            d = vr(SS + 8 * j + 4 * mt, 4)
            c = d if s else ("0" if czero else vr(NM + 4 * j, 4))
            r.append(mfma(d, vr(KF + (mt * 4 + s) * 4, 4), vr(QF + (j * 4 + s) * 4, 4), c))
    return r
def pv_group(j):
    p = vr(PP + 4 * (j & 1), 4)
    r = [mfma(ar(oacc(T, j), 4), vr(VF + 4 * T, 4), p, ar(oacc(T, j), 4)) for T in range(8)]
    r.append(mfma(ar(LA + 4 * j, 4), ar(ONE, 4), p, ar(LA + 4 * j, 4)))
    return r
def exps(j): return ["v_exp_f32 %s, %s" % (vr(SS + 8 * j + k), vr(SS + 8 * j + k)) for k in range(8)]
def cvts(j): return ["v_cvt_pk_bf16_f32 %s, %s, %s" % (vr(PP + 4 * (j & 1) + k), vr(SS + 8 * j + 2 * k), vr(SS + 8 * j + 2 * k + 1)) for k in range(4)]

def att_step(e, shared):
    mf = pv_group(4) + qk_group(3)
    f = {}
    if shared: add_fill(f, -1, ["s_waitcnt vmcnt(8)", "s_barrier"])
    else: add_fill(f, -1, "s_waitcnt vmcnt(24)")
    add_fill(f, -1, trace_pt(["s_add_u32 s4, %s, 20" % sr(sTI)]))
    for T in range(8): add_fill(f, T, v_reads(e, T))
    ex, cv = exps(0), cvts(0)
    for k in range(8): add_fill(f, 8 + k, ex[k])
    add_fill(f, 11, cv[0]); add_fill(f, 13, cv[1]); add_fill(f, 15, cv[2]); add_fill(f, 16, ["s_nop 0", cv[3]])
    interleave(mf, f)
    mf = qk_group(4) + pv_group(0)
    f = {}
    if not shared: add_fill(f, -1, "s_waitcnt vmcnt(16)")
    for mt in range(2):
        for s in range(4): add_fill(f, mt * 4 + s, k_read(1 - e, mt, s))
    add_fill(f, 7, "s_waitcnt lgkmcnt(8)")
    ex, cv = exps(1), cvts(1)
    for k in range(4): add_fill(f, 2 * k, ex[k])
    for k in range(4): add_fill(f, 8 + 2 * k, ex[4 + k])
    add_fill(f, 5, cv[0]); add_fill(f, 9, cv[1]); add_fill(f, 13, cv[2]); add_fill(f, 16, cv[3])
    cap = cfg.capA if shared else cfg.capB
    vd = kv_dma(False, e, sVOFF, shared, cap)
    kd = kv_dma(True, 1 - e, sKOFF, shared, cap)
    if not shared:
        add_fill(f, 11, vd[0]); add_fill(f, 13, vd[1]); add_fill(f, 15, vd[2])
    interleave(mf, f)
    def plain_sb(j, dmas, pre=None):
        mf = qk_group((j - 2) % 5) + pv_group(j - 1)
        f = {}
        if pre: add_fill(f, -1, pre)
        ex, cv = exps(j), cvts(j)
        for k in range(8): add_fill(f, 2 * k, ex[k])
        add_fill(f, 3, cv[0]); add_fill(f, 7, cv[1]); add_fill(f, 11, cv[2]); add_fill(f, 15, cv[3])
        for g, d in zip([1, 5, 9, 13, 16], dmas): add_fill(f, g, d)
        interleave(mf, f)
    no = next_offs()
    if shared:
        plain_sb(2, vd[0:4], ["s_waitcnt lgkmcnt(0)", "s_barrier"])
        plain_sb(3, kd[0:4])
        plain_sb(4, no)
    else:
        plain_sb(2, vd[3:8], "s_waitcnt lgkmcnt(0)")
        plain_sb(3, kd[0:4])
        plain_sb(4, kd[4:8] + [no[0] + no[1] + no[2] + no[3] + no[4]])

def xlane_max(x, y):
    I("v_mov_b32 %s, %s" % (vr(y), vr(x))); I("s_nop 1")
    I("v_permlane32_swap_b32 %s, %s" % (vr(x), vr(y))); I("s_nop 1")
    I("v_max_f32 %s, %s, %s" % (vr(x), vr(x), vr(y)))
    I("v_mov_b32 %s, %s" % (vr(y), vr(x))); I("s_nop 1")
    I("v_permlane16_swap_b32 %s, %s" % (vr(x), vr(y))); I("s_nop 1")
    I("v_max_f32 %s, %s, %s" % (vr(x), vr(x), vr(y)))
def srd(S, off_sreg, nrec):
    if off_sreg is not None:
        I("s_add_u32 %s, %s, %s" % (sr(S), sr(S), sr(off_sreg)))
        I("s_addc_u32 %s, %s, 0" % (sr(S + 1), sr(S + 1)))
    I("s_and_b32 %s, %s, 0xffff" % (sr(S + 1), sr(S + 1)))
    if nrec is not None: I("s_mov_b32 %s, %d" % (sr(S + 2), nrec))
    I("s_mov_b32 %s, 0x20000" % sr(S + 3))
def q_epilogue():
    I("s_mov_b32 %s, 0x%08x" % (sr(sT2), f32bits(QSCALE)))
    I("s_mov_b32 %s, %s" % (sr(sT3), sr(sT2)))
    for j in range(5):
        for s in range(4):
            src = qacc(2 * s, j)
            for k in range(0, 8, 2): I("v_pk_mul_f32 %s, %s, %s" % (vr(src + k, 2), vr(src + k, 2), sr(sT2, 2)))
            dst = QF + (j * 4 + s) * 4
            for k in range(4): I("v_cvt_pk_bf16_f32 %s, %s, %s" % (vr(dst + k), vr(src + 2 * k), vr(src + 2 * k + 1)))
def att_prologue_and_loop(shared, tag, retry=False):
    E("K1_ATT_COMMON_%s:" % tag)
    I("s_waitcnt lgkmcnt(0)")
    if shared: I("s_barrier")
    tile_off(sKOFF, 2)
    flat(kv_dma(True, 0, sKOFF, shared))
    tile_off(sVOFF, 2)
    tile_off(sKOFF, 3)
    I("s_mov_b32 %s, 0" % sr(sTI))
    for j in range(5):
        for m in qk_group(j, czero=True): I(m)
    I("s_nop 7"); I("s_nop 1")
    if not retry:
        for j in range(5):
            b = SS + 8 * j
            I("v_max3_f32 %s, %s, %s, %s" % (vr(t0), vr(b), vr(b + 1), vr(b + 2)))
            I("v_max3_f32 %s, %s, %s, %s" % (vr(t0), vr(t0), vr(b + 3), vr(b + 4)))
            I("v_max3_f32 %s, %s, %s, %s" % (vr(t0), vr(t0), vr(b + 5), vr(b + 6)))
            I("v_max_f32 %s, %s, %s" % (vr(t0), vr(t0), vr(b + 7)))
            xlane_max(t0, t1)
            for k in range(4): I("v_sub_f32 %s, 0, %s" % (vr(NM + 4 * j + k), vr(t0)))
    for j in range(3):
        for k in range(8): I("v_add_f32 %s, %s, %s" % (vr(SS + 8 * j + k), vr(SS + 8 * j + k), vr(NM + 4 * j)))
    for k in range(4): I("v_mov_b32 %s, 0" % vr(PP + k))
    for k in range(32): I("v_mov_b32 %s, 0" % vr(VF + k))
    I("s_mov_b32 %s, 0" % sr(sKK))
    stamp(4)
    E("K1_ALOOP_%s:" % tag)
    if cfg.wo_pf and not retry:
        I("s_cmp_lg_u32 %s, %d" % (sr(sKK), cfg.wo_step))
        I("s_cbranch_scc1 K1_NOPF_%s" % tag)
        I("s_lshl_b32 %s, %s, 7" % (sr(sT2), sr(sWAVE)))
        I("v_add_u32 %s, %s, v0" % (vr(t0), sr(sT2)))
        I("v_mul_u32_u24 %s, 1152, %s" % (vr(t0), vr(t0)))
        for c in range(cfg.wo_n):
            I("s_add_u32 %s, %s, %d" % (sr(sT2), sr(sCOFF), c))
            I("s_lshl_b32 %s, %s, 7" % (sr(sT2), sr(sT2)))
            I("buffer_load_dword v8, %s, %s, %s offen" % (vr(t0), sr(S_O, 4), sr(sT2)))
            I("s_add_u32 %s, %s, %d" % (sr(sT2), sr(sT2), 64 * 1152))
            I("buffer_load_dword v8, %s, %s, %s offen" % (vr(t0), sr(S_O, 4), sr(sT2)))
        E("K1_NOPF_%s:" % tag)
    att_step(0, shared)
    att_step(1, shared)
    I("s_add_u32 %s, %s, 2" % (sr(sKK), sr(sKK)))
    I("s_cmp_lt_u32 %s, 16" % sr(sKK))
    I("s_cbranch_scc1 K1_ALOOP_%s" % tag)

def w3_dma(bufreg, soffreg):
    r = []
    for n in range(16):
        pre = []
        q = n >> 2
        if n & 3 == 0:
            pre = ["s_add_u32 m0, %s, %d" % (sr(bufreg), q * 4096)]
            if q: pre += ["s_add_u32 %s, %s, %d" % (sr(sT3), sr(soffreg), q * 32 * 1152)]
            else: pre += ["s_nop 0"]
        so = sr(soffreg) if q == 0 else sr(sT3)
        r.append(pre + [dma(vW3D + (n & 3), S_O, so, (n & 3) * 1024)])
    return r
def wrap9(reg):
    return ["s_add_u32 %s, %s, %s" % (sr(reg), sr(reg), sr(sCOFF)), "s_sub_u32 %s, %s, 9" % (sr(sT1), sr(reg)), "s_cmp_ge_u32 %s, 9" % sr(reg),
            "s_cselect_b32 %s, %s, %s" % (sr(reg), sr(sT1), sr(reg))]
def ring_addrs():
    for s_ in range(4):
        I("v_add_u32 %s, %d, %s" % (vr(t0), 4 * s_, vr(vg)))
        I("v_xor_b32 %s, %s, %s" % (vr(t0), vr(t0), vr(vi)))
        I("v_lshlrev_b32 %s, 4, %s" % (vr(t0), vr(t0)))
        I("v_lshl_add_u32 %s, %s, 8, %s" % (vr(t0), vr(vi), vr(t0)))
        I("v_add_u32 %s, %s, %s" % (vr(vKR + s_), sr(sLW), vr(t0)))
    I("v_lshl_add_u32 %s, %s, 2, %s" % (vr(t1), vr(vg), vr(vrr)))
    I("v_and_b32 %s, 7, %s" % (vr(t2), vr(t1)))
    I("v_lshlrev_b32 %s, 8, %s" % (vr(t1), vr(t1)))
    I("v_lshl_add_u32 %s, %s, 3, %s" % (vr(t1), vr(vc), vr(t1)))
    I("v_add_u32 %s, %s, %s" % (vr(t1), sr(sLW), vr(t1)))
    for T in range(8):
        I("v_xor_b32 %s, %d, %s" % (vr(t0), T, vr(t2)))
        I("v_lshl_add_u32 %s, %s, 5, %s" % (vr(vVR + T), vr(t0), vr(t1)))

def fused_reduce():
    S_R, S_OUT = 32, 36
    I("s_waitcnt vmcnt(0)")
    I("s_barrier")
    I("s_lshl_b32 %s, %s, 4" % (sr(sT0), sr(sTYPE)))
    I("s_add_u32 %s, %s, %s" % (sr(sT0), sr(sT0), sr(sB)))
    I("s_lshl_b32 %s, %s, 3" % (sr(sT0), sr(sT0)))
    I("v_mov_b32 %s, %s" % (vr(t0), sr(sT0)))
    I("s_cmp_lg_u32 %s, 0" % sr(sWAVE))
    I("s_cbranch_scc1 K1_RED_NOPUB")
    I("s_lshl_b32 %s, 1, %s" % (sr(sT1), sr(sHQ)))
    I("v_mov_b32 %s, %s" % (vr(t1), sr(sT1)))
    I("s_mov_b64 exec, 1")
    I("global_atomic_or %s, %s, s[26:27] sc1" % (vr(t0), vr(t1)))
    I("s_mov_b64 exec, -1")
    E("K1_RED_NOPUB:")
    A1, A2 = 208, 212
    I("v_cmp_eq_u32 vcc, %s, %s" % (vr(vg), vr(vrr)))
    I("v_and_b32 %s, 1, %s" % (vr(t1), vr(vc)))
    I("v_lshlrev_b32 %s, 4, %s" % (vr(t1), vr(t1)))
    I("v_mov_b32 %s, 0x3f80" % vr(t2))
    I("v_lshlrev_b32 %s, %s, %s" % (vr(t2), vr(t1), vr(t2)))
    I("v_cndmask_b32 %s, 0, %s, vcc" % (vr(t2), vr(t2)))
    I("v_cmp_gt_u32 vcc, 2, %s" % vr(vc))
    I("s_nop 1")
    I("v_cndmask_b32 %s, 0, %s, vcc" % (vr(A1), vr(t2)))
    I("v_sub_u32 %s, %s, %s" % (vr(A1 + 1), vr(t2), vr(A1)))
    I("v_mov_b32 %s, 0" % vr(A1 + 2)); I("v_mov_b32 %s, 0" % vr(A1 + 3))
    I("v_mov_b32 %s, 0" % vr(A2)); I("v_mov_b32 %s, 0" % vr(A2 + 1))
    I("v_mov_b32 %s, %s" % (vr(A2 + 2), vr(A1))); I("v_mov_b32 %s, %s" % (vr(A2 + 3), vr(A1 + 1)))
    I("s_mov_b32 %s, s28" % sr(S_R)); I("s_and_b32 %s, s29, 0xffff" % sr(S_R + 1))
    I("s_mov_b32 %s, %d" % (sr(S_R + 2), 2 * PSTR_TYPE)); I("s_mov_b32 %s, 0x20000" % sr(S_R + 3))
    I("s_mov_b32 %s, s24" % sr(S_OUT)); I("s_and_b32 %s, s25, 0xffff" % sr(S_OUT + 1))
    I("s_mov_b32 %s, %d" % (sr(S_OUT + 2), 16 * 80 * 1152 * 2)); I("s_mov_b32 %s, 0x20000" % sr(S_OUT + 3))
    sRO = [40, 41, 42]; sOO = [43, 44, 45]; vOO = [216, 217, 218]
    for k in range(3):
        I("s_add_u32 %s, %s, %d" % (sr(sT0), sr(sWAVE), 4 * k))
        I("s_lshl_b32 %s, %s, 3" % (sr(sT0), sr(sT0)))
        I("s_add_u32 %s, %s, %s" % (sr(sT0), sr(sT0), sr(sHQ)))
        I("s_mul_i32 %s, %s, %d" % (sr(sRO[k]), sr(sTYPE), PSTR_TYPE))
        I("s_mul_i32 %s, %s, 92160" % (sr(sT3), sr(sB)))
        I("s_add_u32 %s, %s, %s" % (sr(sRO[k]), sr(sRO[k]), sr(sT3)))
        I("s_lshl_b32 %s, %s, 10" % (sr(sT3), sr(sT0)))
        I("s_add_u32 %s, %s, %s" % (sr(sRO[k]), sr(sRO[k]), sr(sT3)))
        I("s_mul_i32 %s, %s, 1152" % (sr(sOO[k]), sr(sTYPE)))
        I("v_lshrrev_b32 v1, 5, v0")
        I("s_lshl_b32 %s, %s, 1" % (sr(sT1), sr(sT0)))
        I("v_add_u32 v1, %s, v1" % sr(sT1))
        I("v_mul_u32_u24 v2, 13108, v1")
        I("v_lshrrev_b32 v2, 16, v2")
        I("v_mul_u32_u24 v3, 5, v2")
        I("v_sub_u32 v3, v1, v3")
        I("v_and_b32 v4, 31, v0")
        I("v_lshlrev_b32 v4, 1, v4")
        I("v_and_b32 v5, 15, v4")
        I("v_lshrrev_b32 v4, 4, v4")
        I("v_lshl_add_u32 v3, v3, 4, v5")
        I("s_mul_i32 %s, %s, 80" % (sr(sT1), sr(sB)))
        I("v_add_u32 v3, %s, v3" % sr(sT1))
        I("v_mul_u32_u24 v3, 2304, v3")
        I("v_lshl_add_u32 v3, v2, 5, v3")
        I("v_lshl_add_u32 %s, v4, 3, v3" % vr(vOO[k]))
        I("s_cmp_lt_u32 %s, 90" % sr(sT0))
        I("s_cselect_b32 %s, %s, 0x40000000" % (sr(sRO[k]), sr(sRO[k])))
        I("s_cselect_b32 %s, %s, 0x40000000" % (sr(sOO[k]), sr(sOO[k])))
    I("s_mov_b32 %s, 0" % sr(sT0))
    I("s_cmp_lg_u32 %s, 0" % sr(sWAVE))
    I("s_cbranch_scc1 K1_RED_GO")
    E("K1_RED_POLL:")
    I("global_load_dword %s, %s, s[26:27] sc1" % (vr(t1), vr(t0)))
    I("s_waitcnt vmcnt(0)")
    I("v_readfirstlane_b32 %s, %s" % (sr(sT1), vr(t1)))
    I("s_add_u32 %s, %s, 1" % (sr(sT0), sr(sT0)))
    I("s_nop 2")
    I("s_cmp_eq_u32 %s, 0xff" % sr(sT1))
    I("s_cbranch_scc1 K1_RED_GO")
    if cfg.red_sleep: I("s_sleep %d" % cfg.red_sleep)
    I("s_cmp_lt_u32 %s, %d" % (sr(sT0), cfg.red_max))
    I("s_cbranch_scc1 K1_RED_POLL")
    E("K1_RED_GO:")
    I("s_barrier")
    for hq in range(8):
        for k in range(3):
            I("s_add_u32 %s, %s, %d" % (sr(sT0), sr(sRO[k]), hq * PSTR_HQ))
            I("buffer_load_dwordx4 %s, %s, %s, %s offen sc1" % (vr(16 + (hq * 3 + k) * 4, 4), vr(vLANE16), sr(S_R, 4), sr(sT0)))
    for hq in range(8):
        I("s_waitcnt vmcnt(%d)" % (21 - 3 * hq))
        for k in range(3):
            b = vr(16 + (hq * 3 + k) * 4, 4)
            for h in range(2):
                d = ar(k * 8 + h * 4, 4)
                I(mfma(d, vr(A1 if h == 0 else A2, 4), b, d if hq else "0"))
    I("s_nop 7"); I("s_nop 1")
    for k in range(3):
        tb = 220 + 12 * (k & 1)
        for r in range(8): I("v_accvgpr_read_b32 %s, %s" % (vr(tb + r), ar(k * 8 + r)))
        for r in range(4): I("v_cvt_pk_bf16_f32 %s, %s, %s" % (vr(tb + 8 + r), vr(tb + 2 * r), vr(tb + 2 * r + 1)))
        I("buffer_store_dwordx2 %s, %s, %s, %s offen" % (vr(tb + 8, 2), vr(vOO[k]), sr(S_OUT, 4), sr(sOO[k])))
        I("buffer_store_dwordx2 %s, %s, %s, %s offen offset:2304" % (vr(tb + 10, 2), vr(vOO[k]), sr(S_OUT, 4), sr(sOO[k])))

def gen_k1():
    E(".globl %s" % KN); E(".p2align 8"); E(".type %s,@function" % KN); E("%s:" % KN)
    I("s_cmp_ge_u32 s2, 256")
    I("s_cbranch_scc1 K1_END")
    I("s_load_dwordx16 s[4:19], s[0:1], 0")
    I("s_load_dwordx8 s[20:27], s[0:1], 64")
    I("s_load_dwordx2 s[28:29], s[0:1], 96")
    stamp(0)
    I("v_lshrrev_b32 v1, 6, v0")
    I("v_and_b32 v0, 63, v0")
    I("v_readfirstlane_b32 %s, v1" % sr(sWAVE))
    if cfg.trace:
        I("s_memtime s[30:31]"); I("v_mov_b32 v7, 0"); I("s_waitcnt lgkmcnt(0)"); I("v_writelane_b32 v7, s30, 63")
    I("s_and_b32 %s, s2, 7" % sr(sT0))
    I("s_lshr_b32 %s, s2, 3" % sr(sT1))
    I("s_and_b32 %s, %s, 1" % (sr(sTYPE), sr(sT1)))
    I("s_lshr_b32 %s, %s, 1" % (sr(sCOFF), sr(sT1)))
    I("s_and_b32 %s, %s, 7" % (sr(sCOFF), sr(sCOFF)))
    I("s_and_b32 %s, %s, 1" % (sr(sB), sr(sT0)))
    I("s_lshl_b32 %s, %s, 3" % (sr(sB), sr(sB)))
    I("s_add_u32 %s, %s, %s" % (sr(sB), sr(sB), sr(sCOFF)))
    I("s_lshr_b32 %s, %s, 4" % (sr(sT2), sr(sT1)))
    I("s_lshr_b32 %s, %s, 1" % (sr(sHQ), sr(sT0)))
    I("s_lshl_b32 %s, %s, 1" % (sr(sHQ), sr(sHQ)))
    I("s_add_u32 %s, %s, %s" % (sr(sHQ), sr(sHQ), sr(sT2)))
    I("s_mul_i32 %s, %s, 10" % (sr(sT2), sr(sT2)))
    I("s_lshl_b32 %s, %s, 1" % (sr(sQOFF), sr(sCOFF)))
    I("s_add_u32 %s, %s, %s" % (sr(sQOFF), sr(sQOFF), sr(sT2)))
    I("s_sub_u32 %s, %s, 18" % (sr(sT2), sr(sQOFF)))
    I("s_cmp_ge_u32 %s, 18" % sr(sQOFF))
    I("s_cselect_b32 %s, %s, %s" % (sr(sQOFF), sr(sT2), sr(sQOFF)))
    if not cfg.krot:
        I("s_mov_b32 %s, 0" % sr(sQOFF)); I("s_mov_b32 %s, 0" % sr(sCOFF))
    I("v_lshrrev_b32 %s, 4, v0" % vr(vg))
    I("v_and_b32 %s, 15, v0" % vr(vi))
    I("s_and_b32 %s, %s, 1" % (sr(sHI), sr(sWAVE)))
    I("s_lshl_b32 %s, %s, 2" % (sr(sH), sr(sHQ)))
    I("s_add_u32 %s, %s, %s" % (sr(sH), sr(sH), sr(sWAVE)))
    I("s_lshl_b32 %s, %s, 12" % (sr(sHALF), sr(sHI)))
    I("s_lshl_b32 %s, s2, 2" % sr(sUID))
    I("s_add_u32 %s, %s, %s" % (sr(sUID), sr(sUID), sr(sWAVE)))
    I("s_lshl_b32 %s, %s, 15" % (sr(sLW), sr(sWAVE)))
    I("s_cmp_ge_u32 %s, 2" % sr(sWAVE))
    I("s_cselect_b32 %s, 32768, 0" % sr(sT0))
    I("s_add_u32 %s, %s, %s" % (sr(sLW), sr(sLW), sr(sT0)))
    I("s_cmp_eq_u32 %s, 0" % sr(sTYPE))
    I("s_cselect_b32 %s, %s, %s" % (sr(sLW), sr(sT0), sr(sLW)))
    I("s_lshl_b32 %s, %s, 13" % (sr(sT0), sr(sWAVE)))
    I("s_mul_i32 %s, %s, 2560" % (sr(sT1), sr(sWAVE)))
    for u in range(3):
        I("s_add_u32 %s, %s, %d" % (sr(sMW[u]), sr(sT0), WQB[u]))
        I("s_add_u32 %s, %s, %d" % (sr(sMX[u]), sr(sT1), XB_[u]))
    I("v_lshrrev_b32 %s, 2, %s" % (vr(vrr), vr(vi)))
    I("v_and_b32 %s, 3, %s" % (vr(vc), vr(vi)))
    I("v_lshlrev_b32 %s, 4, v0" % vr(vLANE16))
    I("s_lshl_b32 %s, %s, 16" % (sr(sT0), sr(sWAVE)))
    for m in range(4):
        I("v_xor_b32 %s, %d, v0" % (vr(t0), m << 2))
        I("v_lshlrev_b32 %s, 4, %s" % (vr(t0), vr(t0)))
        I("v_add_u32 %s, %s, %s" % (vr(t0), sr(sT0), vr(t0)))
        if m: I("v_add_u32 %s, %d, %s" % (vr(vWD + m), m * (8192 - 1024), vr(t0)))
        else: I("v_mov_b32 %s, %s" % (vr(vWD), vr(t0)))
    I("v_lshrrev_b32 %s, 3, v0" % vr(t1))
    I("s_mul_i32 %s, %s, 20" % (sr(sT0), sr(sWAVE)))
    I("v_add_u32 %s, %s, %s" % (vr(t1), sr(sT0), vr(t1)))
    I("v_mul_u32_u24 %s, 1152, %s" % (vr(t1), vr(t1)))
    I("s_mul_i32 %s, %s, 10" % (sr(sT0), sr(sWAVE)))
    for n in range(3):
        I("v_add_u32 %s, %s, %s" % (vr(t0), sr(sT0), vr(vg)))
        if n: I("v_add_u32 %s, %d, %s" % (vr(t0), 4 * n, vr(t0)))
        I("v_and_b32 %s, 7, %s" % (vr(t0), vr(t0)))
        I("v_and_b32 %s, 7, v0" % vr(t2))
        I("v_xor_b32 %s, %s, %s" % (vr(t0), vr(t0), vr(t2)))
        I("v_lshl_add_u32 %s, %s, 4, %s" % (vr(vXD + n), vr(t0), vr(t1)))
        if n: I("v_add_u32 %s, %d, %s" % (vr(vXD + n), n * (8 * 1152 - 1024), vr(vXD + n)))
    I("s_waitcnt lgkmcnt(0)")
    I("s_cmp_eq_u32 %s, 0" % sr(sTYPE))
    for S, a_, b_ in ((S_X, 4, 14), (S_K, 6, 16), (S_V, 8, 18), (S_W, 10, 20), (S_O, 12, 22)):
        I("s_cselect_b32 %s, s%d, s%d" % (sr(S), a_, b_))
        I("s_cselect_b32 %s, s%d, s%d" % (sr(S + 1), a_ + 1, b_ + 1))
    I("s_lshl_b32 %s, %s, 10" % (sr(sT0), sr(sHQ)))
    I("s_sub_u32 %s, %d, %s" % (sr(S_W + 2), 576 * 8192, sr(sT0)))
    srd(S_W, sT0, None)
    I("s_mul_i32 %s, %s, %d" % (sr(sT0), sr(sB), 80 * 1152))
    I("s_mov_b32 %s, %d" % (sr(S_X + 2), 80 * 1152))
    srd(S_X, sT0, None)
    if cfg.adelay or cfg.a_late:
        I("s_and_b32 s21, s2, 7"); I("s_lshl_b32 s21, s21, 4")
        I("s_cmp_eq_u32 %s, 0" % sr(sTYPE))
        I("s_cbranch_scc1 K1_NO_S0")
    for x in q_offs_imm(0): I(x)
    flat(stage_dma(0)); flat(x_dma(0))
    if cfg.adelay or cfg.a_late: E("K1_NO_S0:")
    I("s_lshl_b32 %s, %s, 4" % (sr(sT0), sr(sB)))
    I("s_lshr_b32 %s, %s, 1" % (sr(sT1), sr(sH)))
    I("s_add_u32 %s, %s, %s" % (sr(sT0), sr(sT0), sr(sT1)))
    I("s_lshl_b32 %s, %s, 5" % (sr(sT1), sr(sB)))
    I("s_add_u32 %s, %s, %s" % (sr(sT1), sr(sT1), sr(sH)))
    I("s_cmp_eq_u32 %s, 0" % sr(sTYPE))
    I("s_cselect_b32 %s, %s, %s" % (sr(sT0), sr(sT0), sr(sT1)))
    I("s_lshl_b32 %s, %s, 17" % (sr(sT2), sr(sT0)))
    srd(S_K, sT2, 0x20000)
    srd(S_V, sT2, 0x20000)
    I("s_lshr_b32 %s, %s, 1" % (sr(sT0), sr(sWAVE)))
    I("s_cmp_eq_u32 %s, 0" % sr(sTYPE))
    I("s_cselect_b32 %s, %s, %s" % (sr(sT0), sr(sT0), sr(sWAVE)))
    I("s_mul_i32 %s, %s, 5" % (sr(sT0), sr(sT0)))
    I("s_lshr_b32 %s, s2, 1" % sr(sT1))
    I("s_add_u32 %s, %s, %s" % (sr(sROT), sr(sT0), sr(sT1)))
    I("s_and_b32 %s, %s, %d" % (sr(sROT), sr(sROT), 15 if cfg.rot else 0))
    for r in range(160): I("v_mov_b32 %s, 0" % vr(QACC + r))
    I("s_mul_i32 %s, %s, %d" % (sr(sT0), sr(sHQ), 512 * 1152))
    srd(S_O, sT0, 512 * 1152)
    I("s_mul_i32 %s, %s, %d" % (sr(sT0), sr(sTYPE), PSTR_TYPE))
    I("s_mul_i32 %s, %s, %d" % (sr(sT1), sr(sHQ), PSTR_HQ))
    I("s_add_u32 %s, %s, %s" % (sr(sT0), sr(sT0), sr(sT1)))
    I("s_mul_i32 %s, %s, 92160" % (sr(sT1), sr(sB)))
    I("s_add_u32 %s, %s, %s" % (sr(sT0), sr(sT0), sr(sT1)))
    I("s_mov_b32 %s, s28" % sr(S_P)); I("s_mov_b32 %s, s29" % sr(S_P + 1))
    srd(S_P, sT0, 92160)
    I("v_lshl_add_u32 %s, %s, 3, %s" % (vr(t1), vr(vg), vr(vrr)))
    I("v_lshlrev_b32 %s, 10, %s" % (vr(t1), vr(t1)))
    I("v_lshl_add_u32 %s, %s, 4, %s" % (vr(t1), vr(vc), vr(t1)))
    I("s_lshl_b32 %s, %s, 8" % (sr(sT0), sr(sWAVE)))
    for u in range(3):
        I("s_add_u32 %s, %s, %d" % (sr(sT2), sr(sT0), WQB[u]))
        for s_ in range(4):
            I("v_xor_b32 %s, %d, %s" % (vr(t0), s_, vr(vrr)))
            I("v_lshl_add_u32 %s, %s, 6, %s" % (vr(t0), vr(t0), vr(t1)))
            I("v_add_u32 %s, %s, %s" % (vr(vAR + 4 * u + s_), sr(sT2), vr(t0)))
    I("v_lshrrev_b32 %s, 1, %s" % (vr(t1), vr(vi)))
    for ub in range(3):
        for p_ in range(2):
            I("v_add_u32 %s, %d, %s" % (vr(t0), 4 * p_, vr(vg)))
            I("v_xor_b32 %s, %s, %s" % (vr(t0), vr(t0), vr(t1)))
            I("v_lshlrev_b32 %s, 4, %s" % (vr(t0), vr(t0)))
            I("v_lshl_add_u32 %s, %s, 7, %s" % (vr(t0), vr(vi), vr(t0)))
            I("v_add_u32 %s, %d, %s" % (vr(vBR + ub * 2 + p_), XB_[ub], vr(t0)))
    for r in range(180): I("v_accvgpr_write_b32 %s, 0" % ar(r))
    I("v_mov_b32 %s, 0x3f803f80" % vr(t0))
    for r in range(4): I("v_accvgpr_write_b32 %s, %s" % (ar(ONE + r), vr(t0)))
    I("s_mov_b32 %s, 0" % sr(sRETRY))
    if cfg.a_late and not cfg.adelay:
        I("s_cmp_lg_u32 %s, 0" % sr(sTYPE))
        I("s_cbranch_scc1 K1_G1_GO")
        if cfg.a_pfwo:
            I("s_lshr_b32 %s, s2, 4" % sr(sT0)); I("s_lshl_b32 %s, %s, 3" % (sr(sT0), sr(sT0)))
            I("s_and_b32 %s, s2, 7" % sr(sT1)); I("s_add_u32 %s, %s, %s" % (sr(sT0), sr(sT0), sr(sT1)))
            I("s_cmp_lt_u32 %s, 64" % sr(sT0))
            I("s_cselect_b32 s16, s12, s22"); I("s_cselect_b32 s17, s13, s23")
            I("s_and_b32 s17, s17, 0xffff"); I("s_mov_b32 s18, %d" % (4096 * 1152)); I("s_mov_b32 s19, 0x20000")
            I("s_and_b32 %s, %s, 63" % (sr(sT0), sr(sT0)))
            I("s_lshl_b32 %s, %s, 6" % (sr(sT0), sr(sT0)))
            I("s_lshl_b32 %s, %s, 4" % (sr(sT1), sr(sWAVE)))
            I("s_add_u32 %s, %s, %s" % (sr(sT0), sr(sT0), sr(sT1)))
            for rep in range(3):
                I("v_add_u32 %s, %d, v0" % (vr(t0), 64 * rep))
                I("v_mul_u32_u24 %s, 7282, %s" % (vr(t1), vr(t0)))
                I("v_lshrrev_b32 %s, 16, %s" % (vr(t1), vr(t1)))
                I("v_mul_u32_u24 %s, 9, %s" % (vr(t2), vr(t1)))
                I("v_sub_u32 %s, %s, %s" % (vr(t2), vr(t0), vr(t2)))
                I("v_add_u32 %s, %s, %s" % (vr(t1), sr(sT0), vr(t1)))
                I("v_mul_u32_u24 %s, 1152, %s" % (vr(t1), vr(t1)))
                I("v_lshl_add_u32 %s, %s, 7, %s" % (vr(t1), vr(t2), vr(t1)))
                if rep == 2:
                    I("v_cmp_gt_u32 vcc, 16, v0")
                    I("v_mov_b32 %s, 0x40000000" % vr(t2))
                    I("s_nop 0")
                    I("v_cndmask_b32 %s, %s, %s, vcc" % (vr(t1), vr(t2), vr(t1)))
                I("buffer_load_dword v8, %s, s[16:19], 0 offen" % vr(t1))
        for x in q_offs_imm(0): I(x)
        flat(stage_dma(0)); flat(x_dma(0))
        E("K1_G1_GO:")
    if cfg.adelay:
        I("s_cmp_lg_u32 %s, 0" % sr(sTYPE))
        I("s_cbranch_scc1 K1_G1_GO")
        I("s_cmp_lg_u32 %s, 0" % sr(sWAVE))
        I("s_cbranch_scc1 K1_G2_WAIT")
        I("v_mov_b32 %s, s21" % vr(t0))
        I("s_mov_b32 %s, 0" % sr(sT0))
        E("K1_POLL:")
        I("s_sleep %d" % cfg.poll_sleep)
        I("global_load_dword %s, %s, s[26:27] sc1" % (vr(t1), vr(t0)))
        I("s_waitcnt vmcnt(0)")
        I("v_readfirstlane_b32 %s, %s" % (sr(sT1), vr(t1)))
        I("s_add_u32 %s, %s, 1" % (sr(sT0), sr(sT0)))
        I("s_nop 2")
        I("s_cmp_ge_u32 %s, 16" % sr(sT1))
        I("s_cbranch_scc1 K1_G2_WAIT")
        I("s_cmp_lt_u32 %s, %d" % (sr(sT0), cfg.poll_max))
        I("s_cbranch_scc1 K1_POLL")
        E("K1_G2_WAIT:")
        I("s_barrier")
        for x in q_offs_imm(0): I(x)
        flat(stage_dma(0)); flat(x_dma(0))
        E("K1_G1_GO:")
    for x in q_offs_imm(1): I(x)
    flat(stage_dma(1))
    stamp(1)
    I("s_waitcnt vmcnt(8)")
    I("s_barrier")
    stamp(2)
    for T in range(6):
        for s_ in a_reads(0, T): I(s_)
    for j in range(5): I(b_read(0, j))
    for x in q_offs_imm(2): I(x)
    I("s_mov_b32 %s, %s" % (sr(sKQ), sr(sWOFF)))
    flat(stage_dma(2))
    flat(x_dma(1))
    I("s_waitcnt lgkmcnt(0)")
    I("s_mov_b32 %s, 0" % sr(sKK))
    kvoff = []
    for m in range(4):
        kvoff += ["v_add_u32 %s, %d, %s" % (vr(t0), 4 * m, vr(vg)), "v_xor_b32 %s, %s, %s" % (vr(t0), vr(t0), vr(vi)),
                  "v_lshlrev_b32 %s, 4, %s" % (vr(t0), vr(t0)), "v_lshl_add_u32 %s, %s, 8, %s" % (vr(vKD + m), vr(vg), vr(t0))]
    for m in range(2):
        kvoff += ["v_add_u32 %s, %d, %s" % (vr(t0), 4 * m, vr(vg)), "v_lshlrev_b32 %s, 1, %s" % (vr(t0), vr(t0)), "v_xor_b32 %s, %s, %s" % (vr(t0), vr(t0), vr(vi)),
                  "v_lshlrev_b32 %s, 4, %s" % (vr(t0), vr(t0)), "v_lshl_add_u32 %s, %s, 8, %s" % (vr(vVD + m), vr(vg), vr(t0))]
    def q_step(v, kind="loop", shared=None):
        u = v % 3
        un = (u + 1) % 3
        last = (kind == "kv2")
        mf = []
        for p in range(4):
            for j in range(5):
                for T in (2 * p, 2 * p + 1):
                    mf.append(mfma(vr(qacc(T, j), 4), vr(WF + 4 * T, 4), vr(XF + 4 * j, 4), vr(qacc(T, j), 4)))
        F = Fill(40)
        F.put(-1, "s_waitcnt lgkmcnt(6)")
        F.put(1, "s_waitcnt lgkmcnt(3)"); F.put(3, "s_waitcnt lgkmcnt(2)"); F.put(5, "s_waitcnt lgkmcnt(1)"); F.put(7, "s_waitcnt lgkmcnt(0)")
        F.put(8, a_reads(u, 6)); F.put(9, a_reads(u, 7))
        steady = 8 + (3 if (v - 1) % 2 == 1 else 0)
        if kind == "kv1": steady = 0
        tr = trace_pt(["s_add_u32 s4, %s, %d" % (sr(sKK), v)])
        if not last:
            F.put(14, ["s_waitcnt vmcnt(%d) lgkmcnt(0)" % steady, "s_barrier"] + tr)
            F.put(15, a_reads(un, 0)); F.put(16, a_reads(un, 1))
            F.put(20, a_reads(un, 2)); F.put(21, a_reads(un, 3))
            F.put(30, a_reads(un, 4)); F.put(32, a_reads(un, 5))
            for j in range(5): F.put(31 + 2 * j, b_read(v + 1, j))
        else:
            F.put(14, ["s_waitcnt lgkmcnt(0)", "s_barrier"] + tr)
        items = []
        if kind == "loop":
            offs = ["s_add_u32 %s, %s, 262144" % (sr(sKQ), sr(sKQ)), "s_cmp_eq_u32 %s, %d" % (sr(sKQ), 18 * 262144), "s_cselect_b32 %s, 0, %s" % (sr(sKQ), sr(sKQ)),
                    "s_lshr_b32 %s, %s, 12" % (sr(sXOFF), sr(sKQ)), "s_mov_b32 %s, %s" % (sr(sWOFF), sr(sKQ))]
            F.put(0, offs[0]); F.put(2, offs[1:3]); F.put(4, offs[3:5])
            if v % 2 == 1: items += singles(x_dma(((v + 3) >> 1) % 3))
            items += singles(stage_dma(u))
        elif kind == "k0":
            F.flow(kvoff, 10, 39)
        elif kind == "kv1":
            F.put(0, ["s_mov_b32 %s, %s" % (sr(sKOFF), sr(sROT)), "s_lshl_b32 %s, %s, 13" % (sr(sKOFF), sr(sKOFF))])
            items += singles(kv_dma(True, 0, sKOFF, shared) + kv_dma(False, 0, sKOFF, shared))
        elif kind == "kv2":
            F.put(0, ["s_add_u32 %s, %s, 1" % (sr(sKOFF), sr(sROT)), "s_and_b32 %s, %s, 15" % (sr(sKOFF), sr(sKOFF))])
            F.put(1, ["s_lshl_b32 %s, %s, 13" % (sr(sKOFF), sr(sKOFF))])
            items += singles(kv_dma(True, 1, sKOFF, shared))
        if items: F.flow(items, cfg.q_lo, cfg.q_hi)
        interleave(mf, F.f)
    E("K1_QLOOP:")
    for v in range(6): q_step(v, "loop")
    I("s_add_u32 %s, %s, 6" % (sr(sKK), sr(sKK)))
    I("s_cmp_lt_u32 %s, 12" % sr(sKK))
    I("s_cbranch_scc1 K1_QLOOP")
    def signal():
        I("s_cmp_eq_u32 %s, 0" % sr(sTYPE))
        I("s_cbranch_scc1 K1_NOSIG")
        I("s_cmp_lg_u32 %s, 0" % sr(sWAVE))
        I("s_cbranch_scc1 K1_NOSIG")
        I("v_mov_b32 %s, s21" % vr(t0))
        I("v_mov_b32 %s, 1" % vr(t1))
        I("s_mov_b64 exec, 1")
        I("global_atomic_add %s, %s, s[26:27]" % (vr(t0), vr(t1)))
        I("s_mov_b64 exec, -1")
        E("K1_NOSIG:")
    for v in range(3):
        if cfg.adelay and cfg.sig_step == 12 + v: signal()
        q_step(v, "loop")
    if cfg.adelay and cfg.sig_step == 15: signal()
    q_step(3, "k0")
    I("s_cmp_eq_u32 %s, 0" % sr(sTYPE))
    I("s_cbranch_scc0 K1_B_PATH")
    for tag, shared in (("A", True), ("B", False)):
        if tag == "B": E("K1_B_PATH:")
        q_step(4, "kv1", shared)
        q_step(5, "kv2", shared)
        stamp(3)
        I("s_nop 7"); I("s_nop 1")
        q_epilogue()
        ring_addrs()
        I("s_mov_b32 %s, %s" % (sr(sVOFF), sr(sKOFF)))
        flat(kv_dma(False, 1, sVOFF, shared))
        I("s_waitcnt vmcnt(%d)" % (12 if shared else 24))
        if shared: I("s_barrier")
        for mt in range(2):
            for s_ in range(4): I(k_read(0, mt, s_))
        att_prologue_and_loop(shared, tag)
        if tag == "A":
            I("s_waitcnt vmcnt(0)")
            I("s_barrier")
            I("s_branch K1_POST")
    E("K1_POST:")
    for m in pv_group(4): I(m)
    stamp(5)
    I("s_nop 7"); I("s_nop 1")
    lv = [SS + j for j in range(5)]
    for j in range(5): I("v_accvgpr_read_b32 %s, %s" % (vr(lv[j]), ar(LA + 4 * j)))
    I("s_cmp_lg_u32 %s, 0" % sr(sRETRY))
    I("s_cbranch_scc1 K1_NORM")
    I("v_add_f32 %s, %s, %s" % (vr(t1), vr(lv[0]), vr(lv[1])))
    I("v_add_f32 %s, %s, %s" % (vr(t1), vr(t1), vr(lv[2])))
    I("v_add_f32 %s, %s, %s" % (vr(t1), vr(t1), vr(lv[3])))
    I("v_add_f32 %s, %s, %s" % (vr(t1), vr(t1), vr(lv[4])))
    I("v_mov_b32 %s, 0x4e800000" % vr(t2))
    I("v_cmp_nlt_f32 vcc, %s, %s" % (vr(t1), vr(t2)))
    I("s_nop 4")
    I("s_cbranch_vccnz K1_FALLBACK")
    E("K1_NORM:")
    I("v_lshrrev_b32 %s, 3, v0" % vr(t0))
    I("s_lshl_b32 %s, %s, 7" % (sr(sT1), sr(sWAVE)))
    I("v_add_u32 %s, %s, %s" % (vr(t0), sr(sT1), vr(t0)))
    I("v_mul_u32_u24 %s, 1152, %s" % (vr(t0), vr(t0)))
    I("v_lshlrev_b32 %s, 1, %s" % (vr(t1), vr(vg)))
    I("v_and_b32 %s, 7, v0" % vr(t2))
    I("v_xor_b32 %s, %s, %s" % (vr(t1), vr(t1), vr(t2)))
    I("v_lshl_add_u32 %s, %s, 4, %s" % (vr(vW3D), vr(t1), vr(t0)))
    for n in range(1, 4): I("v_add_u32 %s, %d, %s" % (vr(vW3D + n), n * (8 * 1152 - 1024), vr(vW3D)))
    I("v_lshlrev_b32 %s, 3, v0" % vr(vL8))
    I("s_lshl_b32 %s, %s, 14" % (sr(sBUF1), sr(sWAVE)))
    I("s_add_u32 %s, %s, %d" % (sr(sBUF0), sr(sBUF1), P3B[0]))
    I("s_mul_i32 %s, %s, 20480" % (sr(sXOWN), sr(sWAVE)))
    rc = [PK + 2 * j for j in range(5)]
    for j in range(5): I("v_rcp_f32 %s, %s" % (vr(rc[j]), vr(lv[j])))
    I("s_nop 0")
    for j in range(5): I("v_mov_b32 %s, %s" % (vr(rc[j] + 1), vr(rc[j])))
    tmpsets = [KF, KF + 8, KF + 16, KF + 24]
    cnt = 0
    for p in range(4):
        for j in range(5):
            tb = tmpsets[cnt % 4]; cnt += 1
            for k in range(4):
                I("v_accvgpr_read_b32 %s, %s" % (vr(tb + k), ar(oacc(2 * p, j) + k)))
                I("v_accvgpr_read_b32 %s, %s" % (vr(tb + 4 + k), ar(oacc(2 * p + 1, j) + k)))
            for k in range(0, 8, 2): I("v_pk_mul_f32 %s, %s, %s" % (vr(tb + k, 2), vr(tb + k, 2), vr(rc[j], 2)))
            ob = OFO + (p * 5 + j) * 4
            for k in range(4): I("v_cvt_pk_bf16_f32 %s, %s, %s" % (vr(ob + k), vr(tb + 2 * k), vr(tb + 2 * k + 1)))
    I("s_waitcnt vmcnt(0)")
    I("s_barrier")
    I("s_lshl_b32 %s, %s, 7" % (sr(sPOFF), sr(sCOFF)))
    flat(w3_dma(sBUF0, sPOFF))
    I("v_add_u32 %s, %s, %s" % (vr(t0), sr(sXOWN), vr(vLANE16)))
    for q in range(20): I("ds_write_b128 %s, %s offset:%d" % (vr(t0), vr(OFO + 4 * q, 4), q * 1024))
    I("v_lshl_add_u32 %s, %s, 2, %s" % (vr(t1), vr(vg), vr(vrr)))
    I("v_lshlrev_b32 %s, 7, %s" % (vr(t1), vr(t1)))
    I("v_lshrrev_b32 %s, 1, %s" % (vr(t2), vr(vrr)))
    I("v_lshl_add_u32 %s, %s, 1, %s" % (vr(t2), vr(vg), vr(t2)))
    I("v_and_b32 %s, 3, %s" % (vr(t2), vr(t2)))
    I("v_lshlrev_b32 %s, 1, %s" % (vr(t2), vr(t2)))
    I("v_lshrrev_b32 %s, 1, %s" % (vr(t0), vr(vc)))
    I("s_lshl_b32 %s, %s, 1" % (sr(sT0), sr(sWAVE)))
    I("v_add_u32 %s, %s, %s" % (vr(t0), sr(sT0), vr(t0)))
    I("v_xor_b32 %s, %s, %s" % (vr(t0), vr(t0), vr(t2)))
    I("v_lshl_add_u32 %s, %s, 4, %s" % (vr(t1), vr(t0), vr(t1)))
    I("v_and_b32 %s, 1, %s" % (vr(t0), vr(vc)))
    I("v_lshl_add_u32 %s, %s, 3, %s" % (vr(t1), vr(t0), vr(t1)))
    for q in range(4):
        I("s_add_u32 %s, %s, %d" % (sr(sT0), sr(sWAVE), q))
        I("s_and_b32 %s, %s, 3" % (sr(sT0), sr(sT0)))
        I("s_lshl_b32 %s, %s, 14" % (sr(sT0), sr(sT0)))
        I("v_add_u32 %s, %s, %s" % (vr(vA3 + 4 + q), sr(sT0), vr(t1)))
        I("v_add_u32 %s, %d, %s" % (vr(vA3 + q), P3B[0], vr(vA3 + 4 + q)))
    I("s_waitcnt lgkmcnt(0)")
    I("s_barrier")
    for q in range(1, 4):
        I("s_add_u32 %s, %s, %d" % (sr(sT0), sr(sWAVE), q))
        I("s_and_b32 %s, %s, 3" % (sr(sT0), sr(sT0)))
        I("s_mul_i32 %s, %s, 20480" % (sr(sT0), sr(sT0)))
        I("v_add_u32 %s, %s, %s" % (vr(t0), sr(sT0), vr(vLANE16)))
        for k in range(20):
            dst = vr(96 + 4 * k, 4) if q == 1 else ar(96 + (q - 2) * 80 + 4 * k, 4)
            I("ds_read_b128 %s, %s offset:%d" % (dst, vr(t0), k * 1024))
            if k % 10 == 9: I("s_waitcnt lgkmcnt(4)")
    def bfrag(kl, j):
        q, p = kl >> 2, kl & 3
        idx = (p * 5 + j) * 4
        if q == 0: return vr(OFO + idx, 4)
        if q == 1: return vr(96 + idx, 4)
        return ar(96 + (q - 2) * 80 + idx, 4)
    def a3_reads(u, kl):
        ad = vA3 + 4 * u + (kl >> 2)
        off = (kl & 3) * 4096
        sl = A3 + 4 * (kl % 8)
        return ["ds_read_b64_tr_b16 %s, %s offset:%d" % (vr(sl, 2), vr(ad), off),
                "ds_read_b64_tr_b16 %s, %s offset:%d" % (vr(sl + 2, 2), vr(ad), off + 2048)]
    I("s_waitcnt vmcnt(0) lgkmcnt(0)")
    I("s_barrier")
    I("s_add_u32 %s, %s, 1" % (sr(sT2X), sr(sCOFF)))
    I("s_lshl_b32 %s, %s, 7" % (sr(sT2X), sr(sT2X)))
    NS = cfg.p3_first
    flat(w3_dma(sBUF1, sT2X)[:NS])
    for kl in range(8):
        for s_ in a3_reads(0, kl): I(s_)
        if kl == 3: I("s_waitcnt lgkmcnt(0)")
    I("s_waitcnt lgkmcnt(0)")
    stamp(6)
    I("s_mov_b32 %s, 0" % sr(sKK))
    def pk(up, j):
        tb = PK + (j & 1) * 8
        r = ["v_accvgpr_read_b32 %s, %s" % (vr(tb + k), ar(up * 20 + j * 4 + k)) for k in range(4)]
        r += ["v_cvt_pk_bf16_f32 %s, %s, %s" % (vr(tb + 4 + k), vr(tb + 2 * k), vr(tb + 2 * k + 1)) for k in range(2)]
        st = ["s_add_u32 %s, %s, %d" % (sr(sT2), sr(sPOFF), j * 512),
              "buffer_store_dwordx2 %s, %s, %s, %s offen %s" % (vr(tb + 4, 2), vr(vL8), sr(S_P, 4), sr(sT2), cfg.st_flag)]
        return r, st
    def split(lst, n):
        k = 0
        for i_, it in enumerate(lst):
            if it[0].startswith("buffer_load"):
                k += 1
                if k == n: return lst[:i_ + 1], lst[i_ + 1:]
    E("K1_P3LOOP:")
    for u in range(2):
        un = 1 - u
        mf = []
        for kp in range(8):
            for j in range(5):
                for kl in (2 * kp, 2 * kp + 1):
                    d = ar(u * 20 + j * 4, 4)
                    mf.append(mfma(d, vr(A3 + 4 * (kl % 8), 4), bfrag(kl, j), d if kl else "0"))
        F = Fill(80)
        F.put(-1, trace_pt(["s_add_u32 s4, %s, %d" % (sr(sKK), 40 + u)]))
        for kp in range(8):
            g = 10 * kp + 10
            nb, nkl = (u, 2 * kp + 8) if kp < 4 else (un, 2 * kp - 8)
            if kp < 7:
                F.put(g, a3_reads(nb, nkl)); F.put(g + 1, a3_reads(nb, nkl + 1))
            else:
                F.put(79, a3_reads(nb, nkl) + a3_reads(nb, nkl + 1))
        for kp in range(8): F.put(10 * kp - 1, "s_waitcnt lgkmcnt(8)")
        F.put(49, ["s_waitcnt vmcnt(5) lgkmcnt(0)", "s_barrier"])
        dm_prev = singles(w3_dma(sBUF0 if un == 0 else sBUF1, sT2X))
        F.flow(split(dm_prev, NS)[1], 2, 24)
        pre = ["s_add_u32 %s, %s, %d" % (sr(sPOFF), sr(sKK), u + 8)] + wrap9(sPOFF) + \
              ["s_sub_u32 %s, %s, 9" % (sr(sT1), sr(sPOFF)), "s_cmp_ge_u32 %s, 9" % sr(sPOFF), "s_cselect_b32 %s, %s, %s" % (sr(sPOFF), sr(sT1), sr(sPOFF)),
               "s_lshl_b32 %s, %s, 2" % (sr(sPOFF), sr(sPOFF)), "s_add_u32 %s, %s, %s" % (sr(sPOFF), sr(sPOFF), sr(sWAVE)), "s_mulk_i32 %s, 2560" % sr(sPOFF)]
        if u == 0: pre += ["s_cmp_eq_u32 %s, 0" % sr(sKK), "s_cselect_b32 %s, 0x40000000, %s" % (sr(sPOFF), sr(sPOFF))]
        F.flow(atomize(pre), 2, 24, spread=False)
        items = []
        for j in range(5):
            r, st = pk(un, j)
            items += r + st
        F.flow(items, 25, 48)
        pre = ["s_add_u32 %s, %s, %d" % (sr(sT0), sr(sKK), u + 2), "s_mov_b32 %s, %s" % (sr(sT2X), sr(sT0))] + wrap9(sT2X) + \
              ["s_lshl_b32 %s, %s, 7" % (sr(sT2X), sr(sT2X)), "s_cmp_lt_u32 %s, 9" % sr(sT0), "s_cselect_b32 %s, %s, 0x40000000" % (sr(sT2X), sr(sT2X))]
        F.flow(atomize(pre), 52, 58, spread=False)
        dm_cur = singles(w3_dma(sBUF0 if u == 0 else sBUF1, sT2X))
        F.flow(split(dm_cur, NS)[0], 59, 79)
        interleave(mf, F.f)
        if u == 0:
            I("s_cmp_eq_u32 %s, 8" % sr(sKK))
            I("s_cbranch_scc1 K1_P3DONE")
    I("s_add_u32 %s, %s, 2" % (sr(sKK), sr(sKK)))
    I("s_branch K1_P3LOOP")
    E("K1_P3DONE:")
    I("s_nop 7"); I("s_nop 1")
    I("s_mov_b32 %s, 8" % sr(sPOFF))
    for x in wrap9(sPOFF): I(x)
    I("s_lshl_b32 %s, %s, 2" % (sr(sPOFF), sr(sPOFF)))
    I("s_add_u32 %s, %s, %s" % (sr(sPOFF), sr(sPOFF), sr(sWAVE)))
    I("s_mulk_i32 %s, 2560" % sr(sPOFF))
    for j in range(5):
        r, st = pk(0, j)
        for x in r + st: I(x)
    if cfg.fuse: fused_reduce()
    if cfg.trace:
        I("s_memtime s[6:7]"); I("s_waitcnt lgkmcnt(0)"); I("v_writelane_b32 v7, s6, 60")
        I("s_lshl_b32 s4, %s, 8" % sr(sUID)); I("s_add_u32 s4, s4, 0x4100000")
        I("v_lshlrev_b32 v6, 2, v0"); I("v_add_u32 v6, s4, v6")
        I("global_store_dword v6, v7, s[28:29]")
    if cfg.stamps: I("s_waitcnt vmcnt(0)")
    stamp(7)
    stamp_out(8, 28, sUID, STAMP_OFF)
    E("K1_END:")
    I("s_endpgm")
    E("K1_FALLBACK:")
    I("s_waitcnt vmcnt(0) lgkmcnt(0)")
    I("s_cmp_lg_u32 %s, 0" % sr(sTYPE))
    I("s_cbranch_scc1 K1_FB_RING")
    I("s_lshr_b32 %s, %s, 1" % (sr(sT0), sr(sWAVE)))
    I("s_lshl_b32 %s, %s, 15" % (sr(sT0), sr(sT0)))
    I("s_mul_i32 %s, %s, 98304" % (sr(sT1), sr(sHI)))
    I("s_add_u32 %s, %s, %s" % (sr(sLW), sr(sT0), sr(sT1)))
    E("K1_FB_RING:")
    ring_addrs()
    mx = [VF + j for j in range(5)]
    for j in range(5): I("v_mov_b32 %s, 0xff800000" % vr(mx[j]))
    I("s_mov_b32 %s, 0" % sr(sKOFF))
    E("K1_FB_LOOP:")
    flat(kv_dma(True, 0, sKOFF))
    I("s_waitcnt vmcnt(0)")
    for mt in range(2):
        for s_ in range(4): I(k_read(0, mt, s_))
    I("s_waitcnt lgkmcnt(0)")
    for j in range(5):
        for m in qk_group(j, czero=True): I(m)
    I("s_nop 7"); I("s_nop 1")
    for j in range(5):
        b_ = SS + 8 * j
        for k in range(0, 8, 2): I("v_max3_f32 %s, %s, %s, %s" % (vr(mx[j]), vr(mx[j]), vr(b_ + k), vr(b_ + k + 1)))
    I("s_add_u32 %s, %s, 8192" % (sr(sKOFF), sr(sKOFF)))
    I("s_cmp_lt_u32 %s, 131072" % sr(sKOFF))
    I("s_cbranch_scc1 K1_FB_LOOP")
    for j in range(5):
        I("v_mov_b32 %s, %s" % (vr(t0), vr(mx[j])))
        xlane_max(t0, t1)
        for k in range(4): I("v_sub_f32 %s, 0, %s" % (vr(NM + 4 * j + k), vr(t0)))
    for r in range(180): I("v_accvgpr_write_b32 %s, 0" % ar(r))
    I("s_mov_b32 %s, 1" % sr(sRETRY))
    tile_off(sKOFF, 0); tile_off(sVOFF, 0)
    flat(kv_dma(True, 0, sKOFF)); flat(kv_dma(False, 0, sVOFF))
    tile_off(sKOFF, 1); tile_off(sVOFF, 1)
    flat(kv_dma(True, 1, sKOFF)); flat(kv_dma(False, 1, sVOFF))
    I("s_waitcnt vmcnt(24)")
    for mt in range(2):
        for s_ in range(4): I(k_read(0, mt, s_))
    att_prologue_and_loop(False, "R", retry=True)
    I("s_branch K1_POST")

def gen_k2():
    R = cfg.k2_rep
    NWG = 720 // R
    E(".globl reduce_kernel"); E(".p2align 8"); E(".type reduce_kernel,@function"); E("reduce_kernel:")
    I("s_cmp_ge_u32 s2, %d" % NWG)
    I("s_cbranch_scc1 K2_END")
    I("s_load_dwordx2 s[8:9], s[0:1], 80")
    I("s_load_dwordx2 s[10:11], s[0:1], 96")
    stamp(0)
    I("v_lshrrev_b32 v1, 6, v0")
    I("v_and_b32 v0, 63, v0")
    I("v_readfirstlane_b32 s12, v1")
    I("s_lshl_b32 s13, s2, 2")
    I("v_lshlrev_b32 v2, 4, v0")
    I("s_add_u32 s13, s13, s12")
    I("s_mov_b32 s78, s13")
    I("s_mul_i32 s13, s13, %d" % R)
    assert 90 % R == 0
    I("s_mul_i32 s14, s13, 46604")
    I("s_lshr_b32 s14, s14, 22")
    for u in range(2880): assert (u * 46604) >> 22 == u // 90
    I("s_mul_i32 s15, s14, 90")
    I("s_sub_u32 s15, s13, s15")
    I("s_lshr_b32 s16, s14, 4")
    I("s_and_b32 s17, s14, 15")
    I("s_mul_i32 s18, s16, %d" % PSTR_TYPE)
    I("s_mul_i32 s19, s17, 92160")
    I("s_add_u32 s18, s18, s19")
    I("s_lshl_b32 s19, s15, 10")
    I("s_add_u32 s18, s18, s19")
    I("s_waitcnt lgkmcnt(0)")
    I("s_add_u32 s20, s10, s18")
    I("s_addc_u32 s21, s11, 0")
    I("s_and_b32 s21, s21, 0xffff")
    I("s_mov_b32 s22, %d" % (7 * PSTR_HQ + 1024 * R))
    I("s_mov_b32 s23, 0x20000")
    D0 = 32
    for r in range(R):
        for hq in range(8):
            I("s_mov_b32 s24, %d" % (hq * PSTR_HQ + r * 1024))
            I("buffer_load_dwordx4 %s, v2, s[20:23], s24 offen" % vr(D0 + 4 * (r * 8 + hq), 4))
    I("s_mul_i32 s29, s17, 80")
    I("s_mul_i32 s30, s16, 1152")
    I("s_mov_b32 s32, s8")
    I("s_and_b32 s33, s9, 0xffff")
    I("s_mov_b32 s34, %d" % (16 * 80 * 1152 * 2))
    I("s_mov_b32 s35, 0x20000")
    I("s_mov_b32 s36, 0xffff0000")
    for r in range(R):
        I("v_lshrrev_b32 v3, 5, v0")
        I("s_add_u32 s25, s15, %d" % r)
        I("s_lshl_b32 s25, s25, 1")
        I("v_add_u32 v3, s25, v3")
        I("v_mul_u32_u24 v4, 13108, v3")
        I("v_lshrrev_b32 v4, 16, v4")
        I("v_mul_u32_u24 v5, 5, v4")
        I("v_sub_u32 v5, v3, v5")
        I("v_and_b32 v6, 31, v0")
        I("v_lshlrev_b32 v6, 1, v6")
        I("v_and_b32 v7, 15, v6")
        I("v_lshrrev_b32 v6, 4, v6")
        I("v_lshl_add_u32 v5, v5, 4, v7")
        I("v_add_u32 v5, s29, v5")
        I("v_mul_u32_u24 v5, 2304, v5")
        I("v_lshl_add_u32 v5, v4, 5, v5")
        I("v_lshl_add_u32 %s, v6, 3, v5" % vr(24 + r))
    for q in range(180): assert (q * 13108) >> 16 == q // 5
    for r in range(R):
        for hq in range(8):
            I("s_waitcnt vmcnt(%d)" % (R * 8 - 1 - (r * 8 + hq) + 2 * r))
            for k in range(4):
                src = D0 + 4 * (r * 8 + hq) + k
                if hq == 0:
                    I("v_lshlrev_b32 %s, 16, %s" % (vr(8 + 2 * k), vr(src)))
                    I("v_and_b32 %s, s36, %s" % (vr(9 + 2 * k), vr(src)))
                else:
                    I("v_lshlrev_b32 v3, 16, %s" % vr(src))
                    I("v_and_b32 v4, s36, %s" % vr(src))
                    I("v_add_f32 %s, %s, v3" % (vr(8 + 2 * k), vr(8 + 2 * k)))
                    I("v_add_f32 %s, %s, v4" % (vr(9 + 2 * k), vr(9 + 2 * k)))
        ob = 16 + 4 * (r & 1)
        for k in range(4): I("v_cvt_pk_bf16_f32 %s, %s, %s" % (vr(ob + k), vr(8 + 2 * k), vr(9 + 2 * k)))
        I("buffer_store_dwordx2 %s, %s, s[32:35], s30 offen" % (vr(ob, 2), vr(24 + r)))
        I("buffer_store_dwordx2 %s, %s, s[32:35], s30 offen offset:2304" % (vr(ob + 2, 2), vr(24 + r)))
    if cfg.stamps: I("s_waitcnt vmcnt(0)")
    stamp(1)
    stamp_out(2, 10, 78, STAMP_OFF + 0x10000)
    E("K2_END:")
    I("s_endpgm")

def kd(name, nv, ns, acc):
    E(".amdhsa_kernel %s" % name)
    E("  .amdhsa_next_free_vgpr %d" % nv)
    E("  .amdhsa_next_free_sgpr %d" % ns)
    E("  .amdhsa_accum_offset %d" % acc)
    E("  .amdhsa_group_segment_fixed_size 0")
    E("  .amdhsa_kernarg_size 104")
    E("  .amdhsa_user_sgpr_count 2")
    E("  .amdhsa_user_sgpr_kernarg_segment_ptr 1")
    E("  .amdhsa_system_sgpr_workgroup_id_x 1")
    E(".end_amdhsa_kernel")

KN = "concat_heads__gqa_block_cached__mha_block_cached__near_ridge_kernel" if cfg.fuse else "attn_kernel"
if cfg.fuse: E("; @launch grid=(256,1,1) block=(256,1,1) lds=%d" % K1_LDS)
else: E("; @launch kernel=attn_kernel grid=(256,1,1) block=(256,1,1) lds=%d" % K1_LDS)
if not cfg.fuse: E("; @launch kernel=reduce_kernel grid=(%d,1,1) block=(256,1,1) lds=0" % (720 // cfg.k2_rep))
E('.amdgcn_target "amdgcn-amd-amdhsa--gfx950"')
E(".text")
gen_k1()
if not cfg.fuse: gen_k2()
E('.section .rodata,"a"')
E(".p2align 6")
kd(KN, 512, 102, 256)
E(".p2align 6")
if not cfg.fuse: kd("reduce_kernel", 32 + 32 * cfg.k2_rep, 102, 32 + 32 * cfg.k2_rep)
print("\n".join(L))
```

```python
import sys, math, struct

class Cfg:
    nt_kv = 1
    stamps = 0
    trace = 0
    st_flag = "sc1"
    rot = 1
    krot = 1
    capA = 5
    capB = 0
    q_lo = 17
    q_hi = 39
    a_pfb = 1
    x_pf = 0
    fuse = 0
    red_sleep = 8
    red_max = 4000
    k2_rep = 2
    a_pfwo = 1
    a_late = 1
    adelay = 0
    sig_step = 12
    poll_max = 60
    poll_sleep = 16
    wo_pf = 0
    wo_step = 14
    wo_n = 1
    p3_first = 10
cfg = Cfg()
for a in sys.argv[1:]:
    if "=" in a:
        k, v = a.split("=")
        setattr(cfg, k, int(v) if isinstance(getattr(cfg, k), int) else v)

L = []
def E(s=""): L.append(s)
def I(s):
    if s.endswith(":"): L.append(s)
    else: L.append("  " + s)
def vr(b, n=1): return "v%d" % b if n == 1 else "v[%d:%d]" % (b, b + n - 1)
def ar(b, n=1): return "a%d" % b if n == 1 else "a[%d:%d]" % (b, b + n - 1)
def sr(b, n=1): return "s%d" % b if n == 1 else "s[%d:%d]" % (b, b + n - 1)
MFMA = "v_mfma_f32_16x16x32_bf16"
def mfma(d, a, b, c): return "%s %s, %s, %s, %s" % (MFMA, d, a, b, c)
def f32bits(x): return struct.unpack("<I", struct.pack("<f", x))[0]

def stamp(k):
    if cfg.stamps: I("s_memrealtime s[%d:%d]" % (80 + 2 * k, 81 + 2 * k))
def stamp_out(n, wsreg, idreg, off):
    if cfg.stamps:
        I("s_waitcnt lgkmcnt(0)")
        I("s_lshl_b32 s98, %s, 5" % sr(idreg))
        I("s_add_u32 s98, s98, 0x%x" % off)
        for k in range(8): I("v_mov_b32 v%d, %s" % (8 + k, ("s%d" % (80 + 2 * k)) if k < n else "0"))
        I("v_mov_b32 v16, s98")
        I("global_store_dwordx4 v16, v[8:11], %s" % sr(wsreg, 2))
        I("global_store_dwordx4 v16, v[12:15], %s offset:16" % sr(wsreg, 2))
def trace_pt(idx_lines):
    if not cfg.trace: return []
    return ["s_memtime s[6:7]", "s_waitcnt lgkmcnt(0)"] + idx_lines + ["v_mov_b32 v6, s6", "v_cmp_eq_u32 vcc, s4, v0", "s_nop 1", "v_cndmask_b32 v7, v7, v6, vcc"]

def interleave(mf, fills):
    for s in fills.get(-1, []): I(s)
    for i, m in enumerate(mf):
        I(m)
        for s in fills.get(i, []): I(s)
class Fill:
    def __init__(self, n): self.n = n; self.f = {}; self.load = {}
    @staticmethod
    def cost(ins):
        c = 0
        for x in ins:
            if x.endswith(":"): continue
            c += 2 if x.startswith("v_exp") or x.startswith("v_rcp") else 1
        return c
    def put(self, g, ins):
        ins = ins if isinstance(ins, list) else [ins]
        self.f.setdefault(g, []).extend(ins); self.load[g] = self.load.get(g, 0) + self.cost(ins)
    def flow(self, items, lo, hi, budget=2, spread=True):
        items = [x if isinstance(x, list) else [x] for x in items]
        n = len(items); g = lo
        for i, it in enumerate(items):
            tgt = lo + (i * (hi - lo + 1)) // n if spread else lo
            g = max(g, tgt)
            c = self.cost(it)
            while g <= hi and self.load.get(g, 0) + c > max(budget, c): g += 1
            if g > hi: g = hi
            self.put(g, it)
def atomize(lst):
    out = []
    for x in lst:
        if out and isinstance(out[-1], list) and out[-1][0].startswith("s_cmp") and x.startswith("s_cselect"): out[-1].append(x)
        elif x.startswith("s_cmp"): out.append([x])
        else: out.append(x)
    return out
def add_fill(f, gap, ins): f.setdefault(gap, []).extend(ins if isinstance(ins, list) else [ins])
def flat(groups):
    for g in groups:
        for s in g: I(s)
def singles(groups):
    r = []
    for g in groups:
        if any(x.startswith("s_mov_b32 exec") for x in g): r.append(g)
        else: r += [[x] for x in g]
    return r

QSCALE = math.log2(math.e) / math.sqrt(128.0)
NTS = "nt " if cfg.nt_kv else ""
PSTR_HQ = 16 * 92160
PSTR_TYPE = 8 * PSTR_HQ
STAMP_OFF = 0x4000000

S_K, S_V, S_W, S_X, S_O, S_P = 32, 36, 40, 44, 48, 52
sWAVE, sTYPE, sHQ, sHI, sB, sH = 56, 57, 58, 59, 60, 61
sLW = 62
sT0, sT1, sT2, sT3 = 64, 65, 66, 67
sKK = 68
sWOFF, sXOFF = 69, 70
sBUF0, sBUF1 = 71, 72
sVOFF, sKOFF = 73, 74
sKQ = 75
sHALF = 76
sUID = 78
sPOFF = 79
sROT, sTI = 96, 97
sCOFF = 98
sMW = [99, 100, 101]
sMX = [30, 31, 63]
sQOFF = 3
sRETRY = 5
sT2X = 69
sXOWN = 70
QF, SS, PP, KF, VF, NM = 16, 96, 136, 144, 176, 208
vKR, vVR, vKD, vVD = 228, 232, 246, 250
vWD, vXD = 246, 250
vAR = 228
vBR = 240
vLANE16 = 254
vg, vi, vrr, vc = 9, 10, 11, 12
t0, t1, t2 = 13, 14, 15
QACC, WF, XF = 16, 176, 208
OA, LA, ONE = 0, 160, 180
def oacc(T, j): return OA + (j * 8 + T) * 4
def qacc(T, j): return QACC + (j * 8 + T) * 4
WQB = [u * 32768 for u in range(3)]
XB_ = [98304 + u * 10240 for u in range(3)]
K1_LDS = 163840
OFO = 16
A3 = 176
vA3 = 232
vW3D = 1
vL8 = 5
PK = 208
P3B = [98304, 0]

def dma(voff, srd, soff, imm, nt=""):
    assert 0 <= imm < 4096
    return "buffer_load_dwordx4 %s, %s, %s offen offset:%d %slds" % (vr(voff), sr(srd, 4), soff, imm, nt)

def stage_dma(u):
    r = []
    for n in range(8):
        pre = []
        if n == 0: pre = ["s_mov_b32 m0, %s" % sr(sMW[u]), "s_nop 0"]
        if n == 4: pre = ["s_add_u32 m0, %s, 4096" % sr(sMW[u]), "s_add_u32 %s, %s, 32768" % (sr(sT3), sr(sWOFF))]
        r.append(pre + [dma(vWD + (n & 3), S_W, sr(sWOFF) if n < 4 else sr(sT3), (n & 3) * 1024)])
    return r
def x_dma(ub):
    r = [["s_mov_b32 m0, %s" % sr(sMX[ub]), "s_nop 0", dma(vXD + 0, S_X, sr(sXOFF), 0)]]
    r.append([dma(vXD + 1, S_X, sr(sXOFF), 1024)])
    r.append(["s_mov_b32 exec_hi, 0", dma(vXD + 2, S_X, sr(sXOFF), 2048), "s_mov_b32 exec_hi, -1"])
    return r
def q_offs_imm(t):
    return ["s_add_u32 %s, %s, %d" % (sr(sT2), sr(sQOFF), t), "s_sub_u32 %s, %s, 18" % (sr(sT3), sr(sT2)), "s_cmp_ge_u32 %s, 18" % sr(sT2),
            "s_cselect_b32 %s, %s, %s" % (sr(sT2), sr(sT3), sr(sT2)), "s_lshl_b32 %s, %s, 18" % (sr(sWOFF), sr(sT2)), "s_lshl_b32 %s, %s, 6" % (sr(sXOFF), sr(sT2))]

def kv_dma(is_k, slot_par, soff, shared=False, cap=0):
    base = slot_par * 16384 + (0 if is_k else 8192)
    srd = S_K if is_k else S_V
    tmp = sT0 if is_k else sT1
    thr = ["s_waitcnt vmcnt(%d)" % (cap - 1)] if cap else []
    r = []
    if shared:
        for n in range(4):
            pre = []
            if n == 0:
                pre = ["s_add_u32 %s, %s, %s" % (sr(tmp), sr(sLW), sr(sHALF)), "s_add_u32 m0, %s, %d" % (sr(tmp), base),
                       "s_add_u32 %s, %s, %s" % (sr(tmp), sr(soff), sr(sHALF))]
            vo = (vKD + n) if is_k else (vVD + (n & 1))
            r.append(pre + thr + [dma(vo, srd, sr(tmp), n * 1024, NTS)])
        return r
    for n in range(8):
        pre = []
        if n == 0: pre = ["s_add_u32 m0, %s, %d" % (sr(sLW), base), "s_nop 0"]
        if n == 4: pre = ["s_add_u32 m0, %s, %d" % (sr(sLW), base + 4096), "s_add_u32 %s, %s, 4096" % (sr(tmp), sr(soff))]
        vo = (vKD + (n & 3)) if is_k else (vVD + (n & 1))
        so = sr(soff) if n < 4 else sr(tmp)
        r.append(pre + thr + [dma(vo, srd, so, (n & 3) * 1024, NTS)])
    return r
def tile_off(dst, idx):
    I("s_add_u32 %s, %s, %d" % (sr(dst), sr(sROT), idx))
    I("s_and_b32 %s, %s, 15" % (sr(dst), sr(dst)))
    I("s_lshl_b32 %s, %s, 13" % (sr(dst), sr(dst)))
def next_offs():
    r = []
    r.append(["s_add_u32 %s, %s, 1" % (sr(sTI), sr(sTI)), "s_add_u32 %s, %s, %s" % (sr(sT2), sr(sTI), sr(sROT))])
    r.append(["s_add_u32 %s, %s, 2" % (sr(sVOFF), sr(sT2)), "s_and_b32 %s, %s, 15" % (sr(sVOFF), sr(sVOFF))])
    r.append(["s_lshl_b32 %s, %s, 13" % (sr(sVOFF), sr(sVOFF)), "s_cmp_lt_u32 %s, 14" % sr(sTI), "s_cselect_b32 %s, %s, 0x40000000" % (sr(sVOFF), sr(sVOFF))])
    r.append(["s_add_u32 %s, %s, 3" % (sr(sKOFF), sr(sT2)), "s_and_b32 %s, %s, 15" % (sr(sKOFF), sr(sKOFF))])
    r.append(["s_lshl_b32 %s, %s, 13" % (sr(sKOFF), sr(sKOFF)), "s_cmp_lt_u32 %s, 13" % sr(sTI), "s_cselect_b32 %s, %s, 0x40000000" % (sr(sKOFF), sr(sKOFF))])
    return r
def a_reads(u, T):
    ad, off = vAR + 4 * u + (T >> 1), (T & 1) * 8
    return ["ds_read_b64_tr_b16 %s, %s offset:%d" % (vr(WF + 4 * T, 2), vr(ad), off),
            "ds_read_b64_tr_b16 %s, %s offset:%d" % (vr(WF + 4 * T + 2, 2), vr(ad), off + 4096)]
def b_read(kk, j):
    return "ds_read_b128 %s, %s offset:%d" % (vr(XF + 4 * j, 4), vr(vBR + ((kk >> 1) % 3) * 2 + (kk & 1)), j * 2048)
def k_read(par, mt, s):
    return "ds_read_b128 %s, %s offset:%d" % (vr(KF + (mt * 4 + s) * 4, 4), vr(vKR + s), par * 16384 + mt * 4096)
def v_reads(par, T):
    off = 8192 + par * 16384
    return ["ds_read_b64_tr_b16 %s, %s offset:%d" % (vr(VF + 4 * T, 2), vr(vVR + T), off),
            "ds_read_b64_tr_b16 %s, %s offset:%d" % (vr(VF + 4 * T + 2, 2), vr(vVR + T), off + 4096)]
def qk_group(j, czero=False):
    r = []
    for mt in range(2):
        for s in range(4):
            d = vr(SS + 8 * j + 4 * mt, 4)
            c = d if s else ("0" if czero else vr(NM + 4 * j, 4))
            r.append(mfma(d, vr(KF + (mt * 4 + s) * 4, 4), vr(QF + (j * 4 + s) * 4, 4), c))
    return r
def pv_group(j):
    p = vr(PP + 4 * (j & 1), 4)
    r = [mfma(ar(oacc(T, j), 4), vr(VF + 4 * T, 4), p, ar(oacc(T, j), 4)) for T in range(8)]
    r.append(mfma(ar(LA + 4 * j, 4), ar(ONE, 4), p, ar(LA + 4 * j, 4)))
    return r
def exps(j): return ["v_exp_f32 %s, %s" % (vr(SS + 8 * j + k), vr(SS + 8 * j + k)) for k in range(8)]
def cvts(j): return ["v_cvt_pk_bf16_f32 %s, %s, %s" % (vr(PP + 4 * (j & 1) + k), vr(SS + 8 * j + 2 * k), vr(SS + 8 * j + 2 * k + 1)) for k in range(4)]

def att_step(e, shared):
    mf = pv_group(4) + qk_group(3)
    f = {}
    if shared: add_fill(f, -1, ["s_waitcnt vmcnt(8)", "s_barrier"])
    else: add_fill(f, -1, "s_waitcnt vmcnt(24)")
    add_fill(f, -1, trace_pt(["s_add_u32 s4, %s, 20" % sr(sTI)]))
    for T in range(8): add_fill(f, T, v_reads(e, T))
    ex, cv = exps(0), cvts(0)
    for k in range(8): add_fill(f, 8 + k, ex[k])
    add_fill(f, 11, cv[0]); add_fill(f, 13, cv[1]); add_fill(f, 15, cv[2]); add_fill(f, 16, ["s_nop 0", cv[3]])
    interleave(mf, f)
    mf = qk_group(4) + pv_group(0)
    f = {}
    if not shared: add_fill(f, -1, "s_waitcnt vmcnt(16)")
    for mt in range(2):
        for s in range(4): add_fill(f, mt * 4 + s, k_read(1 - e, mt, s))
    add_fill(f, 7, "s_waitcnt lgkmcnt(8)")
    ex, cv = exps(1), cvts(1)
    for k in range(4): add_fill(f, 2 * k, ex[k])
    for k in range(4): add_fill(f, 8 + 2 * k, ex[4 + k])
    add_fill(f, 5, cv[0]); add_fill(f, 9, cv[1]); add_fill(f, 13, cv[2]); add_fill(f, 16, cv[3])
    cap = cfg.capA if shared else cfg.capB
    vd = kv_dma(False, e, sVOFF, shared, cap)
    kd = kv_dma(True, 1 - e, sKOFF, shared, cap)
    if not shared:
        add_fill(f, 11, vd[0]); add_fill(f, 13, vd[1]); add_fill(f, 15, vd[2])
    interleave(mf, f)
    def plain_sb(j, dmas, pre=None):
        mf = qk_group((j - 2) % 5) + pv_group(j - 1)
        f = {}
        if pre: add_fill(f, -1, pre)
        ex, cv = exps(j), cvts(j)
        for k in range(8): add_fill(f, 2 * k, ex[k])
        add_fill(f, 3, cv[0]); add_fill(f, 7, cv[1]); add_fill(f, 11, cv[2]); add_fill(f, 15, cv[3])
        for g, d in zip([1, 5, 9, 13, 16], dmas): add_fill(f, g, d)
        interleave(mf, f)
    no = next_offs()
    if shared:
        plain_sb(2, vd[0:4], ["s_waitcnt lgkmcnt(0)", "s_barrier"])
        plain_sb(3, kd[0:4])
        plain_sb(4, no)
    else:
        plain_sb(2, vd[3:8], "s_waitcnt lgkmcnt(0)")
        plain_sb(3, kd[0:4])
        plain_sb(4, kd[4:8] + [no[0] + no[1] + no[2] + no[3] + no[4]])

def xlane_max(x, y):
    I("v_mov_b32 %s, %s" % (vr(y), vr(x))); I("s_nop 1")
    I("v_permlane32_swap_b32 %s, %s" % (vr(x), vr(y))); I("s_nop 1")
    I("v_max_f32 %s, %s, %s" % (vr(x), vr(x), vr(y)))
    I("v_mov_b32 %s, %s" % (vr(y), vr(x))); I("s_nop 1")
    I("v_permlane16_swap_b32 %s, %s" % (vr(x), vr(y))); I("s_nop 1")
    I("v_max_f32 %s, %s, %s" % (vr(x), vr(x), vr(y)))
def srd(S, off_sreg, nrec):
    if off_sreg is not None:
        I("s_add_u32 %s, %s, %s" % (sr(S), sr(S), sr(off_sreg)))
        I("s_addc_u32 %s, %s, 0" % (sr(S + 1), sr(S + 1)))
    I("s_and_b32 %s, %s, 0xffff" % (sr(S + 1), sr(S + 1)))
    if nrec is not None: I("s_mov_b32 %s, %d" % (sr(S + 2), nrec))
    I("s_mov_b32 %s, 0x20000" % sr(S + 3))
def q_epilogue():
    I("s_mov_b32 %s, 0x%08x" % (sr(sT2), f32bits(QSCALE)))
    I("s_mov_b32 %s, %s" % (sr(sT3), sr(sT2)))
    for j in range(5):
        for s in range(4):
            src = qacc(2 * s, j)
            for k in range(0, 8, 2): I("v_pk_mul_f32 %s, %s, %s" % (vr(src + k, 2), vr(src + k, 2), sr(sT2, 2)))
            dst = QF + (j * 4 + s) * 4
            for k in range(4): I("v_cvt_pk_bf16_f32 %s, %s, %s" % (vr(dst + k), vr(src + 2 * k), vr(src + 2 * k + 1)))
def att_prologue_and_loop(shared, tag, retry=False):
    E("K1_ATT_COMMON_%s:" % tag)
    I("s_waitcnt lgkmcnt(0)")
    if shared: I("s_barrier")
    tile_off(sKOFF, 2)
    flat(kv_dma(True, 0, sKOFF, shared))
    tile_off(sVOFF, 2)
    tile_off(sKOFF, 3)
    I("s_mov_b32 %s, 0" % sr(sTI))
    for j in range(5):
        for m in qk_group(j, czero=True): I(m)
    I("s_nop 7"); I("s_nop 1")
    if not retry:
        for j in range(5):
            b = SS + 8 * j
            I("v_max3_f32 %s, %s, %s, %s" % (vr(t0), vr(b), vr(b + 1), vr(b + 2)))
            I("v_max3_f32 %s, %s, %s, %s" % (vr(t0), vr(t0), vr(b + 3), vr(b + 4)))
            I("v_max3_f32 %s, %s, %s, %s" % (vr(t0), vr(t0), vr(b + 5), vr(b + 6)))
            I("v_max_f32 %s, %s, %s" % (vr(t0), vr(t0), vr(b + 7)))
            xlane_max(t0, t1)
            for k in range(4): I("v_sub_f32 %s, 0, %s" % (vr(NM + 4 * j + k), vr(t0)))
    for j in range(3):
        for k in range(8): I("v_add_f32 %s, %s, %s" % (vr(SS + 8 * j + k), vr(SS + 8 * j + k), vr(NM + 4 * j)))
    for k in range(4): I("v_mov_b32 %s, 0" % vr(PP + k))
    for k in range(32): I("v_mov_b32 %s, 0" % vr(VF + k))
    I("s_mov_b32 %s, 0" % sr(sKK))
    stamp(4)
    E("K1_ALOOP_%s:" % tag)
    if cfg.wo_pf and not retry:
        I("s_cmp_lg_u32 %s, %d" % (sr(sKK), cfg.wo_step))
        I("s_cbranch_scc1 K1_NOPF_%s" % tag)
        I("s_lshl_b32 %s, %s, 7" % (sr(sT2), sr(sWAVE)))
        I("v_add_u32 %s, %s, v0" % (vr(t0), sr(sT2)))
        I("v_mul_u32_u24 %s, 1152, %s" % (vr(t0), vr(t0)))
        for c in range(cfg.wo_n):
            I("s_add_u32 %s, %s, %d" % (sr(sT2), sr(sCOFF), c))
            I("s_lshl_b32 %s, %s, 7" % (sr(sT2), sr(sT2)))
            I("buffer_load_dword v8, %s, %s, %s offen" % (vr(t0), sr(S_O, 4), sr(sT2)))
            I("s_add_u32 %s, %s, %d" % (sr(sT2), sr(sT2), 64 * 1152))
            I("buffer_load_dword v8, %s, %s, %s offen" % (vr(t0), sr(S_O, 4), sr(sT2)))
        E("K1_NOPF_%s:" % tag)
    att_step(0, shared)
    att_step(1, shared)
    I("s_add_u32 %s, %s, 2" % (sr(sKK), sr(sKK)))
    I("s_cmp_lt_u32 %s, 16" % sr(sKK))
    I("s_cbranch_scc1 K1_ALOOP_%s" % tag)

def w3_dma(bufreg, soffreg):
    r = []
    for n in range(16):
        pre = []
        q = n >> 2
        if n & 3 == 0:
            pre = ["s_add_u32 m0, %s, %d" % (sr(bufreg), q * 4096)]
            if q: pre += ["s_add_u32 %s, %s, %d" % (sr(sT3), sr(soffreg), q * 32 * 1152)]
            else: pre += ["s_nop 0"]
        so = sr(soffreg) if q == 0 else sr(sT3)
        r.append(pre + [dma(vW3D + (n & 3), S_O, so, (n & 3) * 1024)])
    return r
def wrap9(reg):
    return ["s_add_u32 %s, %s, %s" % (sr(reg), sr(reg), sr(sCOFF)), "s_sub_u32 %s, %s, 9" % (sr(sT1), sr(reg)), "s_cmp_ge_u32 %s, 9" % sr(reg),
            "s_cselect_b32 %s, %s, %s" % (sr(reg), sr(sT1), sr(reg))]
def ring_addrs():
    for s_ in range(4):
        I("v_add_u32 %s, %d, %s" % (vr(t0), 4 * s_, vr(vg)))
        I("v_xor_b32 %s, %s, %s" % (vr(t0), vr(t0), vr(vi)))
        I("v_lshlrev_b32 %s, 4, %s" % (vr(t0), vr(t0)))
        I("v_lshl_add_u32 %s, %s, 8, %s" % (vr(t0), vr(vi), vr(t0)))
        I("v_add_u32 %s, %s, %s" % (vr(vKR + s_), sr(sLW), vr(t0)))
    I("v_lshl_add_u32 %s, %s, 2, %s" % (vr(t1), vr(vg), vr(vrr)))
    I("v_and_b32 %s, 7, %s" % (vr(t2), vr(t1)))
    I("v_lshlrev_b32 %s, 8, %s" % (vr(t1), vr(t1)))
    I("v_lshl_add_u32 %s, %s, 3, %s" % (vr(t1), vr(vc), vr(t1)))
    I("v_add_u32 %s, %s, %s" % (vr(t1), sr(sLW), vr(t1)))
    for T in range(8):
        I("v_xor_b32 %s, %d, %s" % (vr(t0), T, vr(t2)))
        I("v_lshl_add_u32 %s, %s, 5, %s" % (vr(vVR + T), vr(t0), vr(t1)))

def fused_reduce():
    S_R, S_OUT = 32, 36
    I("s_waitcnt vmcnt(0)")
    I("s_barrier")
    I("s_lshl_b32 %s, %s, 4" % (sr(sT0), sr(sTYPE)))
    I("s_add_u32 %s, %s, %s" % (sr(sT0), sr(sT0), sr(sB)))
    I("s_lshl_b32 %s, %s, 3" % (sr(sT0), sr(sT0)))
    I("v_mov_b32 %s, %s" % (vr(t0), sr(sT0)))
    I("s_cmp_lg_u32 %s, 0" % sr(sWAVE))
    I("s_cbranch_scc1 K1_RED_NOPUB")
    I("s_lshl_b32 %s, 1, %s" % (sr(sT1), sr(sHQ)))
    I("v_mov_b32 %s, %s" % (vr(t1), sr(sT1)))
    I("s_mov_b64 exec, 1")
    I("global_atomic_or %s, %s, s[26:27] sc1" % (vr(t0), vr(t1)))
    I("s_mov_b64 exec, -1")
    E("K1_RED_NOPUB:")
    A1, A2 = 208, 212
    I("v_cmp_eq_u32 vcc, %s, %s" % (vr(vg), vr(vrr)))
    I("v_and_b32 %s, 1, %s" % (vr(t1), vr(vc)))
    I("v_lshlrev_b32 %s, 4, %s" % (vr(t1), vr(t1)))
    I("v_mov_b32 %s, 0x3f80" % vr(t2))
    I("v_lshlrev_b32 %s, %s, %s" % (vr(t2), vr(t1), vr(t2)))
    I("v_cndmask_b32 %s, 0, %s, vcc" % (vr(t2), vr(t2)))
    I("v_cmp_gt_u32 vcc, 2, %s" % vr(vc))
    I("s_nop 1")
    I("v_cndmask_b32 %s, 0, %s, vcc" % (vr(A1), vr(t2)))
    I("v_sub_u32 %s, %s, %s" % (vr(A1 + 1), vr(t2), vr(A1)))
    I("v_mov_b32 %s, 0" % vr(A1 + 2)); I("v_mov_b32 %s, 0" % vr(A1 + 3))
    I("v_mov_b32 %s, 0" % vr(A2)); I("v_mov_b32 %s, 0" % vr(A2 + 1))
    I("v_mov_b32 %s, %s" % (vr(A2 + 2), vr(A1))); I("v_mov_b32 %s, %s" % (vr(A2 + 3), vr(A1 + 1)))
    I("s_mov_b32 %s, s28" % sr(S_R)); I("s_and_b32 %s, s29, 0xffff" % sr(S_R + 1))
    I("s_mov_b32 %s, %d" % (sr(S_R + 2), 2 * PSTR_TYPE)); I("s_mov_b32 %s, 0x20000" % sr(S_R + 3))
    I("s_mov_b32 %s, s24" % sr(S_OUT)); I("s_and_b32 %s, s25, 0xffff" % sr(S_OUT + 1))
    I("s_mov_b32 %s, %d" % (sr(S_OUT + 2), 16 * 80 * 1152 * 2)); I("s_mov_b32 %s, 0x20000" % sr(S_OUT + 3))
    sRO = [40, 41, 42]; sOO = [43, 44, 45]; vOO = [216, 217, 218]
    for k in range(3):
        I("s_add_u32 %s, %s, %d" % (sr(sT0), sr(sWAVE), 4 * k))
        I("s_lshl_b32 %s, %s, 3" % (sr(sT0), sr(sT0)))
        I("s_add_u32 %s, %s, %s" % (sr(sT0), sr(sT0), sr(sHQ)))
        I("s_mul_i32 %s, %s, %d" % (sr(sRO[k]), sr(sTYPE), PSTR_TYPE))
        I("s_mul_i32 %s, %s, 92160" % (sr(sT3), sr(sB)))
        I("s_add_u32 %s, %s, %s" % (sr(sRO[k]), sr(sRO[k]), sr(sT3)))
        I("s_lshl_b32 %s, %s, 10" % (sr(sT3), sr(sT0)))
        I("s_add_u32 %s, %s, %s" % (sr(sRO[k]), sr(sRO[k]), sr(sT3)))
        I("s_mul_i32 %s, %s, 1152" % (sr(sOO[k]), sr(sTYPE)))
        I("v_lshrrev_b32 v1, 5, v0")
        I("s_lshl_b32 %s, %s, 1" % (sr(sT1), sr(sT0)))
        I("v_add_u32 v1, %s, v1" % sr(sT1))
        I("v_mul_u32_u24 v2, 13108, v1")
        I("v_lshrrev_b32 v2, 16, v2")
        I("v_mul_u32_u24 v3, 5, v2")
        I("v_sub_u32 v3, v1, v3")
        I("v_and_b32 v4, 31, v0")
        I("v_lshlrev_b32 v4, 1, v4")
        I("v_and_b32 v5, 15, v4")
        I("v_lshrrev_b32 v4, 4, v4")
        I("v_lshl_add_u32 v3, v3, 4, v5")
        I("s_mul_i32 %s, %s, 80" % (sr(sT1), sr(sB)))
        I("v_add_u32 v3, %s, v3" % sr(sT1))
        I("v_mul_u32_u24 v3, 2304, v3")
        I("v_lshl_add_u32 v3, v2, 5, v3")
        I("v_lshl_add_u32 %s, v4, 3, v3" % vr(vOO[k]))
        I("s_cmp_lt_u32 %s, 90" % sr(sT0))
        I("s_cselect_b32 %s, %s, 0x40000000" % (sr(sRO[k]), sr(sRO[k])))
        I("s_cselect_b32 %s, %s, 0x40000000" % (sr(sOO[k]), sr(sOO[k])))
    I("s_mov_b32 %s, 0" % sr(sT0))
    I("s_cmp_lg_u32 %s, 0" % sr(sWAVE))
    I("s_cbranch_scc1 K1_RED_GO")
    E("K1_RED_POLL:")
    I("global_load_dword %s, %s, s[26:27] sc1" % (vr(t1), vr(t0)))
    I("s_waitcnt vmcnt(0)")
    I("v_readfirstlane_b32 %s, %s" % (sr(sT1), vr(t1)))
    I("s_add_u32 %s, %s, 1" % (sr(sT0), sr(sT0)))
    I("s_nop 2")
    I("s_cmp_eq_u32 %s, 0xff" % sr(sT1))
    I("s_cbranch_scc1 K1_RED_GO")
    if cfg.red_sleep: I("s_sleep %d" % cfg.red_sleep)
    I("s_cmp_lt_u32 %s, %d" % (sr(sT0), cfg.red_max))
    I("s_cbranch_scc1 K1_RED_POLL")
    E("K1_RED_GO:")
    I("s_barrier")
    for hq in range(8):
        for k in range(3):
            I("s_add_u32 %s, %s, %d" % (sr(sT0), sr(sRO[k]), hq * PSTR_HQ))
            I("buffer_load_dwordx4 %s, %s, %s, %s offen sc1" % (vr(16 + (hq * 3 + k) * 4, 4), vr(vLANE16), sr(S_R, 4), sr(sT0)))
    for hq in range(8):
        I("s_waitcnt vmcnt(%d)" % (21 - 3 * hq))
        for k in range(3):
            b = vr(16 + (hq * 3 + k) * 4, 4)
            for h in range(2):
                d = ar(k * 8 + h * 4, 4)
                I(mfma(d, vr(A1 if h == 0 else A2, 4), b, d if hq else "0"))
    I("s_nop 7"); I("s_nop 1")
    for k in range(3):
        tb = 220 + 12 * (k & 1)
        for r in range(8): I("v_accvgpr_read_b32 %s, %s" % (vr(tb + r), ar(k * 8 + r)))
        for r in range(4): I("v_cvt_pk_bf16_f32 %s, %s, %s" % (vr(tb + 8 + r), vr(tb + 2 * r), vr(tb + 2 * r + 1)))
        I("buffer_store_dwordx2 %s, %s, %s, %s offen" % (vr(tb + 8, 2), vr(vOO[k]), sr(S_OUT, 4), sr(sOO[k])))
        I("buffer_store_dwordx2 %s, %s, %s, %s offen offset:2304" % (vr(tb + 10, 2), vr(vOO[k]), sr(S_OUT, 4), sr(sOO[k])))

def gen_k1():
    E(".globl %s" % KN); E(".p2align 8"); E(".type %s,@function" % KN); E("%s:" % KN)
    I("s_cmp_ge_u32 s2, 256")
    I("s_cbranch_scc1 K1_END")
    I("s_load_dwordx16 s[4:19], s[0:1], 0")
    I("s_load_dwordx8 s[20:27], s[0:1], 64")
    I("s_load_dwordx2 s[28:29], s[0:1], 96")
    stamp(0)
    I("v_lshrrev_b32 v1, 6, v0")
    I("v_and_b32 v0, 63, v0")
    I("v_readfirstlane_b32 %s, v1" % sr(sWAVE))
    if cfg.trace:
        I("s_memtime s[30:31]"); I("v_mov_b32 v7, 0"); I("s_waitcnt lgkmcnt(0)"); I("v_writelane_b32 v7, s30, 63")
    I("s_and_b32 %s, s2, 7" % sr(sT0))
    I("s_lshr_b32 %s, s2, 3" % sr(sT1))
    I("s_and_b32 %s, %s, 1" % (sr(sTYPE), sr(sT1)))
    I("s_lshr_b32 %s, %s, 1" % (sr(sCOFF), sr(sT1)))
    I("s_and_b32 %s, %s, 7" % (sr(sCOFF), sr(sCOFF)))
    I("s_and_b32 %s, %s, 1" % (sr(sB), sr(sT0)))
    I("s_lshl_b32 %s, %s, 3" % (sr(sB), sr(sB)))
    I("s_add_u32 %s, %s, %s" % (sr(sB), sr(sB), sr(sCOFF)))
    I("s_lshr_b32 %s, %s, 4" % (sr(sT2), sr(sT1)))
    I("s_lshr_b32 %s, %s, 1" % (sr(sHQ), sr(sT0)))
    I("s_lshl_b32 %s, %s, 1" % (sr(sHQ), sr(sHQ)))
    I("s_add_u32 %s, %s, %s" % (sr(sHQ), sr(sHQ), sr(sT2)))
    I("s_mul_i32 %s, %s, 10" % (sr(sT2), sr(sT2)))
    I("s_lshl_b32 %s, %s, 1" % (sr(sQOFF), sr(sCOFF)))
    I("s_add_u32 %s, %s, %s" % (sr(sQOFF), sr(sQOFF), sr(sT2)))
    I("s_sub_u32 %s, %s, 18" % (sr(sT2), sr(sQOFF)))
    I("s_cmp_ge_u32 %s, 18" % sr(sQOFF))
    I("s_cselect_b32 %s, %s, %s" % (sr(sQOFF), sr(sT2), sr(sQOFF)))
    if not cfg.krot:
        I("s_mov_b32 %s, 0" % sr(sQOFF)); I("s_mov_b32 %s, 0" % sr(sCOFF))
    I("v_lshrrev_b32 %s, 4, v0" % vr(vg))
    I("v_and_b32 %s, 15, v0" % vr(vi))
    I("s_and_b32 %s, %s, 1" % (sr(sHI), sr(sWAVE)))
    I("s_lshl_b32 %s, %s, 2" % (sr(sH), sr(sHQ)))
    I("s_add_u32 %s, %s, %s" % (sr(sH), sr(sH), sr(sWAVE)))
    I("s_lshl_b32 %s, %s, 12" % (sr(sHALF), sr(sHI)))
    I("s_lshl_b32 %s, s2, 2" % sr(sUID))
    I("s_add_u32 %s, %s, %s" % (sr(sUID), sr(sUID), sr(sWAVE)))
    I("s_lshl_b32 %s, %s, 15" % (sr(sLW), sr(sWAVE)))
    I("s_cmp_ge_u32 %s, 2" % sr(sWAVE))
    I("s_cselect_b32 %s, 32768, 0" % sr(sT0))
    I("s_add_u32 %s, %s, %s" % (sr(sLW), sr(sLW), sr(sT0)))
    I("s_cmp_eq_u32 %s, 0" % sr(sTYPE))
    I("s_cselect_b32 %s, %s, %s" % (sr(sLW), sr(sT0), sr(sLW)))
    I("s_lshl_b32 %s, %s, 13" % (sr(sT0), sr(sWAVE)))
    I("s_mul_i32 %s, %s, 2560" % (sr(sT1), sr(sWAVE)))
    for u in range(3):
        I("s_add_u32 %s, %s, %d" % (sr(sMW[u]), sr(sT0), WQB[u]))
        I("s_add_u32 %s, %s, %d" % (sr(sMX[u]), sr(sT1), XB_[u]))
    I("v_lshrrev_b32 %s, 2, %s" % (vr(vrr), vr(vi)))
    I("v_and_b32 %s, 3, %s" % (vr(vc), vr(vi)))
    I("v_lshlrev_b32 %s, 4, v0" % vr(vLANE16))
    I("s_lshl_b32 %s, %s, 16" % (sr(sT0), sr(sWAVE)))
    for m in range(4):
        I("v_xor_b32 %s, %d, v0" % (vr(t0), m << 2))
        I("v_lshlrev_b32 %s, 4, %s" % (vr(t0), vr(t0)))
        I("v_add_u32 %s, %s, %s" % (vr(t0), sr(sT0), vr(t0)))
        if m: I("v_add_u32 %s, %d, %s" % (vr(vWD + m), m * (8192 - 1024), vr(t0)))
        else: I("v_mov_b32 %s, %s" % (vr(vWD), vr(t0)))
    I("v_lshrrev_b32 %s, 3, v0" % vr(t1))
    I("s_mul_i32 %s, %s, 20" % (sr(sT0), sr(sWAVE)))
    I("v_add_u32 %s, %s, %s" % (vr(t1), sr(sT0), vr(t1)))
    I("v_mul_u32_u24 %s, 1152, %s" % (vr(t1), vr(t1)))
    I("s_mul_i32 %s, %s, 10" % (sr(sT0), sr(sWAVE)))
    for n in range(3):
        I("v_add_u32 %s, %s, %s" % (vr(t0), sr(sT0), vr(vg)))
        if n: I("v_add_u32 %s, %d, %s" % (vr(t0), 4 * n, vr(t0)))
        I("v_and_b32 %s, 7, %s" % (vr(t0), vr(t0)))
        I("v_and_b32 %s, 7, v0" % vr(t2))
        I("v_xor_b32 %s, %s, %s" % (vr(t0), vr(t0), vr(t2)))
        I("v_lshl_add_u32 %s, %s, 4, %s" % (vr(vXD + n), vr(t0), vr(t1)))
        if n: I("v_add_u32 %s, %d, %s" % (vr(vXD + n), n * (8 * 1152 - 1024), vr(vXD + n)))
    I("s_waitcnt lgkmcnt(0)")
    I("s_cmp_eq_u32 %s, 0" % sr(sTYPE))
    for S, a_, b_ in ((S_X, 4, 14), (S_K, 6, 16), (S_V, 8, 18), (S_W, 10, 20), (S_O, 12, 22)):
        I("s_cselect_b32 %s, s%d, s%d" % (sr(S), a_, b_))
        I("s_cselect_b32 %s, s%d, s%d" % (sr(S + 1), a_ + 1, b_ + 1))
    I("s_lshl_b32 %s, %s, 10" % (sr(sT0), sr(sHQ)))
    I("s_sub_u32 %s, %d, %s" % (sr(S_W + 2), 576 * 8192, sr(sT0)))
    srd(S_W, sT0, None)
    I("s_mul_i32 %s, %s, %d" % (sr(sT0), sr(sB), 80 * 1152))
    I("s_mov_b32 %s, %d" % (sr(S_X + 2), 80 * 1152))
    srd(S_X, sT0, None)
    if cfg.x_pf:
        I("s_lshr_b32 %s, s2, 7" % sr(sT0))
        I("s_mul_i32 %s, %s, 40" % (sr(sT0), sr(sT0)))
        I("s_mul_i32 %s, %s, 10" % (sr(sT1), sr(sWAVE)))
        I("s_add_u32 %s, %s, %s" % (sr(sT0), sr(sT0), sr(sT1)))
        for n in range(2):
            I("v_add_u32 %s, %d, v0" % (vr(t0), 64 * n))
            I("v_mul_u32_u24 %s, 7282, %s" % (vr(t1), vr(t0)))
            I("v_lshrrev_b32 %s, 16, %s" % (vr(t1), vr(t1)))
            I("v_mul_u32_u24 %s, 9, %s" % (vr(t2), vr(t1)))
            I("v_sub_u32 %s, %s, %s" % (vr(t2), vr(t0), vr(t2)))
            I("v_add_u32 %s, %s, %s" % (vr(t1), sr(sT0), vr(t1)))
            I("v_mul_u32_u24 %s, 1152, %s" % (vr(t1), vr(t1)))
            I("v_lshl_add_u32 %s, %s, 7, %s" % (vr(t1), vr(t2), vr(t1)))
            if n:
                I("v_cmp_gt_u32 vcc, 26, v0")
                I("v_mov_b32 %s, 0x40000000" % vr(t2))
                I("s_nop 0")
                I("v_cndmask_b32 %s, %s, %s, vcc" % (vr(t1), vr(t2), vr(t1)))
            I("buffer_load_dword v8, %s, %s, 0 offen" % (vr(t1), sr(S_X, 4)))
    if cfg.adelay or cfg.a_late:
        if cfg.adelay:
            I("s_and_b32 s23, s2, 7"); I("s_lshl_b32 s23, s23, 4")
        I("s_cmp_eq_u32 %s, 0" % sr(sTYPE))
        I("s_cbranch_scc1 K1_NO_S0")
    for x in q_offs_imm(0): I(x)
    flat(stage_dma(0)); flat(x_dma(0))
    if cfg.a_pfb:
        I("s_branch K1_S0_DONE")
        E("K1_NO_S0:")
        I("s_lshl_b32 %s, %s, 10" % (sr(sT0), sr(sHQ)))
        I("s_add_u32 s8, s20, %s" % sr(sT0)); I("s_addc_u32 s9, s21, 0"); I("s_and_b32 s9, s9, 0xffff")
        I("s_sub_u32 s10, %d, %s" % (576 * 8192, sr(sT0))); I("s_mov_b32 s11, 0x20000")
        I("s_and_b32 %s, %s, 7" % (sr(sT0), sr(sB)))
        I("s_mul_i32 %s, %s, 72" % (sr(sT0), sr(sT0)))
        I("s_mul_i32 %s, %s, 18" % (sr(sT1), sr(sWAVE)))
        I("s_add_u32 %s, %s, %s" % (sr(sT0), sr(sT0), sr(sT1)))
        for rep in range(3):
            I("v_add_u32 %s, %d, v0" % (vr(t0), 64 * rep))
            I("v_lshrrev_b32 %s, 3, %s" % (vr(t1), vr(t0)))
            I("v_add_u32 %s, %s, %s" % (vr(t1), sr(sT0), vr(t1)))
            I("v_lshlrev_b32 %s, 13, %s" % (vr(t1), vr(t1)))
            I("v_and_b32 %s, 7, %s" % (vr(t2), vr(t0)))
            I("v_lshl_add_u32 %s, %s, 7, %s" % (vr(t1), vr(t2), vr(t1)))
            if rep == 2:
                I("v_cmp_gt_u32 vcc, 16, v0")
                I("v_mov_b32 %s, 0x40000000" % vr(t2))
                I("s_nop 0")
                I("v_cndmask_b32 %s, %s, %s, vcc" % (vr(t1), vr(t2), vr(t1)))
            I("buffer_load_dword v8, %s, s[8:11], 0 offen" % vr(t1))
        I("s_mul_i32 %s, %s, %d" % (sr(sT0), sr(sB), 80 * 1152))
        I("s_add_u32 s8, s14, %s" % sr(sT0)); I("s_addc_u32 s9, s15, 0"); I("s_and_b32 s9, s9, 0xffff")
        I("s_mov_b32 s10, %d" % (80 * 1152)); I("s_mov_b32 s11, 0x20000")
        I("s_lshr_b32 %s, s2, 7" % sr(sT0))
        I("s_mul_i32 %s, %s, 40" % (sr(sT0), sr(sT0)))
        I("s_mul_i32 %s, %s, 10" % (sr(sT1), sr(sWAVE)))
        I("s_add_u32 %s, %s, %s" % (sr(sT0), sr(sT0), sr(sT1)))
        for n in range(2):
            I("v_add_u32 %s, %d, v0" % (vr(t0), 64 * n))
            I("v_mul_u32_u24 %s, 7282, %s" % (vr(t1), vr(t0)))
            I("v_lshrrev_b32 %s, 16, %s" % (vr(t1), vr(t1)))
            I("v_mul_u32_u24 %s, 9, %s" % (vr(t2), vr(t1)))
            I("v_sub_u32 %s, %s, %s" % (vr(t2), vr(t0), vr(t2)))
            I("v_add_u32 %s, %s, %s" % (vr(t1), sr(sT0), vr(t1)))
            I("v_mul_u32_u24 %s, 1152, %s" % (vr(t1), vr(t1)))
            I("v_lshl_add_u32 %s, %s, 7, %s" % (vr(t1), vr(t2), vr(t1)))
            if n:
                I("v_cmp_gt_u32 vcc, 26, v0")
                I("v_mov_b32 %s, 0x40000000" % vr(t2))
                I("s_nop 0")
                I("v_cndmask_b32 %s, %s, %s, vcc" % (vr(t1), vr(t2), vr(t1)))
            I("buffer_load_dword v8, %s, s[8:11], 0 offen" % vr(t1))
        E("K1_S0_DONE:")
    elif cfg.adelay or cfg.a_late: E("K1_NO_S0:")
    I("s_lshl_b32 %s, %s, 4" % (sr(sT0), sr(sB)))
    I("s_lshr_b32 %s, %s, 1" % (sr(sT1), sr(sH)))
    I("s_add_u32 %s, %s, %s" % (sr(sT0), sr(sT0), sr(sT1)))
    I("s_lshl_b32 %s, %s, 5" % (sr(sT1), sr(sB)))
    I("s_add_u32 %s, %s, %s" % (sr(sT1), sr(sT1), sr(sH)))
    I("s_cmp_eq_u32 %s, 0" % sr(sTYPE))
    I("s_cselect_b32 %s, %s, %s" % (sr(sT0), sr(sT0), sr(sT1)))
    I("s_lshl_b32 %s, %s, 17" % (sr(sT2), sr(sT0)))
    srd(S_K, sT2, 0x20000)
    srd(S_V, sT2, 0x20000)
    I("s_lshr_b32 %s, %s, 1" % (sr(sT0), sr(sWAVE)))
    I("s_cmp_eq_u32 %s, 0" % sr(sTYPE))
    I("s_cselect_b32 %s, %s, %s" % (sr(sT0), sr(sT0), sr(sWAVE)))
    I("s_mul_i32 %s, %s, 5" % (sr(sT0), sr(sT0)))
    I("s_lshr_b32 %s, s2, 1" % sr(sT1))
    I("s_add_u32 %s, %s, %s" % (sr(sROT), sr(sT0), sr(sT1)))
    I("s_and_b32 %s, %s, %d" % (sr(sROT), sr(sROT), 15 if cfg.rot else 0))
    for r in range(160): I("v_mov_b32 %s, 0" % vr(QACC + r))
    I("s_mul_i32 %s, %s, %d" % (sr(sT0), sr(sHQ), 512 * 1152))
    srd(S_O, sT0, 512 * 1152)
    I("s_mul_i32 %s, %s, %d" % (sr(sT0), sr(sTYPE), PSTR_TYPE))
    I("s_mul_i32 %s, %s, %d" % (sr(sT1), sr(sHQ), PSTR_HQ))
    I("s_add_u32 %s, %s, %s" % (sr(sT0), sr(sT0), sr(sT1)))
    I("s_mul_i32 %s, %s, 92160" % (sr(sT1), sr(sB)))
    I("s_add_u32 %s, %s, %s" % (sr(sT0), sr(sT0), sr(sT1)))
    I("s_mov_b32 %s, s28" % sr(S_P)); I("s_mov_b32 %s, s29" % sr(S_P + 1))
    srd(S_P, sT0, 92160)
    I("v_lshl_add_u32 %s, %s, 3, %s" % (vr(t1), vr(vg), vr(vrr)))
    I("v_lshlrev_b32 %s, 10, %s" % (vr(t1), vr(t1)))
    I("v_lshl_add_u32 %s, %s, 4, %s" % (vr(t1), vr(vc), vr(t1)))
    I("s_lshl_b32 %s, %s, 8" % (sr(sT0), sr(sWAVE)))
    for u in range(3):
        I("s_add_u32 %s, %s, %d" % (sr(sT2), sr(sT0), WQB[u]))
        for s_ in range(4):
            I("v_xor_b32 %s, %d, %s" % (vr(t0), s_, vr(vrr)))
            I("v_lshl_add_u32 %s, %s, 6, %s" % (vr(t0), vr(t0), vr(t1)))
            I("v_add_u32 %s, %s, %s" % (vr(vAR + 4 * u + s_), sr(sT2), vr(t0)))
    I("v_lshrrev_b32 %s, 1, %s" % (vr(t1), vr(vi)))
    for ub in range(3):
        for p_ in range(2):
            I("v_add_u32 %s, %d, %s" % (vr(t0), 4 * p_, vr(vg)))
            I("v_xor_b32 %s, %s, %s" % (vr(t0), vr(t0), vr(t1)))
            I("v_lshlrev_b32 %s, 4, %s" % (vr(t0), vr(t0)))
            I("v_lshl_add_u32 %s, %s, 7, %s" % (vr(t0), vr(vi), vr(t0)))
            I("v_add_u32 %s, %d, %s" % (vr(vBR + ub * 2 + p_), XB_[ub], vr(t0)))
    for r in range(180): I("v_accvgpr_write_b32 %s, 0" % ar(r))
    I("v_mov_b32 %s, 0x3f803f80" % vr(t0))
    for r in range(4): I("v_accvgpr_write_b32 %s, %s" % (ar(ONE + r), vr(t0)))
    I("s_mov_b32 %s, 0" % sr(sRETRY))
    if cfg.a_late and not cfg.adelay:
        I("s_cmp_lg_u32 %s, 0" % sr(sTYPE))
        I("s_cbranch_scc1 K1_G1_GO")
        if cfg.a_pfwo:
            I("s_lshr_b32 %s, s2, 4" % sr(sT0)); I("s_lshl_b32 %s, %s, 3" % (sr(sT0), sr(sT0)))
            I("s_and_b32 %s, s2, 7" % sr(sT1)); I("s_add_u32 %s, %s, %s" % (sr(sT0), sr(sT0), sr(sT1)))
            I("s_cmp_lt_u32 %s, 64" % sr(sT0))
            I("s_cselect_b32 s16, s12, s22"); I("s_cselect_b32 s17, s13, s23")
            I("s_and_b32 s17, s17, 0xffff"); I("s_mov_b32 s18, %d" % (4096 * 1152)); I("s_mov_b32 s19, 0x20000")
            I("s_and_b32 %s, %s, 63" % (sr(sT0), sr(sT0)))
            I("s_lshl_b32 %s, %s, 6" % (sr(sT0), sr(sT0)))
            I("s_lshl_b32 %s, %s, 4" % (sr(sT1), sr(sWAVE)))
            I("s_add_u32 %s, %s, %s" % (sr(sT0), sr(sT0), sr(sT1)))
            for rep in range(3):
                I("v_add_u32 %s, %d, v0" % (vr(t0), 64 * rep))
                I("v_mul_u32_u24 %s, 7282, %s" % (vr(t1), vr(t0)))
                I("v_lshrrev_b32 %s, 16, %s" % (vr(t1), vr(t1)))
                I("v_mul_u32_u24 %s, 9, %s" % (vr(t2), vr(t1)))
                I("v_sub_u32 %s, %s, %s" % (vr(t2), vr(t0), vr(t2)))
                I("v_add_u32 %s, %s, %s" % (vr(t1), sr(sT0), vr(t1)))
                I("v_mul_u32_u24 %s, 1152, %s" % (vr(t1), vr(t1)))
                I("v_lshl_add_u32 %s, %s, 7, %s" % (vr(t1), vr(t2), vr(t1)))
                if rep == 2:
                    I("v_cmp_gt_u32 vcc, 16, v0")
                    I("v_mov_b32 %s, 0x40000000" % vr(t2))
                    I("s_nop 0")
                    I("v_cndmask_b32 %s, %s, %s, vcc" % (vr(t1), vr(t2), vr(t1)))
                I("buffer_load_dword v8, %s, s[16:19], 0 offen" % vr(t1))
        for x in q_offs_imm(0): I(x)
        flat(stage_dma(0)); flat(x_dma(0))
        E("K1_G1_GO:")
    if cfg.adelay:
        I("s_cmp_lg_u32 %s, 0" % sr(sTYPE))
        I("s_cbranch_scc1 K1_G1_GO")
        I("s_cmp_lg_u32 %s, 0" % sr(sWAVE))
        I("s_cbranch_scc1 K1_G2_WAIT")
        I("v_mov_b32 %s, s23" % vr(t0))
        I("s_mov_b32 %s, 0" % sr(sT0))
        E("K1_POLL:")
        I("s_sleep %d" % cfg.poll_sleep)
        I("global_load_dword %s, %s, s[26:27] sc1" % (vr(t1), vr(t0)))
        I("s_waitcnt vmcnt(0)")
        I("v_readfirstlane_b32 %s, %s" % (sr(sT1), vr(t1)))
        I("s_add_u32 %s, %s, 1" % (sr(sT0), sr(sT0)))
        I("s_nop 2")
        I("s_cmp_ge_u32 %s, 16" % sr(sT1))
        I("s_cbranch_scc1 K1_G2_WAIT")
        I("s_cmp_lt_u32 %s, %d" % (sr(sT0), cfg.poll_max))
        I("s_cbranch_scc1 K1_POLL")
        E("K1_G2_WAIT:")
        I("s_barrier")
        for x in q_offs_imm(0): I(x)
        flat(stage_dma(0)); flat(x_dma(0))
        E("K1_G1_GO:")
    for x in q_offs_imm(1): I(x)
    flat(stage_dma(1))
    stamp(1)
    I("s_waitcnt vmcnt(8)")
    I("s_barrier")
    stamp(2)
    for T in range(6):
        for s_ in a_reads(0, T): I(s_)
    for j in range(5): I(b_read(0, j))
    for x in q_offs_imm(2): I(x)
    I("s_mov_b32 %s, %s" % (sr(sKQ), sr(sWOFF)))
    flat(x_dma(1)[:2])
    flat(stage_dma(2))
    I("s_waitcnt lgkmcnt(0)")
    I("s_mov_b32 %s, 0" % sr(sKK))
    kvoff = []
    for m in range(4):
        kvoff += ["v_add_u32 %s, %d, %s" % (vr(t0), 4 * m, vr(vg)), "v_xor_b32 %s, %s, %s" % (vr(t0), vr(t0), vr(vi)),
                  "v_lshlrev_b32 %s, 4, %s" % (vr(t0), vr(t0)), "v_lshl_add_u32 %s, %s, 8, %s" % (vr(vKD + m), vr(vg), vr(t0))]
    for m in range(2):
        kvoff += ["v_add_u32 %s, %d, %s" % (vr(t0), 4 * m, vr(vg)), "v_lshlrev_b32 %s, 1, %s" % (vr(t0), vr(t0)), "v_xor_b32 %s, %s, %s" % (vr(t0), vr(t0), vr(vi)),
                  "v_lshlrev_b32 %s, 4, %s" % (vr(t0), vr(t0)), "v_lshl_add_u32 %s, %s, 8, %s" % (vr(vVD + m), vr(vg), vr(t0))]
    def q_step(v, kind="loop", shared=None):
        u = v % 3
        un = (u + 1) % 3
        last = (kind == "kv2")
        mf = []
        for p in range(4):
            for j in range(5):
                for T in (2 * p, 2 * p + 1):
                    mf.append(mfma(vr(qacc(T, j), 4), vr(WF + 4 * T, 4), vr(XF + 4 * j, 4), vr(qacc(T, j), 4)))
        F = Fill(40)
        F.put(-1, "s_waitcnt lgkmcnt(6)")
        F.put(1, "s_waitcnt lgkmcnt(3)"); F.put(3, "s_waitcnt lgkmcnt(2)"); F.put(5, "s_waitcnt lgkmcnt(1)"); F.put(7, "s_waitcnt lgkmcnt(0)")
        F.put(8, a_reads(u, 6)); F.put(9, a_reads(u, 7))
        steady = 10 if v % 2 == 0 else 8
        if kind == "kv1": steady = 0
        tr = trace_pt(["s_add_u32 s4, %s, %d" % (sr(sKK), v)])
        if not last:
            F.put(14, ["s_waitcnt vmcnt(%d) lgkmcnt(0)" % steady, "s_barrier"] + tr)
            F.put(15, a_reads(un, 0)); F.put(16, a_reads(un, 1))
            F.put(20, a_reads(un, 2)); F.put(21, a_reads(un, 3))
            F.put(30, a_reads(un, 4)); F.put(32, a_reads(un, 5))
            for j in range(5): F.put(31 + 2 * j, b_read(v + 1, j))
        else:
            F.put(14, ["s_waitcnt lgkmcnt(0)", "s_barrier"] + tr)
        items = []
        if kind == "loop":
            offs = ["s_add_u32 %s, %s, 262144" % (sr(sKQ), sr(sKQ)), "s_cmp_eq_u32 %s, %d" % (sr(sKQ), 18 * 262144), "s_cselect_b32 %s, 0, %s" % (sr(sKQ), sr(sKQ)),
                    "s_lshr_b32 %s, %s, 12" % (sr(sXOFF), sr(sKQ)), "s_mov_b32 %s, %s" % (sr(sWOFF), sr(sKQ))]
            F.put(0, offs[0]); F.put(2, offs[1:3]); F.put(4, offs[3:5] if v % 2 == 1 else offs[4:5])
            if v % 2 == 1: items += singles(x_dma(((v + 3) >> 1) % 3)[:2])
            else: items += [["s_add_u32 m0, %s, 0" % sr(sMX[((v + 2) >> 1) % 3]), "s_nop 0"], x_dma(((v + 2) >> 1) % 3)[2]]
            items += singles(stage_dma(u))
        elif kind == "k0":
            F.flow(kvoff, 10, 39)
        elif kind == "kv1":
            F.put(0, ["s_mov_b32 %s, %s" % (sr(sKOFF), sr(sROT)), "s_lshl_b32 %s, %s, 13" % (sr(sKOFF), sr(sKOFF))])
            items += singles(kv_dma(True, 0, sKOFF, shared) + kv_dma(False, 0, sKOFF, shared))
        elif kind == "kv2":
            F.put(0, ["s_add_u32 %s, %s, 1" % (sr(sKOFF), sr(sROT)), "s_and_b32 %s, %s, 15" % (sr(sKOFF), sr(sKOFF))])
            F.put(1, ["s_lshl_b32 %s, %s, 13" % (sr(sKOFF), sr(sKOFF))])
            items += singles(kv_dma(True, 1, sKOFF, shared))
        if items: F.flow(items, cfg.q_lo, cfg.q_hi)
        interleave(mf, F.f)
    E("K1_QLOOP:")
    for v in range(6): q_step(v, "loop")
    I("s_add_u32 %s, %s, 6" % (sr(sKK), sr(sKK)))
    I("s_cmp_lt_u32 %s, 12" % sr(sKK))
    I("s_cbranch_scc1 K1_QLOOP")
    def signal():
        I("s_cmp_eq_u32 %s, 0" % sr(sTYPE))
        I("s_cbranch_scc1 K1_NOSIG")
        I("s_cmp_lg_u32 %s, 0" % sr(sWAVE))
        I("s_cbranch_scc1 K1_NOSIG")
        I("v_mov_b32 %s, s23" % vr(t0))
        I("v_mov_b32 %s, 1" % vr(t1))
        I("s_mov_b64 exec, 1")
        I("global_atomic_add %s, %s, s[26:27]" % (vr(t0), vr(t1)))
        I("s_mov_b64 exec, -1")
        E("K1_NOSIG:")
    for v in range(3):
        if cfg.adelay and cfg.sig_step == 12 + v: signal()
        q_step(v, "loop")
    if cfg.adelay and cfg.sig_step == 15: signal()
    q_step(3, "k0")
    I("s_cmp_eq_u32 %s, 0" % sr(sTYPE))
    I("s_cbranch_scc0 K1_B_PATH")
    for tag, shared in (("A", True), ("B", False)):
        if tag == "B": E("K1_B_PATH:")
        q_step(4, "kv1", shared)
        q_step(5, "kv2", shared)
        stamp(3)
        I("s_nop 7"); I("s_nop 1")
        q_epilogue()
        ring_addrs()
        I("s_mov_b32 %s, %s" % (sr(sVOFF), sr(sKOFF)))
        flat(kv_dma(False, 1, sVOFF, shared))
        I("s_waitcnt vmcnt(%d)" % (12 if shared else 24))
        if shared: I("s_barrier")
        for mt in range(2):
            for s_ in range(4): I(k_read(0, mt, s_))
        att_prologue_and_loop(shared, tag)
        if tag == "A":
            I("s_waitcnt vmcnt(0)")
            I("s_barrier")
            I("s_branch K1_POST")
    E("K1_POST:")
    for m in pv_group(4): I(m)
    stamp(5)
    I("s_nop 7"); I("s_nop 1")
    lv = [SS + j for j in range(5)]
    for j in range(5): I("v_accvgpr_read_b32 %s, %s" % (vr(lv[j]), ar(LA + 4 * j)))
    I("s_cmp_lg_u32 %s, 0" % sr(sRETRY))
    I("s_cbranch_scc1 K1_NORM")
    I("v_add_f32 %s, %s, %s" % (vr(t1), vr(lv[0]), vr(lv[1])))
    I("v_add_f32 %s, %s, %s" % (vr(t1), vr(t1), vr(lv[2])))
    I("v_add_f32 %s, %s, %s" % (vr(t1), vr(t1), vr(lv[3])))
    I("v_add_f32 %s, %s, %s" % (vr(t1), vr(t1), vr(lv[4])))
    I("v_mov_b32 %s, 0x4e800000" % vr(t2))
    I("v_cmp_nlt_f32 vcc, %s, %s" % (vr(t1), vr(t2)))
    I("s_nop 4")
    I("s_cbranch_vccnz K1_FALLBACK")
    E("K1_NORM:")
    I("v_lshrrev_b32 %s, 3, v0" % vr(t0))
    I("s_lshl_b32 %s, %s, 7" % (sr(sT1), sr(sWAVE)))
    I("v_add_u32 %s, %s, %s" % (vr(t0), sr(sT1), vr(t0)))
    I("v_mul_u32_u24 %s, 1152, %s" % (vr(t0), vr(t0)))
    I("v_lshlrev_b32 %s, 1, %s" % (vr(t1), vr(vg)))
    I("v_and_b32 %s, 7, v0" % vr(t2))
    I("v_xor_b32 %s, %s, %s" % (vr(t1), vr(t1), vr(t2)))
    I("v_lshl_add_u32 %s, %s, 4, %s" % (vr(vW3D), vr(t1), vr(t0)))
    for n in range(1, 4): I("v_add_u32 %s, %d, %s" % (vr(vW3D + n), n * (8 * 1152 - 1024), vr(vW3D)))
    I("v_lshlrev_b32 %s, 3, v0" % vr(vL8))
    I("s_lshl_b32 %s, %s, 14" % (sr(sBUF1), sr(sWAVE)))
    I("s_add_u32 %s, %s, %d" % (sr(sBUF0), sr(sBUF1), P3B[0]))
    I("s_mul_i32 %s, %s, 20480" % (sr(sXOWN), sr(sWAVE)))
    rc = [PK + 2 * j for j in range(5)]
    for j in range(5): I("v_rcp_f32 %s, %s" % (vr(rc[j]), vr(lv[j])))
    I("s_nop 0")
    for j in range(5): I("v_mov_b32 %s, %s" % (vr(rc[j] + 1), vr(rc[j])))
    tmpsets = [KF, KF + 8, KF + 16, KF + 24]
    cnt = 0
    for p in range(4):
        for j in range(5):
            tb = tmpsets[cnt % 4]; cnt += 1
            for k in range(4):
                I("v_accvgpr_read_b32 %s, %s" % (vr(tb + k), ar(oacc(2 * p, j) + k)))
                I("v_accvgpr_read_b32 %s, %s" % (vr(tb + 4 + k), ar(oacc(2 * p + 1, j) + k)))
            for k in range(0, 8, 2): I("v_pk_mul_f32 %s, %s, %s" % (vr(tb + k, 2), vr(tb + k, 2), vr(rc[j], 2)))
            ob = OFO + (p * 5 + j) * 4
            for k in range(4): I("v_cvt_pk_bf16_f32 %s, %s, %s" % (vr(ob + k), vr(tb + 2 * k), vr(tb + 2 * k + 1)))
    I("s_waitcnt vmcnt(0)")
    I("s_barrier")
    I("s_lshl_b32 %s, %s, 7" % (sr(sPOFF), sr(sCOFF)))
    flat(w3_dma(sBUF0, sPOFF))
    I("v_add_u32 %s, %s, %s" % (vr(t0), sr(sXOWN), vr(vLANE16)))
    for q in range(20): I("ds_write_b128 %s, %s offset:%d" % (vr(t0), vr(OFO + 4 * q, 4), q * 1024))
    I("v_lshl_add_u32 %s, %s, 2, %s" % (vr(t1), vr(vg), vr(vrr)))
    I("v_lshlrev_b32 %s, 7, %s" % (vr(t1), vr(t1)))
    I("v_lshrrev_b32 %s, 1, %s" % (vr(t2), vr(vrr)))
    I("v_lshl_add_u32 %s, %s, 1, %s" % (vr(t2), vr(vg), vr(t2)))
    I("v_and_b32 %s, 3, %s" % (vr(t2), vr(t2)))
    I("v_lshlrev_b32 %s, 1, %s" % (vr(t2), vr(t2)))
    I("v_lshrrev_b32 %s, 1, %s" % (vr(t0), vr(vc)))
    I("s_lshl_b32 %s, %s, 1" % (sr(sT0), sr(sWAVE)))
    I("v_add_u32 %s, %s, %s" % (vr(t0), sr(sT0), vr(t0)))
    I("v_xor_b32 %s, %s, %s" % (vr(t0), vr(t0), vr(t2)))
    I("v_lshl_add_u32 %s, %s, 4, %s" % (vr(t1), vr(t0), vr(t1)))
    I("v_and_b32 %s, 1, %s" % (vr(t0), vr(vc)))
    I("v_lshl_add_u32 %s, %s, 3, %s" % (vr(t1), vr(t0), vr(t1)))
    for q in range(4):
        I("s_add_u32 %s, %s, %d" % (sr(sT0), sr(sWAVE), q))
        I("s_and_b32 %s, %s, 3" % (sr(sT0), sr(sT0)))
        I("s_lshl_b32 %s, %s, 14" % (sr(sT0), sr(sT0)))
        I("v_add_u32 %s, %s, %s" % (vr(vA3 + 4 + q), sr(sT0), vr(t1)))
        I("v_add_u32 %s, %d, %s" % (vr(vA3 + q), P3B[0], vr(vA3 + 4 + q)))
    I("s_waitcnt lgkmcnt(0)")
    I("s_barrier")
    for q in range(1, 4):
        I("s_add_u32 %s, %s, %d" % (sr(sT0), sr(sWAVE), q))
        I("s_and_b32 %s, %s, 3" % (sr(sT0), sr(sT0)))
        I("s_mul_i32 %s, %s, 20480" % (sr(sT0), sr(sT0)))
        I("v_add_u32 %s, %s, %s" % (vr(t0), sr(sT0), vr(vLANE16)))
        for k in range(20):
            dst = vr(96 + 4 * k, 4) if q == 1 else ar(96 + (q - 2) * 80 + 4 * k, 4)
            I("ds_read_b128 %s, %s offset:%d" % (dst, vr(t0), k * 1024))
            if k % 10 == 9: I("s_waitcnt lgkmcnt(4)")
    def bfrag(kl, j):
        q, p = kl >> 2, kl & 3
        idx = (p * 5 + j) * 4
        if q == 0: return vr(OFO + idx, 4)
        if q == 1: return vr(96 + idx, 4)
        return ar(96 + (q - 2) * 80 + idx, 4)
    def a3_reads(u, kl):
        ad = vA3 + 4 * u + (kl >> 2)
        off = (kl & 3) * 4096
        sl = A3 + 4 * (kl % 8)
        return ["ds_read_b64_tr_b16 %s, %s offset:%d" % (vr(sl, 2), vr(ad), off),
                "ds_read_b64_tr_b16 %s, %s offset:%d" % (vr(sl + 2, 2), vr(ad), off + 2048)]
    I("s_waitcnt vmcnt(0) lgkmcnt(0)")
    I("s_barrier")
    I("s_add_u32 %s, %s, 1" % (sr(sT2X), sr(sCOFF)))
    I("s_lshl_b32 %s, %s, 7" % (sr(sT2X), sr(sT2X)))
    NS = cfg.p3_first
    flat(w3_dma(sBUF1, sT2X)[:NS])
    for kl in range(8):
        for s_ in a3_reads(0, kl): I(s_)
        if kl == 3: I("s_waitcnt lgkmcnt(0)")
    I("s_waitcnt lgkmcnt(0)")
    stamp(6)
    I("s_mov_b32 %s, 0" % sr(sKK))
    def pk(up, j):
        tb = PK + (j & 1) * 8
        r = ["v_accvgpr_read_b32 %s, %s" % (vr(tb + k), ar(up * 20 + j * 4 + k)) for k in range(4)]
        r += ["v_cvt_pk_bf16_f32 %s, %s, %s" % (vr(tb + 4 + k), vr(tb + 2 * k), vr(tb + 2 * k + 1)) for k in range(2)]
        st = ["s_add_u32 %s, %s, %d" % (sr(sT2), sr(sPOFF), j * 512),
              "buffer_store_dwordx2 %s, %s, %s, %s offen %s" % (vr(tb + 4, 2), vr(vL8), sr(S_P, 4), sr(sT2), cfg.st_flag)]
        return r, st
    def split(lst, n):
        k = 0
        for i_, it in enumerate(lst):
            if it[0].startswith("buffer_load"):
                k += 1
                if k == n: return lst[:i_ + 1], lst[i_ + 1:]
    E("K1_P3LOOP:")
    for u in range(2):
        un = 1 - u
        mf = []
        for kp in range(8):
            for j in range(5):
                for kl in (2 * kp, 2 * kp + 1):
                    d = ar(u * 20 + j * 4, 4)
                    mf.append(mfma(d, vr(A3 + 4 * (kl % 8), 4), bfrag(kl, j), d if kl else "0"))
        F = Fill(80)
        F.put(-1, trace_pt(["s_add_u32 s4, %s, %d" % (sr(sKK), 40 + u)]))
        for kp in range(8):
            g = 10 * kp + 10
            nb, nkl = (u, 2 * kp + 8) if kp < 4 else (un, 2 * kp - 8)
            if kp < 7:
                F.put(g, a3_reads(nb, nkl)); F.put(g + 1, a3_reads(nb, nkl + 1))
            else:
                F.put(79, a3_reads(nb, nkl) + a3_reads(nb, nkl + 1))
        for kp in range(8): F.put(10 * kp - 1, "s_waitcnt lgkmcnt(8)")
        F.put(49, ["s_waitcnt vmcnt(5) lgkmcnt(0)", "s_barrier"])
        dm_prev = singles(w3_dma(sBUF0 if un == 0 else sBUF1, sT2X))
        F.flow(split(dm_prev, NS)[1], 2, 24)
        pre = ["s_add_u32 %s, %s, %d" % (sr(sPOFF), sr(sKK), u + 8)] + wrap9(sPOFF) + \
              ["s_sub_u32 %s, %s, 9" % (sr(sT1), sr(sPOFF)), "s_cmp_ge_u32 %s, 9" % sr(sPOFF), "s_cselect_b32 %s, %s, %s" % (sr(sPOFF), sr(sT1), sr(sPOFF)),
               "s_lshl_b32 %s, %s, 2" % (sr(sPOFF), sr(sPOFF)), "s_add_u32 %s, %s, %s" % (sr(sPOFF), sr(sPOFF), sr(sWAVE)), "s_mulk_i32 %s, 2560" % sr(sPOFF)]
        if u == 0: pre += ["s_cmp_eq_u32 %s, 0" % sr(sKK), "s_cselect_b32 %s, 0x40000000, %s" % (sr(sPOFF), sr(sPOFF))]
        F.flow(atomize(pre), 2, 24, spread=False)
        items = []
        for j in range(5):
            r, st = pk(un, j)
            items += r + st
        F.flow(items, 25, 48)
        pre = ["s_add_u32 %s, %s, %d" % (sr(sT0), sr(sKK), u + 2), "s_mov_b32 %s, %s" % (sr(sT2X), sr(sT0))] + wrap9(sT2X) + \
              ["s_lshl_b32 %s, %s, 7" % (sr(sT2X), sr(sT2X)), "s_cmp_lt_u32 %s, 9" % sr(sT0), "s_cselect_b32 %s, %s, 0x40000000" % (sr(sT2X), sr(sT2X))]
        F.flow(atomize(pre), 52, 58, spread=False)
        dm_cur = singles(w3_dma(sBUF0 if u == 0 else sBUF1, sT2X))
        F.flow(split(dm_cur, NS)[0], 59, 79)
        interleave(mf, F.f)
        if u == 0:
            I("s_cmp_eq_u32 %s, 8" % sr(sKK))
            I("s_cbranch_scc1 K1_P3DONE")
    I("s_add_u32 %s, %s, 2" % (sr(sKK), sr(sKK)))
    I("s_branch K1_P3LOOP")
    E("K1_P3DONE:")
    I("s_nop 7"); I("s_nop 1")
    I("s_mov_b32 %s, 8" % sr(sPOFF))
    for x in wrap9(sPOFF): I(x)
    I("s_lshl_b32 %s, %s, 2" % (sr(sPOFF), sr(sPOFF)))
    I("s_add_u32 %s, %s, %s" % (sr(sPOFF), sr(sPOFF), sr(sWAVE)))
    I("s_mulk_i32 %s, 2560" % sr(sPOFF))
    for j in range(5):
        r, st = pk(0, j)
        for x in r + st: I(x)
    if cfg.fuse: fused_reduce()
    if cfg.trace:
        I("s_memtime s[6:7]"); I("s_waitcnt lgkmcnt(0)"); I("v_writelane_b32 v7, s6, 60")
        I("s_lshl_b32 s4, %s, 8" % sr(sUID)); I("s_add_u32 s4, s4, 0x4100000")
        I("v_lshlrev_b32 v6, 2, v0"); I("v_add_u32 v6, s4, v6")
        I("global_store_dword v6, v7, s[28:29]")
    if cfg.stamps: I("s_waitcnt vmcnt(0)")
    stamp(7)
    stamp_out(8, 28, sUID, STAMP_OFF)
    E("K1_END:")
    I("s_endpgm")
    E("K1_FALLBACK:")
    I("s_waitcnt vmcnt(0) lgkmcnt(0)")
    I("s_cmp_lg_u32 %s, 0" % sr(sTYPE))
    I("s_cbranch_scc1 K1_FB_RING")
    I("s_lshr_b32 %s, %s, 1" % (sr(sT0), sr(sWAVE)))
    I("s_lshl_b32 %s, %s, 15" % (sr(sT0), sr(sT0)))
    I("s_mul_i32 %s, %s, 98304" % (sr(sT1), sr(sHI)))
    I("s_add_u32 %s, %s, %s" % (sr(sLW), sr(sT0), sr(sT1)))
    E("K1_FB_RING:")
    ring_addrs()
    mx = [VF + j for j in range(5)]
    for j in range(5): I("v_mov_b32 %s, 0xff800000" % vr(mx[j]))
    I("s_mov_b32 %s, 0" % sr(sKOFF))
    E("K1_FB_LOOP:")
    flat(kv_dma(True, 0, sKOFF))
    I("s_waitcnt vmcnt(0)")
    for mt in range(2):
        for s_ in range(4): I(k_read(0, mt, s_))
    I("s_waitcnt lgkmcnt(0)")
    for j in range(5):
        for m in qk_group(j, czero=True): I(m)
    I("s_nop 7"); I("s_nop 1")
    for j in range(5):
        b_ = SS + 8 * j
        for k in range(0, 8, 2): I("v_max3_f32 %s, %s, %s, %s" % (vr(mx[j]), vr(mx[j]), vr(b_ + k), vr(b_ + k + 1)))
    I("s_add_u32 %s, %s, 8192" % (sr(sKOFF), sr(sKOFF)))
    I("s_cmp_lt_u32 %s, 131072" % sr(sKOFF))
    I("s_cbranch_scc1 K1_FB_LOOP")
    for j in range(5):
        I("v_mov_b32 %s, %s" % (vr(t0), vr(mx[j])))
        xlane_max(t0, t1)
        for k in range(4): I("v_sub_f32 %s, 0, %s" % (vr(NM + 4 * j + k), vr(t0)))
    for r in range(180): I("v_accvgpr_write_b32 %s, 0" % ar(r))
    I("s_mov_b32 %s, 1" % sr(sRETRY))
    tile_off(sKOFF, 0); tile_off(sVOFF, 0)
    flat(kv_dma(True, 0, sKOFF)); flat(kv_dma(False, 0, sVOFF))
    tile_off(sKOFF, 1); tile_off(sVOFF, 1)
    flat(kv_dma(True, 1, sKOFF)); flat(kv_dma(False, 1, sVOFF))
    I("s_waitcnt vmcnt(24)")
    for mt in range(2):
        for s_ in range(4): I(k_read(0, mt, s_))
    att_prologue_and_loop(False, "R", retry=True)
    I("s_branch K1_POST")

def gen_k2():
    R = cfg.k2_rep
    NWG = 720 // R
    E(".globl reduce_kernel"); E(".p2align 8"); E(".type reduce_kernel,@function"); E("reduce_kernel:")
    I("s_cmp_ge_u32 s2, %d" % NWG)
    I("s_cbranch_scc1 K2_END")
    I("s_load_dwordx2 s[8:9], s[0:1], 80")
    I("s_load_dwordx2 s[10:11], s[0:1], 96")
    stamp(0)
    I("v_lshrrev_b32 v1, 6, v0")
    I("v_and_b32 v0, 63, v0")
    I("v_readfirstlane_b32 s12, v1")
    I("s_lshl_b32 s13, s2, 2")
    I("v_lshlrev_b32 v2, 4, v0")
    I("s_add_u32 s13, s13, s12")
    I("s_mov_b32 s78, s13")
    I("s_mul_i32 s13, s13, %d" % R)
    assert 90 % R == 0
    I("s_mul_i32 s14, s13, 46604")
    I("s_lshr_b32 s14, s14, 22")
    for u in range(2880): assert (u * 46604) >> 22 == u // 90
    I("s_mul_i32 s15, s14, 90")
    I("s_sub_u32 s15, s13, s15")
    I("s_lshr_b32 s16, s14, 4")
    I("s_and_b32 s17, s14, 15")
    I("s_mul_i32 s18, s16, %d" % PSTR_TYPE)
    I("s_mul_i32 s19, s17, 92160")
    I("s_add_u32 s18, s18, s19")
    I("s_lshl_b32 s19, s15, 10")
    I("s_add_u32 s18, s18, s19")
    I("s_waitcnt lgkmcnt(0)")
    I("s_add_u32 s20, s10, s18")
    I("s_addc_u32 s21, s11, 0")
    I("s_and_b32 s21, s21, 0xffff")
    I("s_mov_b32 s22, %d" % (7 * PSTR_HQ + 1024 * R))
    I("s_mov_b32 s23, 0x20000")
    D0 = 32
    for r in range(R):
        for hq in range(8):
            I("s_mov_b32 s24, %d" % (hq * PSTR_HQ + r * 1024))
            I("buffer_load_dwordx4 %s, v2, s[20:23], s24 offen" % vr(D0 + 4 * (r * 8 + hq), 4))
    I("s_mul_i32 s29, s17, 80")
    I("s_mul_i32 s30, s16, 1152")
    I("s_mov_b32 s32, s8")
    I("s_and_b32 s33, s9, 0xffff")
    I("s_mov_b32 s34, %d" % (16 * 80 * 1152 * 2))
    I("s_mov_b32 s35, 0x20000")
    I("s_mov_b32 s36, 0xffff0000")
    for r in range(R):
        I("v_lshrrev_b32 v3, 5, v0")
        I("s_add_u32 s25, s15, %d" % r)
        I("s_lshl_b32 s25, s25, 1")
        I("v_add_u32 v3, s25, v3")
        I("v_mul_u32_u24 v4, 13108, v3")
        I("v_lshrrev_b32 v4, 16, v4")
        I("v_mul_u32_u24 v5, 5, v4")
        I("v_sub_u32 v5, v3, v5")
        I("v_and_b32 v6, 31, v0")
        I("v_lshlrev_b32 v6, 1, v6")
        I("v_and_b32 v7, 15, v6")
        I("v_lshrrev_b32 v6, 4, v6")
        I("v_lshl_add_u32 v5, v5, 4, v7")
        I("v_add_u32 v5, s29, v5")
        I("v_mul_u32_u24 v5, 2304, v5")
        I("v_lshl_add_u32 v5, v4, 5, v5")
        I("v_lshl_add_u32 %s, v6, 3, v5" % vr(24 + r))
    for q in range(180): assert (q * 13108) >> 16 == q // 5
    for r in range(R):
        for hq in range(8):
            I("s_waitcnt vmcnt(%d)" % (R * 8 - 1 - (r * 8 + hq) + 2 * r))
            for k in range(4):
                src = D0 + 4 * (r * 8 + hq) + k
                if hq == 0:
                    I("v_lshlrev_b32 %s, 16, %s" % (vr(8 + 2 * k), vr(src)))
                    I("v_and_b32 %s, s36, %s" % (vr(9 + 2 * k), vr(src)))
                else:
                    I("v_lshlrev_b32 v3, 16, %s" % vr(src))
                    I("v_and_b32 v4, s36, %s" % vr(src))
                    I("v_add_f32 %s, %s, v3" % (vr(8 + 2 * k), vr(8 + 2 * k)))
                    I("v_add_f32 %s, %s, v4" % (vr(9 + 2 * k), vr(9 + 2 * k)))
        ob = 16 + 4 * (r & 1)
        for k in range(4): I("v_cvt_pk_bf16_f32 %s, %s, %s" % (vr(ob + k), vr(8 + 2 * k), vr(9 + 2 * k)))
        I("buffer_store_dwordx2 %s, %s, s[32:35], s30 offen" % (vr(ob, 2), vr(24 + r)))
        I("buffer_store_dwordx2 %s, %s, s[32:35], s30 offen offset:2304" % (vr(ob + 2, 2), vr(24 + r)))
    if cfg.stamps: I("s_waitcnt vmcnt(0)")
    stamp(1)
    stamp_out(2, 10, 78, STAMP_OFF + 0x10000)
    E("K2_END:")
    I("s_endpgm")

def kd(name, nv, ns, acc):
    E(".amdhsa_kernel %s" % name)
    E("  .amdhsa_next_free_vgpr %d" % nv)
    E("  .amdhsa_next_free_sgpr %d" % ns)
    E("  .amdhsa_accum_offset %d" % acc)
    E("  .amdhsa_group_segment_fixed_size 0")
    E("  .amdhsa_kernarg_size 104")
    E("  .amdhsa_user_sgpr_count 2")
    E("  .amdhsa_user_sgpr_kernarg_segment_ptr 1")
    E("  .amdhsa_system_sgpr_workgroup_id_x 1")
    E(".end_amdhsa_kernel")

KN = "concat_heads__gqa_block_cached__mha_block_cached__near_ridge_kernel" if cfg.fuse else "attn_kernel"
if cfg.fuse: E("; @launch grid=(256,1,1) block=(256,1,1) lds=%d" % K1_LDS)
else: E("; @launch kernel=attn_kernel grid=(256,1,1) block=(256,1,1) lds=%d" % K1_LDS)
if not cfg.fuse: E("; @launch kernel=reduce_kernel grid=(%d,1,1) block=(256,1,1) lds=0" % (720 // cfg.k2_rep))
E('.amdgcn_target "amdgcn-amd-amdhsa--gfx950"')
E(".text")
gen_k1()
if not cfg.fuse: gen_k2()
E('.section .rodata,"a"')
E(".p2align 6")
kd(KN, 512, 102, 256)
E(".p2align 6")
if not cfg.fuse: kd("reduce_kernel", 32 + 32 * cfg.k2_rep, 102, 32 + 32 * cfg.k2_rep)
print("\n".join(L))
```
